```python
import torch

def _softmax(x, axis=-1):
    return torch.softmax(x, dim=axis)
def _gelu(x):
    return torch.nn.functional.gelu(x, approximate="tanh")
def _silu(x):
    return torch.nn.functional.silu(x)
def _sigmoid(x):
    return torch.sigmoid(x)
def _layernorm(x, axis=-1, eps=1e-5):
    m = x.mean(dim=axis, keepdim=True)
    v = x.var(dim=axis, keepdim=True, unbiased=False)
    return (x - m) / torch.sqrt(v + eps)
def _scatter_add(tgt, idx, src, axis=0):
    return tgt.clone().index_add_(axis, idx, src)
def _segment_sum(src, seg, n):
    out = torch.zeros((n,) + src.shape[1:], dtype=src.dtype)
    return out.index_add_(0, seg, src)
def _pad(x, pw):
    flat = tuple(v for pair in reversed(pw) for v in pair)
    return torch.nn.functional.pad(x, flat)

kernel_name = 'sequential_preLN__gqa_block_cached__dense_activation_silu__decode'

def setup_inputs():

    _w = (lambda a: (lambda t: t.to(torch.bfloat16) if t.is_floating_point() else t)(torch.as_tensor(a)))
    def _A_setup():
        B, Sq, D = 1, 1, 1024
        Hq, Hkv, Sk, Dh = 32, 4, 65536, 128
        assert Hq % Hkv == 0, (Hq, Hkv)
        return {
            "x": _w((lambda *s: torch.randn(*s, dtype=torch.bfloat16) * 0.05)(B, Sq, D)),
            "k_cache": _w((lambda *s: torch.randn(*s, dtype=torch.bfloat16) * 3.2)(B, Hkv, Sk, Dh)),
            "v_cache": _w((lambda *s: torch.randn(*s, dtype=torch.bfloat16) * 0.8)(B, Hkv, Sk, Dh)),
            "wq": _w((lambda *s: torch.randn(*s, dtype=torch.bfloat16) * 3.2)(D, Hq * Dh) * (D ** -0.5)),
            "wo": _w((lambda *s: torch.randn(*s, dtype=torch.bfloat16) * 0.8)(Hq * Dh, D) * ((Hq * Dh) ** -0.5)),
        }
    _A_in = _A_setup()

    def _B_setup():
        B, S, D, F = 1, 1, 1024, 3584
        return {
            "x": _w((lambda *s: torch.randn(*s, dtype=torch.bfloat16) * 0.05)(B, S, D)),
            "w1": _w((lambda *s: torch.randn(*s, dtype=torch.bfloat16) * 3.2)(D, F) * (D ** -0.5)),
            "w2": _w((lambda *s: torch.randn(*s, dtype=torch.bfloat16) * 0.8)(F, D) * (F ** -0.5)),
        }
    _B_in = _B_setup()

    return {
        "A_x": _A_in["x"],
        "A_k_cache": _A_in["k_cache"],
        "A_v_cache": _A_in["v_cache"],
        "A_wq": _A_in["wq"],
        "A_wo": _A_in["wo"],
        "B_x": _B_in["x"],
        "B_w1": _B_in["w1"],
        "B_w2": _B_in["w2"],
    }

def reference(A_x, A_k_cache, A_v_cache, A_wq, A_wo, B_x, B_w1, B_w2):
    def _A_ref(x, k_cache, v_cache, wq, wo):
        B, Sq, D = x.shape
        Hq, Dh = 32, 128
        Hkv = k_cache.shape[1]
        rep = Hq // Hkv
        q = (lambda x, *d: x.permute(*d))((x @ wq).reshape(B, Sq, Hq, Dh), 0, 2, 1, 3)
        k = (lambda x, n, axis: torch.repeat_interleave(x, n, dim=axis))(k_cache, rep, axis=1)
        v = (lambda x, n, axis: torch.repeat_interleave(x, n, dim=axis))(v_cache, rep, axis=1)
        scores = torch.einsum("bhqd,bhkd->bhqk", q, k) * (Dh ** -0.5)
        p = _softmax(scores, axis=-1)
        o = torch.einsum("bhqk,bhkd->bhqd", p, v)
        return (lambda x, *d: x.permute(*d))(o, 0, 2, 1, 3).reshape(B, Sq, Hq * Dh) @ wo

    def _B_ref(x, w1, w2):
        h = torch.einsum("bsd,df->bsf", x, w1)
        h = _silu(h)
        out = torch.einsum("bsf,fd->bsd", h, w2)
        return out

    x = A_x
    h = x + _A_ref(_layernorm(x, axis=-1), A_k_cache, A_v_cache, A_wq, A_wo)
    h2 = h + _B_ref(_layernorm(h, axis=-1), B_w1, B_w2)
    return h2
```

```python
import re

_REG = re.compile(r'\b([vsa])(?:(\d+)\b|\[(\d+):(\d+)\])')
TRANS = ("v_exp_f32", "v_log_f32", "v_rcp_f32", "v_rsq_f32", "v_sqrt_f32", "v_sin_f32", "v_cos_f32")

def regs_of(op):
    out = set()
    for m in _REG.finditer(op):
        k = m.group(1)
        if m.group(2) is not None:
            out.add((k, int(m.group(2))))
        else:
            for i in range(int(m.group(3)), int(m.group(4)) + 1):
                out.add((k, i))
    if re.search(r'\bvcc\b', op):
        out.add(('s', 106)); out.add(('s', 107))
    if re.search(r'\bexec\b', op):
        out.add(('s', 126)); out.add(('s', 127))
    return out

def split_ops(rest):
    ops, depth, cur = [], 0, ""
    for ch in rest:
        if ch == '[': depth += 1
        if ch == ']': depth -= 1
        if ch == ',' and depth == 0:
            ops.append(cur.strip()); cur = ""
        else:
            cur += ch
    if cur.strip(): ops.append(cur.strip())
    return ops

class Ins:
    def __init__(self, text):
        self.text = text
        t = text.split(';')[0].strip()
        parts = t.split(None, 1)
        self.mn = parts[0]
        rest = parts[1] if len(parts) > 1 else ""
        ops = split_ops(rest)
        mods = ""
        if ops:
            sp = ops[-1].split(None, 1)
            ops[-1] = sp[0]
            mods = sp[1] if len(sp) > 1 else ""
        self.ops, self.mods = ops, mods
        mn = self.mn
        self.kind = "other"
        self.w, self.r = set(), set()
        self.srcc = set(); self.sdata = set()
        self.dpp = ("row_" in mods or "quad_perm" in mods or "wave_" in mods)
        self.states = 1
        if mn == "s_nop":
            self.states = int(ops[0]) + 1; self.kind = "salu"
        elif mn.startswith("v_mfma"):
            self.kind = "mfma"
            self.w = regs_of(ops[0]); self.ra = regs_of(ops[1]) | regs_of(ops[2]); self.srcc = regs_of(ops[3])
            self.r = self.ra | self.srcc
        elif mn.startswith("v_"):
            self.kind = "valu"
            if mn.startswith("v_permlane") and "swap" in mn:
                self.w = regs_of(ops[0]) | regs_of(ops[1]); self.r = set(self.w)
            elif mn.startswith("v_cmp"):
                self.w = regs_of(ops[0]); self.r = set().union(*[regs_of(o) for o in ops[1:]])
            elif mn in ("v_add_co_u32", "v_addc_co_u32", "v_sub_co_u32"):
                self.w = regs_of(ops[0]) | regs_of(ops[1]); self.r = set().union(*[regs_of(o) for o in ops[2:]])
            else:
                self.w = regs_of(ops[0]); self.r = set().union(*[regs_of(o) for o in ops[1:]]) if len(ops) > 1 else set()
                if mn.startswith("v_fmac") or self.dpp: self.r |= self.w
                if mn.startswith("v_cndmask") and len(ops) == 3: self.r |= {('s',106),('s',107)}
        elif mn.startswith("buffer_") or mn.startswith("global_"):
            self.kind = "vmem"
            allr = [regs_of(o) for o in ops]
            if "load" in mn and "lds" not in mods.split():
                self.w = allr[0]; self.r = set().union(*allr[1:])
            else:
                self.r = set().union(*allr) if allr else set()
                if "store" in mn and ("x4" in mn or "x3" in mn): self.sdata = allr[0] if mn.startswith("buffer_") else allr[1]
        elif mn.startswith("ds_"):
            self.kind = "ds"
            allr = [regs_of(o) for o in ops]
            if "read" in mn or "permute" in mn or "swizzle" in mn:
                self.w = allr[0]; self.r = set().union(*allr[1:])
            else:
                self.r = set().union(*allr)
        elif mn.startswith("s_"):
            self.kind = "salu"
            if ops and not mn.startswith(("s_cmp", "s_cbranch", "s_branch", "s_waitcnt", "s_barrier", "s_sleep", "s_endpgm", "s_setprio")):
                self.w = regs_of(ops[0]); self.r = set().union(*[regs_of(o) for o in ops[1:]]) if len(ops) > 1 else set()
            else:
                self.r = set().union(*[regs_of(o) for o in ops]) if ops else set()
        self.trans = mn in TRANS

def vonly(s): return {x for x in s if x[0] in "va"}
def sonly(s): return {x for x in s if x[0] == "s"}

def need(p, c):
    n = 0
    if p.kind == "valu":
        pv, ps = vonly(p.w), sonly(p.w)
        if c.kind == "mfma" and pv & c.r: n = max(n, 2)
        if c.kind == "valu":
            if c.dpp and pv & c.r: n = max(n, 2)
            if c.mn.startswith("v_permlane") and pv & c.r: n = max(n, 2)
            if c.mn.startswith(("v_readlane", "v_readfirstlane")) and pv & c.r: n = max(n, 1)
            if p.trans and not c.trans and pv & c.r: n = max(n, 1)
            if ps & c.r: n = max(n, 4 if c.mn.startswith(("v_readlane", "v_writelane")) else 2)
        if p.mn.startswith("v_dot") and c.mn != p.mn and pv & (c.r | c.w): n = max(n, 3)
        if c.kind == "vmem" and ps & c.r: n = max(n, 5)
        if c.kind == "salu" and ps & c.r: n = max(n, 1)
    if p.kind == "mfma":
        if c.kind == "mfma":
            if p.w & c.ra: n = max(n, 8)
            if p.w & c.srcc and p.w != c.srcc: n = max(n, 6)
            if p.w & c.w and p.w != c.srcc: n = max(n, 6)
        elif c.kind in ("valu", "vmem", "ds"):
            if p.w & (c.r | c.w): n = max(n, 8)
            if c.kind == "valu" and p.srcc & c.w: n = max(n, 3)
    if p.kind == "vmem" and p.sdata:
        if p.sdata & c.w: n = max(n, 2)
    return n

class Asm:
    def __init__(self):
        self.lines = []
        self.hist = []
        self.nvm = 0
        self.done = 0
        self.nops = 0
    def raw(self, t): self.lines.append(t)
    def label(self, name):
        self.lines.append(name + ":")
    def comment(self, t): self.lines.append("    ; " + t)
    def __call__(self, text):
        for t in text.split("\n"):
            t = t.strip()
            if not t: continue
            if t.endswith(":"): self.label(t[:-1]); continue
            ins = Ins(t)
            dist, req = 0, 0
            for p in reversed(self.hist):
                req = max(req, need(p, ins) - dist)
                dist += p.states
                if dist > 12: break
            if req > 0:
                nop = Ins(f"s_nop {req-1}")
                self.lines.append(f"    s_nop {req-1}"); self.hist.append(nop); self.nops += 1
            self.lines.append("    " + t)
            self.hist.append(ins)
            if len(self.hist) > 40: self.hist = self.hist[-20:]
    def vm(self, text):
        self(text); self.nvm += 1
        return self.nvm - 1
    def wait_vm(self, idx):
        if idx < self.done: return
        n = self.nvm - idx - 1
        assert n <= 63, n
        self(f"s_waitcnt vmcnt({n})"); self.done = idx + 1
    def pace(self, depth):
        if self.nvm - self.done >= depth:
            self.wait_vm(self.nvm - depth)
    def drained(self): self.done = self.nvm
    def text(self): return "\n".join(self.lines) + "\n"
```

```python
import struct, sys
sys.path.insert(0, "work")
from asmlib import Asm
KN = "sequential_preLN__gqa_block_cached__dense_activation_silu__decode_kernel"
def f32(x): return "0x%08x" % struct.unpack("<I", struct.pack("<f", x))[0]

WS_EPOCH = 0
WS_QP = 0x10000
WS_ML = 0x40000
WS_H3 = 0x50000
WS_DBG = 0x80000
WS_H1 = 0x100000
WS_H2 = 0x200000
WS_H4 = 0x300000
WS_H5 = 0x400000
WS_DUMP = 0x800000
L_QRED, L_QF, L_ML, L_MLG = 0, 4096, 6144, 6656
L_R1, L_R2, L_R4, L_R5, L_HB, L_O = 6912, 7168, 7680, 7936, 8704, 16384
LDS_BYTES = 49152

DEF = dict(qbar=1, depth=6, flag_pos=16, qload_pos=22, qproc_pos=29, ml_pos=16, wtail=0, stamps=0, d1=12, d2=12, d3=8, d3n=40, d4=12, d5=12, back=2, rep=8, dump=0)

def gen(**kw):
    o = dict(DEF); o.update(kw)
    D = o["depth"]
    a = Asm()
    a.raw(open("sequential_preLN__gqa_block_cached__dense_activation_silu__decode.s.ref").read().split("; Override")[0].rstrip())
    a.raw(f"; @launch grid=(256,1,1) block=(512,1,1) lds={LDS_BYTES}")
    a.raw('.amdgcn_target "amdgcn-amd-amdhsa--gfx950"\n.text')
    a.raw(f".globl {KN}\n.p2align 8\n.type {KN},@function\n{KN}:")
    sK, sV, sWS, sX, sWQ, sWO, sW1, sW2, sOUT, sDBG = [f"s[{b}:{b+3}]" for b in (8, 12, 16, 20, 24, 28, 32, 36, 40, 44)]
    sG, sS, sT0, sT1 = "s4", "s5", "s6", "s7"
    sKo, sVo = "s49", "s50"
    sTag8, sTag16, sEp = "s51", "s52", "s53"
    sPL, sPH, sHI, sSC, sL2E, s80 = "s54", "s55", "s56", "s57", "s58", "s59"
    sM4 = "s[60:61]"
    sCnt = "s62"; sT2 = "s63"; sTag2 = "s48"
    vLane, vKoff, vLin, vMask = "v1", "v2", "v3", "v4"
    vMw, vXr, vH = "v5", "v6", "v7"
    vt = [f"v{i}" for i in range(8, 15)]
    vStamp = "v15"
    S0 = 16
    ACC = 32
    SLOT = 64
    PT = 240
    def slot(i): return SLOT + 4 * i
    def r4(b): return f"v[{b}:{b+3}]"
    def r2(b): return f"v[{b}:{b+1}]"
    nst = [0]
    def stamp(name):
        if not o["stamps"]: return
        a("s_memrealtime s[98:99]\ns_waitcnt lgkmcnt(0)")
        a(f"v_writelane_b32 {vStamp}, s98, {nst[0]}")
        nst[0] += 1
    def bf16r(d, s):
        a(f"v_cvt_pk_bf16_f32 {d}, {s}, {s}\nv_lshlrev_b32 {d}, 16, {d}")
    def red64(op, v, t):
        a(f"v_mov_b32 {t}, {v}\nv_permlane32_swap_b32 {t}, {v}\n{op} {v}, {v}, {t}")
        a(f"v_mov_b32 {t}, {v}\nv_permlane16_swap_b32 {t}, {v}\n{op} {v}, {v}, {t}")
        for k in (8, 4, 2, 1):
            a(f"{op}_dpp {v}, {v}, {v} row_ror:{k} row_mask:0xf bank_mask:0xf")
    def red_rows(op, v, t):
        a(f"v_mov_b32 {t}, {v}\nv_permlane32_swap_b32 {t}, {v}\n{op} {v}, {v}, {t}")
        a(f"v_mov_b32 {t}, {v}\nv_permlane16_swap_b32 {t}, {v}\n{op} {v}, {v}, {t}")
        a(f"{op}_dpp {v}, {v}, {v} row_ror:8 row_mask:0xf bank_mask:0xf")
    def ln_stats(b, vm, vr, t0, t1):
        a(f"v_add_f32 {t0}, v{b}, v{b+1}")
        for i in range(2, 16): a(f"v_add_f32 {t0}, {t0}, v{b+i}")
        red64("v_add_f32", t0, t1)
        a(f"v_mul_f32 {t0}, {f32(1/1024)}, {t0}")
        for i in range(16): a(f"v_sub_f32 v{b+i}, v{b+i}, {t0}")
        a(f"v_mul_f32 {vr}, v{b}, v{b}")
        for i in range(1, 16): a(f"v_fmac_f32 {vr}, v{b+i}, v{b+i}")
        red64("v_add_f32", vr, t1)
        bf16r(vm, t0)
        a(f"v_mul_f32 {vr}, {f32(1/1024)}, {vr}")
        bf16r(vr, vr)
        a(f"v_add_f32 {vr}, {f32(1e-5)}, {vr}")
        bf16r(vr, vr)
        a(f"v_sqrt_f32 {vr}, {vr}")
        bf16r(vr, vr)
        a(f"v_rcp_f32 {vr}, {vr}")
    def ln_apply(h, A, vm, vr):
        for i in range(4): a(f"v_sub_f32 v{h+i}, v{h+i}, {vm}")
        a(f"v_cvt_pk_bf16_f32 v{A}, v{h}, v{h+1}\nv_cvt_pk_bf16_f32 v{A+1}, v{h+2}, v{h+3}")
        a(f"v_lshlrev_b32 v{h}, 16, v{A}\nv_and_b32 v{h+1}, {sHI}, v{A}\nv_lshlrev_b32 v{h+2}, 16, v{A+1}\nv_and_b32 v{h+3}, {sHI}, v{A+1}")
        for i in range(4): a(f"v_mul_f32 v{h+i}, v{h+i}, {vr}")
        a(f"v_cvt_pk_bf16_f32 v{A}, v{h}, v{h+1}\nv_cvt_pk_bf16_f32 v{A+1}, v{h+2}, v{h+3}")
    def wtrans(src, dst):
        for t in range(8):
            for j in range(2):
                a(f"v_perm_b32 v{dst+2*t+j}, v{src+4*(2*j+1)+(t>>1)}, v{src+4*(2*j)+(t>>1)}, {sPH if t & 1 else sPL}")
    def gemv(A, T, Dr, Y, tag=True):
        for t in range(8):
            a(f"v_mfma_f32_16x16x16_bf16 {r4(Dr+4*t)}, {r2(A)}, {r2(T+2*t)}, 0")
        for q in range(4):
            a(f"v_cndmask_b32 v{Y+q}, v{Dr+4*q}, v{Dr+4*(q+4)}, {sM4}")
        if tag:
            for q in range(4): a(f"v_and_or_b32 v{Y+q}, v{Y+q}, {vMask}, {sTag8}")
    lab = [0]
    def poll(loads, regs, tagreg, maskc, delay=0, counted=False):
        n = lab[0]; lab[0] += 1
        if delay: a(f"s_sleep {delay}")
        a(f"s_mov_b32 {sCnt}, 0")
        a.label(f"L_poll{n}")
        for l in loads: a(l)
        a("s_waitcnt vmcnt(0)")
        check(regs, tagreg, maskc)
        a(f"s_cbranch_vccz L_polld{n}")
        a(f"s_add_u32 {sCnt}, {sCnt}, 1\ns_cmp_gt_u32 {sCnt}, 0x80000\ns_cbranch_scc1 L_end")
        if o["back"]: a(f"s_sleep {o['back']}")
        a(f"s_branch L_poll{n}")
        a.label(f"L_polld{n}")
    def check(regs, tagreg, maskc):
        c = vt[6]
        a(f"v_xor_b32 {c}, {tagreg}, v{regs[0]}")
        for r in regs[1:]: a(f"v_bitop3_b32 {c}, v{r}, {tagreg}, {c} bitop3:0xbe")
        a(f"v_and_b32 {c}, {maskc}, {c}\nv_cmp_ne_u32 vcc, 0, {c}")
    def strip(regs):
        for r in regs: a(f"v_and_or_b32 v{r}, v{r}, {vMask}, {s80}")
    def quad16_reduce(b, lbase):
        a(f"v_permlane32_swap_b32 v{b}, v{b+1}\nv_permlane32_swap_b32 v{b+2}, v{b+3}")
        a(f"v_add_f32 v{b}, v{b}, v{b+1}\nv_add_f32 v{b+2}, v{b+2}, v{b+3}")
        a(f"v_permlane16_swap_b32 v{b}, v{b+2}")
        a(f"v_add_f32 v{b}, v{b}, v{b+2}")
        a(f"v_add_f32_dpp v{b}, v{b}, v{b} row_ror:4 row_mask:0xf bank_mask:0xf")
        a(f"v_add_f32_dpp v{b}, v{b}, v{b} row_ror:8 row_mask:0xf bank_mask:0xf")
        a(f"ds_write_b32 {vRW}, v{b} offset:{lbase}")
    def barrier():
        a("s_waitcnt lgkmcnt(0)\ns_barrier")

    a("s_cmp_ge_u32 s2, 0x100\ns_cbranch_scc1 L_end")
    a("s_load_dwordx16 s[64:79], s[0:1], 0\ns_load_dwordx4 s[80:83], s[0:1], 64\ns_load_dwordx2 s[84:85], s[0:1], 80")
    if o["stamps"]: a(f"v_mov_b32 {vStamp}, 0")
    stamp("start")
    a(f"v_and_b32 {vLane}, 63, v0\nv_lshrrev_b32 v8, 6, v0")
    a("v_readfirstlane_b32 s3, v8")
    a(f"v_lshlrev_b32 {vLin}, 4, {vLane}")
    a(f"v_bfe_u32 v8, {vLane}, 1, 1\nv_lshlrev_b32 v8, 10, v8\nv_bfe_u32 v9, {vLane}, 2, 2\nv_lshl_add_u32 v8, v9, 8, v8")
    a(f"v_lshrrev_b32 v9, 4, {vLane}\nv_lshl_add_u32 v8, v9, 5, v8\nv_and_b32 v9, 1, {vLane}\nv_lshl_add_u32 {vKoff}, v9, 4, v8")
    a(f"v_mov_b32 {vMask}, 0xffffff00")
    a(f"s_and_b32 {sG}, s2, 3\ns_lshr_b32 {sS}, s2, 2")
    a(f"s_mov_b32 {sPL}, 0x05040100\ns_mov_b32 {sPH}, 0x07060302\ns_mov_b32 {sHI}, 0xffff0000")
    a(f"s_mov_b32 {sSC}, {f32(128 ** -0.5)}\ns_mov_b32 {sL2E}, {f32(1.4426950408889634)}\ns_mov_b32 {s80}, 0x80")
    a(f"s_mov_b32 s60, 0xffff0000\ns_mov_b32 s61, 0xffff0000")
    a(f"s_lshl_b32 {sT0}, {sS}, 3\ns_add_u32 {sT0}, {sT0}, s3\ns_lshl_b32 {sT0}, {sT0}, 12\ns_lshl_b32 {sT1}, {sG}, 24\ns_add_u32 {sKo}, {sT0}, {sT1}\ns_mov_b32 {sVo}, {sKo}")
    a(f"v_lshrrev_b32 v9, 4, {vLane}\nv_and_b32 v8, 15, {vLane}\nv_lshlrev_b32 v8, 4, v8\nv_lshl_add_u32 v10, v9, 15, v8")
    a(f"v_lshlrev_b32 v11, 3, v9\nv_lshlrev_b32 v12, 5, {vLane}")
    a("s_waitcnt lgkmcnt(0)")
    def srd(base, p, size):
        a(f"s_mov_b32 s{base}, s{p}\ns_and_b32 s{base+1}, s{p+1}, 0xffff\ns_mov_b32 s{base+2}, {size}\ns_mov_b32 s{base+3}, 0x20000")
    srd(20, 64, 2048); srd(24, 70, 8 << 20); srd(8, 66, 64 << 20)
    XR = PT
    ix0 = a.vm(f"buffer_load_dwordx4 {r4(XR)}, v12, {sX}, 0 offen")
    ix1 = a.vm(f"buffer_load_dwordx4 {r4(XR+4)}, v12, {sX}, 0 offen offset:16")
    a(f"s_lshr_b32 {sT0}, s2, 5\ns_lshl_b32 {sT0}, {sT0}, 3\ns_add_u32 {sT0}, {sT0}, s3")
    a(f"s_lshl_b32 {sT1}, {sT0}, 5")
    ix2 = a.vm(f"buffer_load_dwordx2 {r2(XR+8)}, v11, {sX}, {sT1} offen")
    a(f"s_lshl_b32 {sT0}, {sT0}, 17\ns_and_b32 {sT1}, s2, 31\ns_lshl_b32 {sT1}, {sT1}, 8\ns_add_u32 {sT0}, {sT0}, {sT1}")
    for i in range(4):
        iwq = a.vm(f"buffer_load_dwordx4 {r4(slot(32+i))}, v10, {sWQ}, {sT0} offen nt")
        if i < 3: a(f"s_add_u32 {sT0}, {sT0}, 8192")
    kidx = {}
    def kload(k):
        kidx[k] = a.vm(f"buffer_load_dwordx4 {r4(slot(k))}, {vKoff}, {sK}, {sKo} offen offset:{(k%2)*128 + ((k%4)//2)*2048} nt")
        if k % 4 == 3: a(f"s_add_u32 {sKo}, {sKo}, 0x200000")
    K0 = o.get("k0", D)
    if o["qbar"]: a("s_barrier")
    for k in range(K0): kload(k)
    srd(12, 68, 64 << 20); srd(16, 84, 256 << 20); srd(28, 72, 8 << 20); srd(32, 76, 7 << 20); srd(36, 78, 7 << 20); srd(40, 80, 2048); srd(44, 82, 256)
    a(f"s_load_dword {sEp}, s[84:85], {WS_EPOCH}")
    a.wait_vm(ix1)
    XF = ACC
    for i in range(8):
        a(f"v_lshlrev_b32 v{XF+2*i}, 16, v{XR+i}\nv_and_b32 v{XF+2*i+1}, {sHI}, v{XR+i}")
    ln_stats(XF, vt[0], vt[1], vt[2], vt[3])
    a.wait_vm(ix2)
    a(f"v_lshlrev_b32 v48, 16, v{XR+8}\nv_and_b32 v49, {sHI}, v{XR+8}\nv_lshlrev_b32 v50, 16, v{XR+9}\nv_and_b32 v51, {sHI}, v{XR+9}")
    ln_apply(48, 52, vt[0], vt[1])
    a(f"v_mov_b32 v16, v52\nv_mov_b32 v17, v53")
    a.wait_vm(iwq)
    stamp("wq")
    wtrans(slot(32), PT)
    gemv(16, PT, ACC, 20, tag=False)
    a(f"v_and_b32 v8, 15, {vLane}\nv_lshlrev_b32 v8, 5, v8\nv_bfe_u32 v9, {vLane}, 4, 1\nv_lshl_add_u32 v8, v9, 4, v8")
    a(f"s_lshl_b32 {sT0}, s3, 9\nv_add_u32 v8, {sT0}, v8")
    a(f"ds_write_b128 v8, {r4(20)} offset:{L_QRED}")
    a(f"s_waitcnt lgkmcnt(0)\ns_add_u32 {sEp}, {sEp}, 1\ns_and_b32 {sTag8}, {sEp}, 0xff\ns_and_b32 {sTag16}, {sEp}, 0xffff\ns_and_b32 {sTag2}, {sEp}, 3")
    a("s_barrier")
    a("s_cmp_lg_u32 s3, 0\ns_cbranch_scc1 L_noq")
    a(f"v_and_b32 v8, 0x1f0, {vLin}")
    for i in range(8): a(f"ds_read_b128 {r4(ACC+4*i)}, v8 offset:{L_QRED + 512*i}")
    a("s_waitcnt lgkmcnt(0)")
    for i in range(1, 8):
        for q in range(4): a(f"v_add_f32 v{ACC+q}, v{ACC+q}, v{ACC+4*i+q}")
    a(f"s_and_b32 {sT0}, s2, 31\ns_lshl_b32 {sT0}, {sT0}, 12\ns_lshr_b32 {sT1}, s2, 5\ns_lshl_b32 {sT1}, {sT1}, 9\ns_add_u32 {sT0}, {sT0}, {sT1}\ns_add_u32 {sT0}, {sT0}, {WS_QP}")
    a("s_mov_b32 exec_hi, 0")
    for q in range(4): a(f"v_and_b32 v{ACC+q}, -4, v{ACC+q}\nv_or_b32 v{ACC+q}, {sTag2}, v{ACC+q}")
    a(f"buffer_store_dwordx4 {r4(ACC)}, v8, {sWS}, {sT0} offen sc1")
    a("s_mov_b64 exec, -1")
    a.label("L_noq")
    stamp("qpub")
    QL = S0
    for k in range(K0, 32):
        a.pace(D); kload(k)
        if k == o["qload_pos"]:
            a(f"s_lshl_b32 {sT0}, {sG}, 3\ns_add_u32 {sT0}, {sT0}, s3\ns_lshl_b32 {sT2}, {sT0}, 12\ns_add_u32 {sT2}, {sT2}, {WS_QP}")
            for i in range(4):
                a.pace(D); iq = a.vm(f"buffer_load_dwordx4 {r4(QL+4*i)}, {vLin}, {sWS}, {sT2} offen offset:{1024*i} sc1")
        if k == o["qproc_pos"]:
            a.wait_vm(iq)
            check(list(range(QL, QL+16)), sTag2, "3")
            a("s_cbranch_vccz L_qok")
            poll([f"buffer_load_dwordx4 {r4(QL+4*i)}, {vLin}, {sWS}, {sT2} offen offset:{1024*i} sc1" for i in range(4)], list(range(QL, QL+16)), sTag2, "3", 8)
            a.label("L_qok")
            for q in range(16): a(f"v_and_b32 v{QL+q}, -4, v{QL+q}")
            for q in range(4):
                a(f"v_add_f32 v{QL+q}, v{QL+q}, v{QL+4+q}\nv_add_f32 v{QL+8+q}, v{QL+8+q}, v{QL+12+q}")
            for q in range(4): a(f"v_add_f32 v{QL+q}, v{QL+q}, v{QL+8+q}")
            for q in range(4): a(f"v_mov_b32 v{QL+4+q}, v{QL+q}")
            for q in range(4): a(f"v_permlane32_swap_b32 v{QL+4+q}, v{QL+q}")
            for q in range(4): a(f"v_add_f32 v{QL+q}, v{QL+q}, v{QL+4+q}")
            a(f"v_cvt_pk_bf16_f32 v{QL+8}, v{QL}, v{QL+1}\nv_cvt_pk_bf16_f32 v{QL+9}, v{QL+2}, v{QL+3}")
            a(f"v_and_b32 v8, 31, {vLane}\nv_lshlrev_b32 v8, 3, v8\ns_lshl_b32 {sT0}, s3, 8\nv_add_u32 v8, {sT0}, v8")
            a(f"ds_write_b64 v8, {r2(QL+8)} offset:{L_QF}")
            barrier()
            a(f"v_and_b32 v8, 7, {vLane}\nv_lshlrev_b32 v8, 8, v8\nv_lshrrev_b32 v9, 4, {vLane}\nv_lshl_add_u32 v8, v9, 5, v8\nv_bfe_u32 v9, {vLane}, 3, 1\nv_lshl_add_u32 v8, v9, 4, v8")
            a(f"ds_read_b128 {r4(PT)}, v8 offset:{L_QF}\nds_read_b128 {r4(PT+4)}, v8 offset:{L_QF+128}")
            stamp("qready")
    wt = o["wtail"]
    wslot = 20 if wt else 32
    def vslot(i): return (32 + i if i < 12 else i - 12) if wt else i
    widx = {}
    def wsetup():
        a(f"v_lshrrev_b32 v9, 4, {vLane}\nv_and_b32 v8, 15, {vLane}\nv_lshlrev_b32 v8, 4, v8\nv_lshl_add_u32 v12, v9, 13, v8")
        a(f"v_mul_u32_u24 v9, {4*7168}, v9\nv_add_u32 v13, v9, v8")
        a(f"s_lshl_b32 s64, s2, 15\ns_lshl_b32 {sT0}, s3, 8\ns_add_u32 s64, s64, {sT0}\ns_mov_b32 s66, s64")
        a(f"s_mul_i32 s67, s2, 7\ns_add_u32 s67, s67, s3\ns_and_b32 s68, s67, 63\ns_lshr_b32 s69, s67, 6")
        a(f"s_mul_i32 s65, s68, {16*7168}\ns_lshl_b32 {sT0}, s69, 8\ns_add_u32 s65, s65, {sT0}")
        a(f"s_cmp_eq_u32 s3, 7\ns_cselect_b32 s65, 0x7000000, s65")
    def wload(n):
        m, i = n // 4, n % 4
        srd_, vo, sb, st = [(sWO, "v12", "s64", 2048), (sW1, "v13", "s65", 7168), (sW2, "v12", "s66", 2048)][m]
        widx[n] = a.vm(f"buffer_load_dwordx4 {r4(slot(wslot+n))}, {vo}, {srd_}, {sb} offen nt")
        if i < 3: a(f"s_add_u32 {sb}, {sb}, {st}")
    vidx = {}
    def vload(i):
        vidx[i] = a.vm(f"buffer_load_dwordx4 {r4(slot(vslot(i)))}, {vLin}, {sV}, {sVo} offen offset:{(i%4)*1024} nt")
        if i % 4 == 3: a(f"s_add_u32 {sVo}, {sVo}, 0x200000")
    wsetup()
    seq = ([("v", i) for i in range(32)] + [("w", n) for n in range(12)]) if wt else ([("w", n) for n in range(12)] + [("v", i) for i in range(32)])
    def issue(n):
        for _ in range(n):
            kind, i = seq.pop(0)
            a.pace(D)
            (vload if kind == "v" else wload)(i)
    issue(D)
    a.wait_vm(kidx[31])
    stamp("kdone")
    a("s_waitcnt lgkmcnt(0)")
    for half in range(2):
        for jj in range(8):
            j = half * 8 + jj
            a(f"v_mfma_f32_16x16x32_bf16 {r4(ACC+4*jj)}, {r4(slot(2*j))}, {r4(PT)}, 0")
        for jj in range(8):
            j = half * 8 + jj
            a(f"v_mfma_f32_16x16x32_bf16 {r4(ACC+4*jj)}, {r4(slot(2*j+1))}, {r4(PT+4)}, {r4(ACC+4*jj)}")
        for jj in range(8):
            j = half * 8 + jj; d = ACC + 4 * jj
            a(f"v_add_f32_dpp v{S0+j}, v{d+1}, v{d} row_ror:8 row_mask:0xf bank_mask:0x3")
            a(f"v_add_f32_dpp v{S0+j}, v{d+2}, v{d+3} row_ror:8 row_mask:0xf bank_mask:0xc")
    for j in range(0, 16, 2):
        x, y = f"v{S0+j}", f"v{S0+j+1}"
        a(f"v_cvt_pk_bf16_f32 v8, {x}, {y}\nv_lshlrev_b32 {x}, 16, v8\nv_and_b32 {y}, {sHI}, v8")
        a(f"v_mul_f32 {x}, {sSC}, {x}\nv_mul_f32 {y}, {sSC}, {y}")
        a(f"v_cvt_pk_bf16_f32 v8, {x}, {y}\nv_lshlrev_b32 {x}, 16, v8\nv_and_b32 {y}, {sHI}, v8")
    a(f"v_max3_f32 {vMw}, v{S0}, v{S0+1}, v{S0+2}")
    for j in range(3, 15, 2): a(f"v_max3_f32 {vMw}, {vMw}, v{S0+j}, v{S0+j+1}")
    a(f"v_max_f32 {vMw}, {vMw}, v{S0+15}")
    red_rows("v_max_f32", vMw, "v8")
    for j in range(16): a(f"v_sub_f32 v{S0+j}, v{S0+j}, {vMw}")
    for j in range(16): a(f"v_mul_f32 v{S0+j}, {sL2E}, v{S0+j}")
    for j in range(16): a(f"v_exp_f32 v{S0+j}, v{S0+j}")
    a(f"v_add_f32 v11, v{S0}, v{S0+1}")
    for j in range(2, 16): a(f"v_add_f32 v11, v11, v{S0+j}")
    red_rows("v_add_f32", "v11", "v8")
    a(f"v_mov_b32 v10, {vMw}")
    a(f"v_and_b32 v8, 7, {vLane}\nv_lshlrev_b32 v8, 3, v8\ns_lshl_b32 {sT0}, s3, 6\nv_add_u32 v8, {sT0}, v8")
    a(f"ds_write_b64 v8, v[10:11] offset:{L_ML}")
    barrier()
    a("s_cmp_lg_u32 s3, 0\ns_cbranch_scc1 L_noml")
    a(f"v_lshlrev_b32 v8, 3, {vLane}\nds_read_b64 v[10:11], v8 offset:{L_ML}\ns_waitcnt lgkmcnt(0)")
    a("v_mov_b32 v9, v10")
    red_rows("v_max_f32", "v9", "v8")
    a(f"v_sub_f32 v10, v10, v9\nv_mul_f32 v10, {sL2E}, v10\nv_exp_f32 v10, v10\nv_mul_f32 v11, v11, v10")
    red_rows("v_add_f32", "v11", "v8")
    a(f"v_or_b32 v10, {sTag16}, v9\nv_and_or_b32 v11, v11, {vMask}, {sTag8}")
    a(f"v_lshlrev_b32 v8, 9, {vLane}\ns_lshl_b32 {sT0}, {sG}, 12\ns_lshl_b32 {sT1}, {sS}, 3\ns_add_u32 {sT0}, {sT0}, {sT1}\ns_add_u32 {sT0}, {sT0}, {WS_ML}")
    a("s_mov_b64 exec, 0xff")
    a(f"buffer_store_dwordx2 v[10:11], v8, {sWS}, {sT0} offen sc1")
    a("s_mov_b64 exec, -1")
    a.label("L_noml")
    stamp("mlpub")
    def pv(u):
        for dp in range(4):
            tb = PT + 8 * (dp & 1)
            for b in range(2):
                for j in range(4):
                    a(f"v_perm_b32 v{tb+4*b+j}, v{slot(vslot(8*u+2*j+1))+dp}, v{slot(vslot(8*u+2*j))+dp}, {sPH if b else sPL}")
            for b in range(2):
                t = 2 * dp + b
                c = "0" if u == 0 else r4(ACC + 4 * t)
                a(f"v_mfma_f32_16x16x32_bf16 {r4(ACC+4*t)}, {r4(S0+4*u)}, {r4(tb+4*b)}, {c}")
    pvdone = 0; fready = False; iml = None
    while seq:
        issue(1)
        nv = len(vidx)
        if iml is None and nv > o["ml_pos"]:
            a(f"v_lshlrev_b32 v8, 3, {vLane}\ns_lshl_b32 {sT0}, {sG}, 3\ns_add_u32 {sT0}, {sT0}, s3\ns_lshl_b32 s70, {sT0}, 9\ns_add_u32 s70, s70, {WS_ML}")
            a.pace(D); iml = a.vm(f"buffer_load_dwordx2 v[10:11], v8, {sWS}, s70 offen sc1")
        if iml is not None and not fready and (a.done > iml or not seq):
            a.wait_vm(iml)
            a(f"v_xor_b32 v14, {sTag16}, v10\nv_and_b32 v14, 0xffff, v14\nv_xor_b32 v9, {sTag8}, v11\nv_and_b32 v9, 0xff, v9\nv_or_b32 v14, v14, v9")
            a("v_cmp_ne_u32 vcc, 0, v14\ns_cbranch_vccz L_mlok")
            a(f"s_mov_b32 {sCnt}, 0")
            a.label("L_mlspin")
            a(f"buffer_load_dwordx2 v[10:11], v8, {sWS}, s70 offen sc1\ns_waitcnt vmcnt(0)")
            a(f"s_add_u32 {sCnt}, {sCnt}, 1\ns_cmp_gt_u32 {sCnt}, 0x80000\ns_cbranch_scc1 L_end")
            a(f"v_xor_b32 v14, {sTag16}, v10\nv_and_b32 v14, 0xffff, v14\nv_xor_b32 v9, {sTag8}, v11\nv_and_b32 v9, 0xff, v9\nv_or_b32 v14, v14, v9")
            a("v_cmp_ne_u32 vcc, 0, v14\ns_cbranch_vccnz L_mlspin")
            a.label("L_mlok")
            a(f"v_and_b32 v10, {sHI}, v10\nv_and_or_b32 v11, v11, {vMask}, {s80}\nv_mov_b32 v9, v10")
            red64("v_max_f32", "v9", "v8")
            a(f"v_sub_f32 v10, v10, v9\nv_mul_f32 v10, {sL2E}, v10\nv_exp_f32 v10, v10\nv_mul_f32 v11, v11, v10")
            red64("v_add_f32", "v11", "v8")
            a(f"v_rcp_f32 v11, v11\nv_mov_b32 v10, v9\ns_lshl_b32 {sT0}, s3, 3\nv_mov_b32 v8, {sT0}")
            a(f"ds_write_b64 v8, v[10:11] offset:{L_MLG}")
            barrier()
            a(f"v_and_b32 v8, 7, {vLane}\nv_lshlrev_b32 v8, 3, v8\nds_read_b64 v[10:11], v8 offset:{L_MLG}\ns_waitcnt lgkmcnt(0)")
            a(f"v_sub_f32 v10, {vMw}, v10\nv_mul_f32 v10, {sL2E}, v10\nv_exp_f32 v10, v10\nv_mul_f32 v10, v10, v11")
            a(f"v_bfe_u32 v9, {vLane}, 3, 1\nv_cmp_eq_u32 vcc, 1, v9\nv_mov_b32 v9, 0xffff\nv_mov_b32 v8, {sHI}\nv_cndmask_b32 v9, v9, v8, vcc")
            for j in range(16): a(f"v_mul_f32 v{S0+j}, v{S0+j}, v10")
            for j in range(16): a(f"v_cvt_pk_bf16_f32 v{S0+j}, v{S0+j}, v{S0+j}")
            for j in range(16): a(f"v_and_b32 v{S0+j}, v{S0+j}, v9")
            fready = True
            stamp("fready")
        while fready and pvdone < 4 and (8 * pvdone + 7) in vidx and a.done > vidx[8 * pvdone + 7]:
            pv(pvdone); pvdone += 1
    vRW = "v9"
    vOW, vH1, vPub = "v10", "v11", "v12"
    a(f"v_and_b32 v8, 3, {vLane}\nv_lshlrev_b32 v8, 4, v8\nv_bfe_u32 v14, {vLane}, 4, 1\nv_lshl_add_u32 v8, v14, 3, v8\nv_lshrrev_b32 v14, 5, {vLane}\nv_lshl_add_u32 v8, v14, 2, v8")
    a(f"s_lshl_b32 {sT0}, s3, 6\nv_add_u32 {vRW}, {sT0}, v8")
    a(f"v_and_b32 v8, 15, {vLane}\nv_lshlrev_b32 v8, 5, v8\nv_lshrrev_b32 v14, 5, {vLane}\nv_lshl_add_u32 v8, v14, 4, v8\nv_bfe_u32 v14, {vLane}, 4, 1\nv_lshl_add_u32 v8, v14, 9, v8")
    a(f"s_lshl_b32 {sT0}, s3, 12\nv_add_u32 {vOW}, {sT0}, v8")
    a(f"v_lshrrev_b32 v8, 5, {vLane}\nv_lshlrev_b32 v8, 17, v8\nv_bfe_u32 v14, {vLane}, 2, 3\nv_lshl_add_u32 v8, v14, 12, v8\nv_and_b32 v14, 3, {vLane}\nv_lshl_add_u32 {vH1}, v14, 4, v8")
    a(f"s_lshl_b32 s71, {sG}, 6\ns_lshl_b32 {sT0}, s3, 3\ns_add_u32 s71, s71, {sT0}\ns_lshl_b32 s71, s71, 12\ns_lshl_b32 {sT0}, {sS}, 6\ns_add_u32 s71, s71, {sT0}\ns_add_u32 s71, s71, {WS_H1}")
    a(f"v_and_b32 v8, 15, {vLane}\nv_lshlrev_b32 v8, 1, v8\ns_lshl_b32 {sT0}, {sS}, 5")
    ixr = a.vm(f"buffer_load_ushort {vXr}, v8, {sX}, {sT0} offen")
    while pvdone < 4:
        a.wait_vm(vidx[8 * pvdone + 7]); pv(pvdone); pvdone += 1
    stamp("vdone")
    for r in range(4):
        for t in range(4):
            a(f"v_permlane32_swap_b32 v{ACC+4*t+r}, v{ACC+4*(t+4)+r}")
        for t in range(4):
            a(f"v_add_f32 v{PT+4*r+t}, v{ACC+4*t+r}, v{ACC+4*(t+4)+r}")
        a(f"ds_write_b128 {vOW}, {r4(PT+4*r)} offset:{L_O + 1024*r}")
    barrier()
    TW = slot(0) if not wt else slot(32)
    a("s_cmp_ge_u32 s3, 4\ns_cbranch_scc1 L_noh1")
    a(f"s_lshl_b32 {sT0}, s3, 10\nv_add_u32 v8, {sT0}, {vLin}")
    for i in range(8): a(f"ds_read_b128 {r4(ACC+4*i)}, v8 offset:{L_O + 4096*i}")
    for i in range(1, 8):
        a(f"s_waitcnt lgkmcnt({7-i})")
        for q in range(4): a(f"v_add_f32 v{ACC+q}, v{ACC+q}, v{ACC+4*i+q}")
    for q in range(4): a(f"v_and_or_b32 v{ACC+q}, v{ACC+q}, {vMask}, {sTag8}")
    a(f"buffer_store_dwordx4 {r4(ACC)}, {vH1}, {sWS}, s71 offen sc1")
    a.label("L_noh1")
    stamp("h1pub")
    a.wait_vm(widx[3])
    wtrans(slot(wslot), TW)
    a(f"v_and_b32 v8, 1, {vLane}\nv_lshlrev_b32 v8, 5, v8\nv_bfe_u32 v14, {vLane}, 4, 1\nv_lshl_add_u32 v8, v14, 4, v8\nv_bfe_u32 v14, {vLane}, 1, 3")
    a(f"v_lshl_add_u32 {vPub}, v14, 14, v8\nv_lshl_add_u32 v13, v14, 12, v8")
    a(f"v_and_b32 v8, 3, {vLane}\nv_lshlrev_b32 v8, 6, v8\nv_lshrrev_b32 v14, 4, {vLane}\nv_lshl_add_u32 {vOW}, v14, 4, v8")
    G0 = S0
    def g64(base_s, lbase, delay, tagl):
        a(f"s_cmp_ge_u32 s3, 4\ns_cbranch_scc1 {tagl}")
        a(f"s_lshl_b32 {sT0}, s3, 10\ns_add_u32 {sT0}, {sT0}, {base_s}")
        poll([f"buffer_load_dwordx4 {r4(G0)}, {vLin}, {sWS}, {sT0} offen sc1"], list(range(G0, G0+4)), sTag8, "0xff", delay)
        strip(range(G0, G0+4))
        quad16_reduce(G0, lbase)
        a.label(tagl)
        barrier()
        a(f"ds_read_b128 {r4(G0)}, {vOW} offset:{lbase}\ns_waitcnt lgkmcnt(0)")
        for q in range(4): a(f"v_add_f32_dpp v{G0+q}, v{G0+q}, v{G0+q} quad_perm:[1,0,3,2] row_mask:0xf bank_mask:0xf")
        for q in range(4): a(f"v_add_f32_dpp v{G0+q}, v{G0+q}, v{G0+q} quad_perm:[2,3,0,1] row_mask:0xf bank_mask:0xf")
    def pub(vo, sbase):
        a("s_mov_b32 exec_hi, 0")
        a(f"buffer_store_dwordx4 {r4(24)}, {vo}, {sWS}, {sbase} offen sc1")
        a("s_mov_b64 exec, -1")
    def g256(base, lbase, delay, nw, tagl):
        a(f"s_lshl_b32 {sT0}, {sS}, 14\ns_lshl_b32 {sT1}, s3, 11\ns_add_u32 {sT0}, {sT0}, {sT1}\ns_add_u32 {sT0}, {sT0}, {base}")
        if nw < 8:
            a(f"v_mov_b32 v{G0}, 0\ns_cmp_ge_u32 s3, {nw}\ns_cbranch_scc1 {tagl}z")
        poll([f"buffer_load_dwordx4 {r4(G0)}, {vLin}, {sWS}, {sT0} offen sc1", f"buffer_load_dwordx4 {r4(G0+4)}, {vLin}, {sWS}, {sT0} offen offset:1024 sc1"],
             list(range(G0, G0+8)), sTag8, "0xff", delay)
        strip(range(G0, G0+8))
        for q in range(4): a(f"v_add_f32 v{G0+q}, v{G0+q}, v{G0+4+q}")
        if nw < 8:
            quad16_reduce(G0, lbase)
            a(f"s_branch {tagl}y")
            a.label(f"{tagl}z")
            a(f"ds_write_b32 {vRW}, v{G0} offset:{lbase}")
            a.label(f"{tagl}y")
        else:
            quad16_reduce(G0, lbase)
        barrier()
        a(f"s_cmp_lg_u32 s3, 0\ns_cbranch_scc1 {tagl}")
        a(f"v_lshlrev_b32 v8, 2, {vLane}\nds_read2_b32 v[16:17], v8 offset0:{lbase//4} offset1:{lbase//4 + 64}") if lbase // 4 + 64 < 256 else \
            a(f"v_lshlrev_b32 v8, 2, {vLane}\nds_read_b32 v16, v8 offset:{lbase}\nds_read_b32 v17, v8 offset:{lbase+256}")
        a("s_waitcnt lgkmcnt(0)\nv_add_f32 v16, v16, v17")
        a("v_mov_b32 v17, v16\nv_permlane32_swap_b32 v17, v16\nv_add_f32 v16, v16, v17")
        a("v_mov_b32 v17, v16\nv_permlane16_swap_b32 v17, v16\nv_add_f32 v16, v16, v17")
    a(f"s_lshl_b32 s72, s2, 12\ns_add_u32 s72, s72, {WS_H1}")
    g64("s72", L_R1, o["d1"], "L_g1")
    stamp("h1got")
    a(f"v_cvt_pk_bf16_f32 v20, v{G0}, v{G0+1}\nv_cvt_pk_bf16_f32 v21, v{G0+2}, v{G0+3}")
    gemv(20, TW, ACC, 24)
    a(f"s_lshl_b32 s73, s3, 17\ns_lshl_b32 {sT0}, s2, 6\ns_add_u32 s73, s73, {sT0}\ns_add_u32 {sT0}, s73, {WS_H2}")
    pub(vPub, sT0)
    stamp("h2pub")
    a.wait_vm(widx[7])
    wtrans(slot(wslot+4), TW+16)
    a(f"s_cmp_lg_u32 {sG}, 0\ns_cbranch_scc1 L_nored2")
    g256(WS_H2, L_R2, o["d2"], 8, "L_g2")
    bf16r("v16", "v16")
    a.wait_vm(ixr)
    a(f"v_lshlrev_b32 {vXr}, 16, {vXr}\nv_add_f32 v16, v16, {vXr}")
    bf16r(vH, "v16")
    a(f"v_or_b32 v16, {sTag16}, {vH}")
    a(f"v_and_b32 v8, 15, {vLane}\nv_lshlrev_b32 v8, 2, v8\nv_lshrrev_b32 v14, 4, {vLane}\nv_lshl_add_u32 v8, v14, 12, v8")
    a(f"s_lshl_b32 {sT0}, {sS}, 6\ns_add_u32 {sT0}, {sT0}, {WS_H3}")
    a(f"buffer_store_dword v16, v8, {sWS}, {sT0} offen sc1")
    if o["rep"] == 8:
        a(f"s_add_u32 {sT0}, {sT0}, 0x4000\nbuffer_store_dword v16, v8, {sWS}, {sT0} offen sc1")
    a.label("L_g2")
    stamp("h3pub")
    a("s_branch L_red2d")
    a.label("L_nored2")
    if o["stamps"]:
        a(f"v_writelane_b32 {vStamp}, 0, {nst[0]-1}")
    if o["d3n"]: a(f"s_sleep {o['d3n']}")
    a.label("L_red2d")
    a(f"s_and_b32 {sT0}, s2, {o['rep']-1}\ns_lshl_b32 {sT0}, {sT0}, 12\ns_lshl_b32 {sT1}, s3, 9\ns_add_u32 {sT0}, {sT0}, {sT1}\ns_add_u32 {sT0}, {sT0}, {WS_H3}")
    a(f"v_lshlrev_b32 v8, 3, {vLane}")
    poll([f"buffer_load_dwordx2 {r2(G0)}, v8, {sWS}, {sT0} offen sc1"], [G0, G0+1], sTag16, "0xffff", o["d3"])
    a(f"v_and_b32 v{G0}, {sHI}, v{G0}\nv_and_b32 v{G0+1}, {sHI}, v{G0+1}\nv_add_u32 v8, {sT1}, v8")
    a(f"ds_write_b64 v8, {r2(G0)} offset:{L_HB}")
    barrier()
    stamp("h3got")
    a("s_cmp_eq_u32 s3, 7\ns_cbranch_scc1 L_noc")
    for q in range(4): a(f"ds_read_b128 {r4(ACC+4*q)}, {vLin} offset:{L_HB + 1024*q}")
    a(f"v_lshrrev_b32 v8, 4, {vLane}\nv_lshlrev_b32 v8, 4, v8\ns_lshl_b32 {sT0}, s68, 6\nv_add_u32 v8, {sT0}, v8")
    a(f"ds_read_b128 {r4(G0)}, v8 offset:{L_HB}\ns_waitcnt lgkmcnt(0)")
    ln_stats(ACC, "v22", "v23", "v8", "v14")
    ln_apply(G0, 20, "v22", "v23")
    gemv(20, TW+16, ACC, 24)
    a(f"s_lshl_b32 {sT0}, s69, 15\ns_lshl_b32 {sT1}, s68, 6\ns_add_u32 {sT0}, {sT0}, {sT1}\ns_add_u32 {sT0}, {sT0}, {WS_H4}")
    pub("v13", sT0)
    a("s_branch L_cd")
    a.label("L_noc")
    a(f"s_cmp_lg_u32 s2, 0\ns_cbranch_scc1 L_cd")
    a(f"v_mov_b32 v8, 0\nv_mov_b32 v14, {sEp}\ns_mov_b64 exec, 1")
    a(f"buffer_store_dword v14, v8, {sWS}, 0 offen offset:{WS_EPOCH} sc1")
    a("s_mov_b64 exec, -1")
    a.label("L_cd")
    stamp("h4pub")
    a("s_cmp_ge_u32 s2, 224\ns_cbranch_scc1 L_nod")
    a.wait_vm(widx[11])
    wtrans(slot(wslot+8), TW+32)
    a(f"s_lshl_b32 s72, s2, 12\ns_add_u32 s72, s72, {WS_H4}")
    g64("s72", L_R4, o["d4"], "L_g4")
    stamp("h4got")
    a(f"v_cvt_pk_bf16_f32 v20, v{G0}, v{G0+1}\nv_cvt_pk_bf16_f32 v21, v{G0+2}, v{G0+3}")
    a(f"v_lshlrev_b32 v{G0}, 16, v20\nv_and_b32 v{G0+1}, {sHI}, v20\nv_lshlrev_b32 v{G0+2}, 16, v21\nv_and_b32 v{G0+3}, {sHI}, v21")
    for q in range(4): a(f"v_mul_f32 v{24+q}, {sL2E}, v{G0+q}")
    for q in range(4): a(f"v_exp_f32 v{24+q}, -v{24+q}")
    for q in range(4): a(f"v_add_f32 v{24+q}, 1.0, v{24+q}")
    for q in range(4): a(f"v_rcp_f32 v{24+q}, v{24+q}")
    for q in range(4): a(f"v_mul_f32 v{G0+q}, v{G0+q}, v{24+q}")
    a(f"v_cvt_pk_bf16_f32 v20, v{G0}, v{G0+1}\nv_cvt_pk_bf16_f32 v21, v{G0+2}, v{G0+3}")
    gemv(20, TW+32, ACC, 24)
    a(f"s_add_u32 {sT0}, s73, {WS_H5}")
    pub(vPub, sT0)
    a.label("L_nod")
    stamp("h5pub")
    a(f"s_cmp_lg_u32 {sG}, 0\ns_cbranch_scc1 L_fin")
    g256(WS_H5, L_R5, o["d5"], 7, "L_fin")
    bf16r("v16", "v16")
    a(f"v_add_f32 v16, v16, {vH}\nv_cvt_pk_bf16_f32 v16, v16, v16")
    a(f"v_lshlrev_b32 v8, 1, {vLane}\ns_lshl_b32 {sT0}, {sS}, 5\ns_mov_b64 exec, 0xffff")
    a(f"buffer_store_short v16, v8, {sOUT}, {sT0} offen")
    a("s_mov_b64 exec, -1")
    a.label("L_fin")
    if o["stamps"]:
        stamp("end")
        a(f"s_lshl_b32 {sT0}, s2, 3\ns_add_u32 {sT0}, {sT0}, s3\ns_lshl_b32 {sT0}, {sT0}, 7\ns_add_u32 {sT0}, {sT0}, {WS_DBG}")
        a(f"v_lshlrev_b32 v8, 2, {vLane}\ns_mov_b32 exec_hi, 0")
        a(f"buffer_store_dword {vStamp}, v8, {sWS}, {sT0} offen")
    a.label("L_end")
    a("s_endpgm")
    a.raw(f'''.section .rodata,"a"
.p2align 6
.amdhsa_kernel {KN}
  .amdhsa_next_free_vgpr 256
  .amdhsa_next_free_sgpr 102
  .amdhsa_accum_offset 256
  .amdhsa_group_segment_fixed_size 0
  .amdhsa_kernarg_size 88
  .amdhsa_user_sgpr_count 2
  .amdhsa_user_sgpr_kernarg_segment_ptr 1
  .amdhsa_system_sgpr_workgroup_id_x 1
.end_amdhsa_kernel''')
    return a.text()

if __name__ == "__main__":
    kw = {}
    out = sys.argv[1]
    for x in sys.argv[2:]:
        k, v = x.split("="); kw[k] = int(v)
    open(out, "w").write(gen(**kw))
```

```python
import struct, sys
sys.path.insert(0, "work")
from asmlib import Asm
KN = "sequential_preLN__gqa_block_cached__dense_activation_silu__decode_kernel"
def f32(x): return "0x%08x" % struct.unpack("<I", struct.pack("<f", x))[0]

WS_EPOCH = 0
WS_QP = 0x10000
WS_ML = 0x40000
WS_H3 = 0x50000
WS_DBG = 0x80000
WS_H1 = 0x100000
WS_H2 = 0x200000
WS_H4 = 0x300000
WS_H5 = 0x400000
WS_DUMP = 0x800000
L_QRED, L_QF, L_ML, L_MLG = 0, 4096, 6144, 6656
L_R1, L_R2, L_R4, L_R5, L_HB, L_O = 6912, 7168, 7680, 7936, 8704, 16384
LDS_BYTES = 49152

DEF = dict(qbar=1, depth=6, flag_pos=16, qload_pos=22, qproc_pos=29, ml_pos=16, wtail=0, stamps=0, d1=12, d2=12, d3=8, d3n=40, d4=12, d5=12, back=2, rep=8, dump=0)

def gen(**kw):
    o = dict(DEF); o.update(kw)
    D = o["depth"]
    a = Asm()
    a.raw(open("sequential_preLN__gqa_block_cached__dense_activation_silu__decode.s.ref").read().split("; Override")[0].rstrip())
    a.raw(f"; @launch grid=(256,1,1) block=(512,1,1) lds={LDS_BYTES}")
    a.raw('.amdgcn_target "amdgcn-amd-amdhsa--gfx950"\n.text')
    a.raw(f".globl {KN}\n.p2align 8\n.type {KN},@function\n{KN}:")
    sK, sV, sWS, sX, sWQ, sWO, sW1, sW2, sOUT, sDBG = [f"s[{b}:{b+3}]" for b in (8, 12, 16, 20, 24, 28, 32, 36, 40, 44)]
    sG, sS, sT0, sT1 = "s4", "s5", "s6", "s7"
    sKo, sVo = "s49", "s50"
    sTag8, sTag16, sEp = "s51", "s52", "s53"
    sPL, sPH, sHI, sSC, sL2E, s80 = "s54", "s55", "s56", "s57", "s58", "s59"
    sM4 = "s[60:61]"
    sCnt = "s62"; sT2 = "s63"; sTag2 = "s48"
    vLane, vKoff, vLin, vMask = "v1", "v2", "v3", "v4"
    vMw, vXr, vH = "v5", "v6", "v7"
    vt = [f"v{i}" for i in range(8, 15)]
    vStamp = "v15"
    S0 = 16
    ACC = 32
    SLOT = 64
    PT = 240
    def slot(i): return SLOT + 4 * i
    def r4(b): return f"v[{b}:{b+3}]"
    def r2(b): return f"v[{b}:{b+1}]"
    nst = [0]
    def stamp(name):
        if not o["stamps"]: return
        a("s_memrealtime s[98:99]\ns_waitcnt lgkmcnt(0)")
        a(f"v_writelane_b32 {vStamp}, s98, {nst[0]}")
        nst[0] += 1
    def bf16r(d, s):
        a(f"v_cvt_pk_bf16_f32 {d}, {s}, {s}\nv_lshlrev_b32 {d}, 16, {d}")
    def red64(op, v, t):
        a(f"v_mov_b32 {t}, {v}\nv_permlane32_swap_b32 {t}, {v}\n{op} {v}, {v}, {t}")
        a(f"v_mov_b32 {t}, {v}\nv_permlane16_swap_b32 {t}, {v}\n{op} {v}, {v}, {t}")
        for k in (8, 4, 2, 1):
            a(f"{op}_dpp {v}, {v}, {v} row_ror:{k} row_mask:0xf bank_mask:0xf")
    def red_rows(op, v, t):
        a(f"v_mov_b32 {t}, {v}\nv_permlane32_swap_b32 {t}, {v}\n{op} {v}, {v}, {t}")
        a(f"v_mov_b32 {t}, {v}\nv_permlane16_swap_b32 {t}, {v}\n{op} {v}, {v}, {t}")
        a(f"{op}_dpp {v}, {v}, {v} row_ror:8 row_mask:0xf bank_mask:0xf")
    def ln_stats(b, vm, vr, t0, t1):
        a(f"v_add_f32 {t0}, v{b}, v{b+1}")
        for i in range(2, 16): a(f"v_add_f32 {t0}, {t0}, v{b+i}")
        red64("v_add_f32", t0, t1)
        a(f"v_mul_f32 {t0}, {f32(1/1024)}, {t0}")
        for i in range(16): a(f"v_sub_f32 v{b+i}, v{b+i}, {t0}")
        a(f"v_mul_f32 {vr}, v{b}, v{b}")
        for i in range(1, 16): a(f"v_fmac_f32 {vr}, v{b+i}, v{b+i}")
        red64("v_add_f32", vr, t1)
        bf16r(vm, t0)
        a(f"v_mul_f32 {vr}, {f32(1/1024)}, {vr}")
        bf16r(vr, vr)
        a(f"v_add_f32 {vr}, {f32(1e-5)}, {vr}")
        bf16r(vr, vr)
        a(f"v_sqrt_f32 {vr}, {vr}")
        bf16r(vr, vr)
        a(f"v_rcp_f32 {vr}, {vr}")
    def ln_apply(h, A, vm, vr):
        for i in range(4): a(f"v_sub_f32 v{h+i}, v{h+i}, {vm}")
        a(f"v_cvt_pk_bf16_f32 v{A}, v{h}, v{h+1}\nv_cvt_pk_bf16_f32 v{A+1}, v{h+2}, v{h+3}")
        a(f"v_lshlrev_b32 v{h}, 16, v{A}\nv_and_b32 v{h+1}, {sHI}, v{A}\nv_lshlrev_b32 v{h+2}, 16, v{A+1}\nv_and_b32 v{h+3}, {sHI}, v{A+1}")
        for i in range(4): a(f"v_mul_f32 v{h+i}, v{h+i}, {vr}")
        a(f"v_cvt_pk_bf16_f32 v{A}, v{h}, v{h+1}\nv_cvt_pk_bf16_f32 v{A+1}, v{h+2}, v{h+3}")
    def wtrans(src, dst):
        for t in range(8):
            for j in range(2):
                a(f"v_perm_b32 v{dst+2*t+j}, v{src+4*(2*j+1)+(t>>1)}, v{src+4*(2*j)+(t>>1)}, {sPH if t & 1 else sPL}")
    def gemv(A, T, Dr, Y, tag=True):
        for t in range(8):
            a(f"v_mfma_f32_16x16x16_bf16 {r4(Dr+4*t)}, {r2(A)}, {r2(T+2*t)}, 0")
        for q in range(4):
            a(f"v_cndmask_b32 v{Y+q}, v{Dr+4*q}, v{Dr+4*(q+4)}, {sM4}")
        if tag:
            for q in range(4): a(f"v_and_or_b32 v{Y+q}, v{Y+q}, {vMask}, {sTag8}")
    lab = [0]
    def poll(loads, regs, tagreg, maskc, delay=0, counted=False):
        n = lab[0]; lab[0] += 1
        if delay: a(f"s_sleep {delay}")
        a(f"s_mov_b32 {sCnt}, 0")
        a.label(f"L_poll{n}")
        for l in loads: a(l)
        a("s_waitcnt vmcnt(0)")
        check(regs, tagreg, maskc)
        a(f"s_cbranch_vccz L_polld{n}")
        a(f"s_add_u32 {sCnt}, {sCnt}, 1\ns_cmp_gt_u32 {sCnt}, 0x80000\ns_cbranch_scc1 L_end")
        if o["back"]: a(f"s_sleep {o['back']}")
        a(f"s_branch L_poll{n}")
        a.label(f"L_polld{n}")
    def check(regs, tagreg, maskc):
        c = vt[6]
        a(f"v_xor_b32 {c}, {tagreg}, v{regs[0]}")
        for r in regs[1:]: a(f"v_bitop3_b32 {c}, v{r}, {tagreg}, {c} bitop3:0xbe")
        a(f"v_and_b32 {c}, {maskc}, {c}\nv_cmp_ne_u32 vcc, 0, {c}")
    def strip(regs):
        for r in regs: a(f"v_and_or_b32 v{r}, v{r}, {vMask}, {s80}")
    def quad16_reduce(b, lbase):
        a(f"v_permlane32_swap_b32 v{b}, v{b+1}\nv_permlane32_swap_b32 v{b+2}, v{b+3}")
        a(f"v_add_f32 v{b}, v{b}, v{b+1}\nv_add_f32 v{b+2}, v{b+2}, v{b+3}")
        a(f"v_permlane16_swap_b32 v{b}, v{b+2}")
        a(f"v_add_f32 v{b}, v{b}, v{b+2}")
        a(f"v_add_f32_dpp v{b}, v{b}, v{b} row_ror:4 row_mask:0xf bank_mask:0xf")
        a(f"v_add_f32_dpp v{b}, v{b}, v{b} row_ror:8 row_mask:0xf bank_mask:0xf")
        a(f"ds_write_b32 {vRW}, v{b} offset:{lbase}")
    def barrier():
        a("s_waitcnt lgkmcnt(0)\ns_barrier")

    a("s_cmp_ge_u32 s2, 0x100\ns_cbranch_scc1 L_end")
    a("s_load_dwordx16 s[64:79], s[0:1], 0\ns_load_dwordx4 s[80:83], s[0:1], 64\ns_load_dwordx2 s[84:85], s[0:1], 80")
    if o["stamps"]: a(f"v_mov_b32 {vStamp}, 0")
    stamp("start")
    a(f"v_and_b32 {vLane}, 63, v0\nv_lshrrev_b32 v8, 6, v0")
    a("v_readfirstlane_b32 s3, v8")
    a(f"v_lshlrev_b32 {vLin}, 4, {vLane}")
    a(f"v_bfe_u32 v8, {vLane}, 1, 1\nv_lshlrev_b32 v8, 10, v8\nv_bfe_u32 v9, {vLane}, 2, 2\nv_lshl_add_u32 v8, v9, 8, v8")
    a(f"v_lshrrev_b32 v9, 4, {vLane}\nv_lshl_add_u32 v8, v9, 5, v8\nv_and_b32 v9, 1, {vLane}\nv_lshl_add_u32 {vKoff}, v9, 4, v8")
    a(f"v_mov_b32 {vMask}, 0xffffff00")
    a(f"s_and_b32 {sG}, s2, 3\ns_lshr_b32 {sS}, s2, 2")
    a(f"s_mov_b32 {sPL}, 0x05040100\ns_mov_b32 {sPH}, 0x07060302\ns_mov_b32 {sHI}, 0xffff0000")
    a(f"s_mov_b32 {sSC}, {f32(128 ** -0.5)}\ns_mov_b32 {sL2E}, {f32(1.4426950408889634)}\ns_mov_b32 {s80}, 0x80")
    a(f"s_mov_b32 s60, 0xffff0000\ns_mov_b32 s61, 0xffff0000")
    a(f"s_lshl_b32 {sT0}, {sS}, 3\ns_add_u32 {sT0}, {sT0}, s3\ns_lshl_b32 {sT0}, {sT0}, 12\ns_lshl_b32 {sT1}, {sG}, 24\ns_add_u32 {sKo}, {sT0}, {sT1}\ns_mov_b32 {sVo}, {sKo}")
    a(f"v_lshrrev_b32 v9, 4, {vLane}\nv_and_b32 v8, 15, {vLane}\nv_lshlrev_b32 v8, 4, v8\nv_lshl_add_u32 v10, v9, 15, v8")
    a(f"v_lshlrev_b32 v11, 3, v9\nv_lshlrev_b32 v12, 5, {vLane}")
    a("s_waitcnt lgkmcnt(0)")
    def srd(base, p, size):
        a(f"s_mov_b32 s{base}, s{p}\ns_and_b32 s{base+1}, s{p+1}, 0xffff\ns_mov_b32 s{base+2}, {size}\ns_mov_b32 s{base+3}, 0x20000")
    srd(20, 64, 2048); srd(24, 70, 8 << 20); srd(8, 66, 64 << 20)
    XR = PT
    ix0 = a.vm(f"buffer_load_dwordx4 {r4(XR)}, v12, {sX}, 0 offen")
    ix1 = a.vm(f"buffer_load_dwordx4 {r4(XR+4)}, v12, {sX}, 0 offen offset:16")
    a(f"s_lshr_b32 {sT0}, s2, 5\ns_lshl_b32 {sT0}, {sT0}, 3\ns_add_u32 {sT0}, {sT0}, s3")
    a(f"s_lshl_b32 {sT1}, {sT0}, 5")
    ix2 = a.vm(f"buffer_load_dwordx2 {r2(XR+8)}, v11, {sX}, {sT1} offen")
    a(f"s_lshl_b32 {sT0}, {sT0}, 17\ns_and_b32 {sT1}, s2, 31\ns_lshl_b32 {sT1}, {sT1}, 8\ns_add_u32 {sT0}, {sT0}, {sT1}")
    for i in range(4):
        iwq = a.vm(f"buffer_load_dwordx4 {r4(slot(32+i))}, v10, {sWQ}, {sT0} offen nt")
        if i < 3: a(f"s_add_u32 {sT0}, {sT0}, 8192")
    kidx = {}
    def kload(k):
        kidx[k] = a.vm(f"buffer_load_dwordx4 {r4(slot(k))}, {vKoff}, {sK}, {sKo} offen offset:{(k%2)*128 + ((k%4)//2)*2048} nt")
        if k % 4 == 3: a(f"s_add_u32 {sKo}, {sKo}, 0x200000")
    K0 = o.get("k0", D)
    if o["qbar"]: a("s_barrier")
    for k in range(K0): kload(k)
    srd(12, 68, 64 << 20); srd(16, 84, 256 << 20); srd(28, 72, 8 << 20); srd(32, 76, 7 << 20); srd(36, 78, 7 << 20); srd(40, 80, 2048); srd(44, 82, 256)
    a(f"s_load_dword {sEp}, s[84:85], {WS_EPOCH}")
    a.wait_vm(ix1)
    XF = ACC
    for i in range(8):
        a(f"v_lshlrev_b32 v{XF+2*i}, 16, v{XR+i}\nv_and_b32 v{XF+2*i+1}, {sHI}, v{XR+i}")
    ln_stats(XF, vt[0], vt[1], vt[2], vt[3])
    a.wait_vm(ix2)
    a(f"v_lshlrev_b32 v48, 16, v{XR+8}\nv_and_b32 v49, {sHI}, v{XR+8}\nv_lshlrev_b32 v50, 16, v{XR+9}\nv_and_b32 v51, {sHI}, v{XR+9}")
    ln_apply(48, 52, vt[0], vt[1])
    a(f"v_mov_b32 v16, v52\nv_mov_b32 v17, v53")
    a.wait_vm(iwq)
    stamp("wq")
    wtrans(slot(32), PT)
    gemv(16, PT, ACC, 20, tag=False)
    a(f"v_and_b32 v8, 15, {vLane}\nv_lshlrev_b32 v8, 5, v8\nv_bfe_u32 v9, {vLane}, 4, 1\nv_lshl_add_u32 v8, v9, 4, v8")
    a(f"s_lshl_b32 {sT0}, s3, 9\nv_add_u32 v8, {sT0}, v8")
    a(f"ds_write_b128 v8, {r4(20)} offset:{L_QRED}")
    a(f"s_waitcnt lgkmcnt(0)\ns_add_u32 {sEp}, {sEp}, 1\ns_and_b32 {sTag8}, {sEp}, 0xff\ns_and_b32 {sTag16}, {sEp}, 0xffff\ns_and_b32 {sTag2}, {sEp}, 3")
    a("s_barrier")
    a("s_cmp_lg_u32 s3, 0\ns_cbranch_scc1 L_noq")
    a(f"v_and_b32 v8, 0x1f0, {vLin}")
    for i in range(8): a(f"ds_read_b128 {r4(ACC+4*i)}, v8 offset:{L_QRED + 512*i}")
    a("s_waitcnt lgkmcnt(0)")
    for i in range(1, 8):
        for q in range(4): a(f"v_add_f32 v{ACC+q}, v{ACC+q}, v{ACC+4*i+q}")
    a(f"s_and_b32 {sT0}, s2, 31\ns_lshl_b32 {sT0}, {sT0}, 12\ns_lshr_b32 {sT1}, s2, 5\ns_lshl_b32 {sT1}, {sT1}, 9\ns_add_u32 {sT0}, {sT0}, {sT1}\ns_add_u32 {sT0}, {sT0}, {WS_QP}")
    a("s_mov_b32 exec_hi, 0")
    for q in range(4): a(f"v_and_b32 v{ACC+q}, -4, v{ACC+q}\nv_or_b32 v{ACC+q}, {sTag2}, v{ACC+q}")
    a(f"buffer_store_dwordx4 {r4(ACC)}, v8, {sWS}, {sT0} offen sc1")
    a("s_mov_b64 exec, -1")
    a.label("L_noq")
    stamp("qpub")
    QL = S0
    for k in range(K0, 32):
        a.pace(D); kload(k)
        if k == o["qload_pos"]:
            a(f"s_lshl_b32 {sT0}, {sG}, 3\ns_add_u32 {sT0}, {sT0}, s3\ns_lshl_b32 {sT2}, {sT0}, 12\ns_add_u32 {sT2}, {sT2}, {WS_QP}")
            for i in range(4):
                a.pace(D); iq = a.vm(f"buffer_load_dwordx4 {r4(QL+4*i)}, {vLin}, {sWS}, {sT2} offen offset:{1024*i} sc1")
        if k == o["qproc_pos"]:
            a.wait_vm(iq)
            check(list(range(QL, QL+16)), sTag2, "3")
            a("s_cbranch_vccz L_qok")
            poll([f"buffer_load_dwordx4 {r4(QL+4*i)}, {vLin}, {sWS}, {sT2} offen offset:{1024*i} sc1" for i in range(4)], list(range(QL, QL+16)), sTag2, "3", 8)
            a.label("L_qok")
            for q in range(16): a(f"v_and_b32 v{QL+q}, -4, v{QL+q}")
            for q in range(4):
                a(f"v_add_f32 v{QL+q}, v{QL+q}, v{QL+4+q}\nv_add_f32 v{QL+8+q}, v{QL+8+q}, v{QL+12+q}")
            for q in range(4): a(f"v_add_f32 v{QL+q}, v{QL+q}, v{QL+8+q}")
            for q in range(4): a(f"v_mov_b32 v{QL+4+q}, v{QL+q}")
            for q in range(4): a(f"v_permlane32_swap_b32 v{QL+4+q}, v{QL+q}")
            for q in range(4): a(f"v_add_f32 v{QL+q}, v{QL+q}, v{QL+4+q}")
            a(f"v_cvt_pk_bf16_f32 v{QL+8}, v{QL}, v{QL+1}\nv_cvt_pk_bf16_f32 v{QL+9}, v{QL+2}, v{QL+3}")
            a(f"v_and_b32 v8, 31, {vLane}\nv_lshlrev_b32 v8, 3, v8\ns_lshl_b32 {sT0}, s3, 8\nv_add_u32 v8, {sT0}, v8")
            a(f"ds_write_b64 v8, {r2(QL+8)} offset:{L_QF}")
            barrier()
            a(f"v_and_b32 v8, 7, {vLane}\nv_lshlrev_b32 v8, 8, v8\nv_lshrrev_b32 v9, 4, {vLane}\nv_lshl_add_u32 v8, v9, 5, v8\nv_bfe_u32 v9, {vLane}, 3, 1\nv_lshl_add_u32 v8, v9, 4, v8")
            a(f"ds_read_b128 {r4(PT)}, v8 offset:{L_QF}\nds_read_b128 {r4(PT+4)}, v8 offset:{L_QF+128}")
            stamp("qready")
    wt = o["wtail"]
    wslot = 20 if wt else 32
    def vslot(i): return (32 + i if i < 12 else i - 12) if wt else i
    widx = {}
    def wsetup():
        a(f"v_lshrrev_b32 v9, 4, {vLane}\nv_and_b32 v8, 15, {vLane}\nv_lshlrev_b32 v8, 4, v8\nv_lshl_add_u32 v12, v9, 13, v8")
        a(f"v_mul_u32_u24 v9, {4*7168}, v9\nv_add_u32 v13, v9, v8")
        a(f"s_lshl_b32 s64, s2, 15\ns_lshl_b32 {sT0}, s3, 8\ns_add_u32 s64, s64, {sT0}\ns_mov_b32 s66, s64")
        a(f"s_mul_i32 s67, s2, 7\ns_add_u32 s67, s67, s3\ns_and_b32 s68, s67, 63\ns_lshr_b32 s69, s67, 6")
        a(f"s_mul_i32 s65, s68, {16*7168}\ns_lshl_b32 {sT0}, s69, 8\ns_add_u32 s65, s65, {sT0}")
        a(f"s_cmp_eq_u32 s3, 7\ns_cselect_b32 s65, 0x7000000, s65")
    def wload(n):
        m, i = n // 4, n % 4
        srd_, vo, sb, st = [(sWO, "v12", "s64", 2048), (sW1, "v13", "s65", 7168), (sW2, "v12", "s66", 2048)][m]
        widx[n] = a.vm(f"buffer_load_dwordx4 {r4(slot(wslot+n))}, {vo}, {srd_}, {sb} offen nt")
        if i < 3: a(f"s_add_u32 {sb}, {sb}, {st}")
    vidx = {}
    def vload(i):
        vidx[i] = a.vm(f"buffer_load_dwordx4 {r4(slot(vslot(i)))}, {vLin}, {sV}, {sVo} offen offset:{(i%4)*1024} nt")
        if i % 4 == 3: a(f"s_add_u32 {sVo}, {sVo}, 0x200000")
    wsetup()
    seq = ([("v", i) for i in range(32)] + [("w", n) for n in range(12)]) if wt else ([("w", n) for n in range(12)] + [("v", i) for i in range(32)])
    def issue(n):
        for _ in range(n):
            kind, i = seq.pop(0)
            a.pace(D)
            (vload if kind == "v" else wload)(i)
    issue(D)
    a.wait_vm(kidx[31])
    stamp("kdone")
    a("s_waitcnt lgkmcnt(0)")
    for half in range(2):
        for jj in range(8):
            j = half * 8 + jj
            a(f"v_mfma_f32_16x16x32_bf16 {r4(ACC+4*jj)}, {r4(slot(2*j))}, {r4(PT)}, 0")
        for jj in range(8):
            j = half * 8 + jj
            a(f"v_mfma_f32_16x16x32_bf16 {r4(ACC+4*jj)}, {r4(slot(2*j+1))}, {r4(PT+4)}, {r4(ACC+4*jj)}")
        for jj in range(8):
            j = half * 8 + jj; d = ACC + 4 * jj
            a(f"v_add_f32_dpp v{S0+j}, v{d+1}, v{d} row_ror:8 row_mask:0xf bank_mask:0x3")
            a(f"v_add_f32_dpp v{S0+j}, v{d+2}, v{d+3} row_ror:8 row_mask:0xf bank_mask:0xc")
    for j in range(0, 16, 2):
        x, y = f"v{S0+j}", f"v{S0+j+1}"
        a(f"v_cvt_pk_bf16_f32 v8, {x}, {y}\nv_lshlrev_b32 {x}, 16, v8\nv_and_b32 {y}, {sHI}, v8")
        a(f"v_mul_f32 {x}, {sSC}, {x}\nv_mul_f32 {y}, {sSC}, {y}")
        a(f"v_cvt_pk_bf16_f32 v8, {x}, {y}\nv_lshlrev_b32 {x}, 16, v8\nv_and_b32 {y}, {sHI}, v8")
    a(f"v_max3_f32 {vMw}, v{S0}, v{S0+1}, v{S0+2}")
    for j in range(3, 15, 2): a(f"v_max3_f32 {vMw}, {vMw}, v{S0+j}, v{S0+j+1}")
    a(f"v_max_f32 {vMw}, {vMw}, v{S0+15}")
    red_rows("v_max_f32", vMw, "v8")
    for j in range(16): a(f"v_sub_f32 v{S0+j}, v{S0+j}, {vMw}")
    for j in range(16): a(f"v_mul_f32 v{S0+j}, {sL2E}, v{S0+j}")
    for j in range(16): a(f"v_exp_f32 v{S0+j}, v{S0+j}")
    a(f"v_add_f32 v11, v{S0}, v{S0+1}")
    for j in range(2, 16): a(f"v_add_f32 v11, v11, v{S0+j}")
    red_rows("v_add_f32", "v11", "v8")
    a(f"v_mov_b32 v10, {vMw}")
    a(f"v_and_b32 v8, 7, {vLane}\nv_lshlrev_b32 v8, 3, v8\ns_lshl_b32 {sT0}, s3, 6\nv_add_u32 v8, {sT0}, v8")
    a(f"ds_write_b64 v8, v[10:11] offset:{L_ML}")
    barrier()
    a("s_cmp_lg_u32 s3, 0\ns_cbranch_scc1 L_noml")
    a(f"v_lshlrev_b32 v8, 3, {vLane}\nds_read_b64 v[10:11], v8 offset:{L_ML}\ns_waitcnt lgkmcnt(0)")
    a("v_mov_b32 v9, v10")
    red_rows("v_max_f32", "v9", "v8")
    a(f"v_sub_f32 v10, v10, v9\nv_mul_f32 v10, {sL2E}, v10\nv_exp_f32 v10, v10\nv_mul_f32 v11, v11, v10")
    red_rows("v_add_f32", "v11", "v8")
    a(f"v_or_b32 v10, {sTag16}, v9\nv_and_or_b32 v11, v11, {vMask}, {sTag8}")
    a(f"v_lshlrev_b32 v8, 9, {vLane}\ns_lshl_b32 {sT0}, {sG}, 12\ns_lshl_b32 {sT1}, {sS}, 3\ns_add_u32 {sT0}, {sT0}, {sT1}\ns_add_u32 {sT0}, {sT0}, {WS_ML}")
    a("s_mov_b64 exec, 0xff")
    a(f"buffer_store_dwordx2 v[10:11], v8, {sWS}, {sT0} offen sc1")
    a("s_mov_b64 exec, -1")
    a.label("L_noml")
    stamp("mlpub")
    def pv(u):
        for dp in range(4):
            tb = PT + 8 * (dp & 1)
            for b in range(2):
                for j in range(4):
                    a(f"v_perm_b32 v{tb+4*b+j}, v{slot(vslot(8*u+2*j+1))+dp}, v{slot(vslot(8*u+2*j))+dp}, {sPH if b else sPL}")
            for b in range(2):
                t = 2 * dp + b
                c = "0" if u == 0 else r4(ACC + 4 * t)
                a(f"v_mfma_f32_16x16x32_bf16 {r4(ACC+4*t)}, {r4(S0+4*u)}, {r4(tb+4*b)}, {c}")
    pvdone = 0; fready = False; iml = None
    while seq:
        issue(1)
        nv = len(vidx)
        if iml is None and nv > o["ml_pos"]:
            a(f"v_lshlrev_b32 v8, 3, {vLane}\ns_lshl_b32 {sT0}, {sG}, 3\ns_add_u32 {sT0}, {sT0}, s3\ns_lshl_b32 s70, {sT0}, 9\ns_add_u32 s70, s70, {WS_ML}")
            a.pace(D); iml = a.vm(f"buffer_load_dwordx2 v[10:11], v8, {sWS}, s70 offen sc1")
        if iml is not None and not fready and (a.done > iml or not seq):
            a.wait_vm(iml)
            a(f"v_xor_b32 v14, {sTag16}, v10\nv_and_b32 v14, 0xffff, v14\nv_xor_b32 v9, {sTag8}, v11\nv_and_b32 v9, 0xff, v9\nv_or_b32 v14, v14, v9")
            a("v_cmp_ne_u32 vcc, 0, v14\ns_cbranch_vccz L_mlok")
            a(f"s_mov_b32 {sCnt}, 0")
            a.label("L_mlspin")
            a(f"buffer_load_dwordx2 v[10:11], v8, {sWS}, s70 offen sc1\ns_waitcnt vmcnt(0)")
            a(f"s_add_u32 {sCnt}, {sCnt}, 1\ns_cmp_gt_u32 {sCnt}, 0x80000\ns_cbranch_scc1 L_end")
            a(f"v_xor_b32 v14, {sTag16}, v10\nv_and_b32 v14, 0xffff, v14\nv_xor_b32 v9, {sTag8}, v11\nv_and_b32 v9, 0xff, v9\nv_or_b32 v14, v14, v9")
            a("v_cmp_ne_u32 vcc, 0, v14\ns_cbranch_vccnz L_mlspin")
            a.label("L_mlok")
            a(f"v_and_b32 v10, {sHI}, v10\nv_and_or_b32 v11, v11, {vMask}, {s80}\nv_mov_b32 v9, v10")
            red64("v_max_f32", "v9", "v8")
            a(f"v_sub_f32 v10, v10, v9\nv_mul_f32 v10, {sL2E}, v10\nv_exp_f32 v10, v10\nv_mul_f32 v11, v11, v10")
            red64("v_add_f32", "v11", "v8")
            a(f"v_rcp_f32 v11, v11\nv_mov_b32 v10, v9\ns_lshl_b32 {sT0}, s3, 3\nv_mov_b32 v8, {sT0}")
            a(f"ds_write_b64 v8, v[10:11] offset:{L_MLG}")
            barrier()
            a(f"v_and_b32 v8, 7, {vLane}\nv_lshlrev_b32 v8, 3, v8\nds_read_b64 v[10:11], v8 offset:{L_MLG}\ns_waitcnt lgkmcnt(0)")
            a(f"v_sub_f32 v10, {vMw}, v10\nv_mul_f32 v10, {sL2E}, v10\nv_exp_f32 v10, v10\nv_mul_f32 v10, v10, v11")
            a(f"v_bfe_u32 v9, {vLane}, 3, 1\nv_cmp_eq_u32 vcc, 1, v9\nv_mov_b32 v9, 0xffff\nv_mov_b32 v8, {sHI}\nv_cndmask_b32 v9, v9, v8, vcc")
            for j in range(16): a(f"v_mul_f32 v{S0+j}, v{S0+j}, v10")
            for j in range(16): a(f"v_cvt_pk_bf16_f32 v{S0+j}, v{S0+j}, v{S0+j}")
            for j in range(16): a(f"v_and_b32 v{S0+j}, v{S0+j}, v9")
            fready = True
            stamp("fready")
        while fready and pvdone < 4 and (8 * pvdone + 7) in vidx and a.done > vidx[8 * pvdone + 7]:
            pv(pvdone); pvdone += 1
    vRW = "v9"
    vOW, vH1, vPub = "v10", "v11", "v12"
    a(f"v_and_b32 v8, 3, {vLane}\nv_lshlrev_b32 v8, 4, v8\nv_bfe_u32 v14, {vLane}, 4, 1\nv_lshl_add_u32 v8, v14, 3, v8\nv_lshrrev_b32 v14, 5, {vLane}\nv_lshl_add_u32 v8, v14, 2, v8")
    a(f"s_lshl_b32 {sT0}, s3, 6\nv_add_u32 {vRW}, {sT0}, v8")
    a(f"v_and_b32 v8, 15, {vLane}\nv_lshlrev_b32 v8, 5, v8\nv_lshrrev_b32 v14, 5, {vLane}\nv_lshl_add_u32 v8, v14, 4, v8\nv_bfe_u32 v14, {vLane}, 4, 1\nv_lshl_add_u32 v8, v14, 9, v8")
    a(f"s_lshl_b32 {sT0}, s3, 12\nv_add_u32 {vOW}, {sT0}, v8")
    a(f"v_lshrrev_b32 v8, 5, {vLane}\nv_lshlrev_b32 v8, 17, v8\nv_bfe_u32 v14, {vLane}, 2, 3\nv_lshl_add_u32 v8, v14, 12, v8\nv_and_b32 v14, 3, {vLane}\nv_lshl_add_u32 {vH1}, v14, 4, v8")
    a(f"s_lshl_b32 s71, {sG}, 6\ns_lshl_b32 {sT0}, s3, 3\ns_add_u32 s71, s71, {sT0}\ns_lshl_b32 s71, s71, 12\ns_lshl_b32 {sT0}, {sS}, 6\ns_add_u32 s71, s71, {sT0}\ns_add_u32 s71, s71, {WS_H1}")
    a(f"v_and_b32 v8, 15, {vLane}\nv_lshlrev_b32 v8, 1, v8\ns_lshl_b32 {sT0}, {sS}, 5")
    ixr = a.vm(f"buffer_load_ushort {vXr}, v8, {sX}, {sT0} offen")
    while pvdone < 4:
        a.wait_vm(vidx[8 * pvdone + 7]); pv(pvdone); pvdone += 1
    stamp("vdone")
    for r in range(4):
        for t in range(4):
            a(f"v_permlane32_swap_b32 v{ACC+4*t+r}, v{ACC+4*(t+4)+r}")
        for t in range(4):
            a(f"v_add_f32 v{PT+4*r+t}, v{ACC+4*t+r}, v{ACC+4*(t+4)+r}")
        a(f"ds_write_b128 {vOW}, {r4(PT+4*r)} offset:{L_O + 1024*r}")
    barrier()
    TW = slot(0) if not wt else slot(32)
    a("s_cmp_ge_u32 s3, 4\ns_cbranch_scc1 L_noh1")
    a(f"s_lshl_b32 {sT0}, s3, 10\nv_add_u32 v8, {sT0}, {vLin}")
    for i in range(8): a(f"ds_read_b128 {r4(ACC+4*i)}, v8 offset:{L_O + 4096*i}")
    for i in range(1, 8):
        a(f"s_waitcnt lgkmcnt({7-i})")
        for q in range(4): a(f"v_add_f32 v{ACC+q}, v{ACC+q}, v{ACC+4*i+q}")
    for q in range(4): a(f"v_and_or_b32 v{ACC+q}, v{ACC+q}, {vMask}, {sTag8}")
    a(f"buffer_store_dwordx4 {r4(ACC)}, {vH1}, {sWS}, s71 offen sc1")
    a.label("L_noh1")
    stamp("h1pub")
    a.wait_vm(widx[3])
    wtrans(slot(wslot), TW)
    a(f"v_and_b32 v8, 1, {vLane}\nv_lshlrev_b32 v8, 5, v8\nv_bfe_u32 v14, {vLane}, 4, 1\nv_lshl_add_u32 v8, v14, 4, v8\nv_bfe_u32 v14, {vLane}, 1, 3")
    a(f"v_lshl_add_u32 {vPub}, v14, 14, v8\nv_lshl_add_u32 v13, v14, 12, v8")
    a(f"v_and_b32 v8, 3, {vLane}\nv_lshlrev_b32 v8, 6, v8\nv_lshrrev_b32 v14, 4, {vLane}\nv_lshl_add_u32 {vOW}, v14, 4, v8")
    G0 = S0
    def g64(base_s, lbase, delay, tagl):
        a(f"s_cmp_ge_u32 s3, 4\ns_cbranch_scc1 {tagl}")
        a(f"s_lshl_b32 {sT0}, s3, 10\ns_add_u32 {sT0}, {sT0}, {base_s}")
        poll([f"buffer_load_dwordx4 {r4(G0)}, {vLin}, {sWS}, {sT0} offen sc1"], list(range(G0, G0+4)), sTag8, "0xff", delay)
        strip(range(G0, G0+4))
        quad16_reduce(G0, lbase)
        a.label(tagl)
        barrier()
        a(f"ds_read_b128 {r4(G0)}, {vOW} offset:{lbase}\ns_waitcnt lgkmcnt(0)")
        for q in range(4): a(f"v_add_f32_dpp v{G0+q}, v{G0+q}, v{G0+q} quad_perm:[1,0,3,2] row_mask:0xf bank_mask:0xf")
        for q in range(4): a(f"v_add_f32_dpp v{G0+q}, v{G0+q}, v{G0+q} quad_perm:[2,3,0,1] row_mask:0xf bank_mask:0xf")
    def pub(vo, sbase):
        a("s_mov_b32 exec_hi, 0")
        a(f"buffer_store_dwordx4 {r4(24)}, {vo}, {sWS}, {sbase} offen sc1")
        a("s_mov_b64 exec, -1")
    def g256(base, lbase, delay, nw, tagl):
        a(f"s_lshl_b32 {sT0}, {sS}, 14\ns_lshl_b32 {sT1}, s3, 11\ns_add_u32 {sT0}, {sT0}, {sT1}\ns_add_u32 {sT0}, {sT0}, {base}")
        if nw < 8:
            a(f"v_mov_b32 v{G0}, 0\ns_cmp_ge_u32 s3, {nw}\ns_cbranch_scc1 {tagl}z")
        poll([f"buffer_load_dwordx4 {r4(G0)}, {vLin}, {sWS}, {sT0} offen sc1", f"buffer_load_dwordx4 {r4(G0+4)}, {vLin}, {sWS}, {sT0} offen offset:1024 sc1"],
             list(range(G0, G0+8)), sTag8, "0xff", delay)
        strip(range(G0, G0+8))
        for q in range(4): a(f"v_add_f32 v{G0+q}, v{G0+q}, v{G0+4+q}")
        if nw < 8:
            quad16_reduce(G0, lbase)
            a(f"s_branch {tagl}y")
            a.label(f"{tagl}z")
            a(f"ds_write_b32 {vRW}, v{G0} offset:{lbase}")
            a.label(f"{tagl}y")
        else:
            quad16_reduce(G0, lbase)
        barrier()
        a(f"s_cmp_lg_u32 s3, 0\ns_cbranch_scc1 {tagl}")
        a(f"v_lshlrev_b32 v8, 2, {vLane}\nds_read2_b32 v[16:17], v8 offset0:{lbase//4} offset1:{lbase//4 + 64}") if lbase // 4 + 64 < 256 else \
            a(f"v_lshlrev_b32 v8, 2, {vLane}\nds_read_b32 v16, v8 offset:{lbase}\nds_read_b32 v17, v8 offset:{lbase+256}")
        a("s_waitcnt lgkmcnt(0)\nv_add_f32 v16, v16, v17")
        a("v_mov_b32 v17, v16\nv_permlane32_swap_b32 v17, v16\nv_add_f32 v16, v16, v17")
        a("v_mov_b32 v17, v16\nv_permlane16_swap_b32 v17, v16\nv_add_f32 v16, v16, v17")
    a(f"s_lshl_b32 s72, s2, 12\ns_add_u32 s72, s72, {WS_H1}")
    g64("s72", L_R1, o["d1"], "L_g1")
    stamp("h1got")
    a(f"v_cvt_pk_bf16_f32 v20, v{G0}, v{G0+1}\nv_cvt_pk_bf16_f32 v21, v{G0+2}, v{G0+3}")
    gemv(20, TW, ACC, 24)
    a(f"s_lshl_b32 s73, s3, 17\ns_lshl_b32 {sT0}, s2, 6\ns_add_u32 s73, s73, {sT0}\ns_add_u32 {sT0}, s73, {WS_H2}")
    pub(vPub, sT0)
    stamp("h2pub")
    a.wait_vm(widx[7])
    wtrans(slot(wslot+4), TW+16)
    a(f"s_cmp_lg_u32 {sG}, 0\ns_cbranch_scc1 L_nored2")
    g256(WS_H2, L_R2, o["d2"], 8, "L_g2")
    bf16r("v16", "v16")
    a.wait_vm(ixr)
    a(f"v_lshlrev_b32 {vXr}, 16, {vXr}\nv_add_f32 v16, v16, {vXr}")
    bf16r(vH, "v16")
    a(f"v_or_b32 v16, {sTag16}, {vH}")
    a(f"v_and_b32 v8, 15, {vLane}\nv_lshlrev_b32 v8, 2, v8\nv_lshrrev_b32 v14, 4, {vLane}\nv_lshl_add_u32 v8, v14, 12, v8")
    a(f"s_lshl_b32 {sT0}, {sS}, 6\ns_add_u32 {sT0}, {sT0}, {WS_H3}")
    a(f"buffer_store_dword v16, v8, {sWS}, {sT0} offen sc1")
    if o["rep"] == 8:
        a(f"s_add_u32 {sT0}, {sT0}, 0x4000\nbuffer_store_dword v16, v8, {sWS}, {sT0} offen sc1")
    a.label("L_g2")
    stamp("h3pub")
    a("s_branch L_red2d")
    a.label("L_nored2")
    if o["stamps"]:
        a(f"v_writelane_b32 {vStamp}, 0, {nst[0]-1}")
    if o["d3n"]: a(f"s_sleep {o['d3n']}")
    a.label("L_red2d")
    a(f"s_and_b32 {sT0}, s2, {o['rep']-1}\ns_lshl_b32 {sT0}, {sT0}, 12\ns_lshl_b32 {sT1}, s3, 9\ns_add_u32 {sT0}, {sT0}, {sT1}\ns_add_u32 {sT0}, {sT0}, {WS_H3}")
    a(f"v_lshlrev_b32 v8, 3, {vLane}")
    poll([f"buffer_load_dwordx2 {r2(G0)}, v8, {sWS}, {sT0} offen sc1"], [G0, G0+1], sTag16, "0xffff", o["d3"])
    a(f"v_and_b32 v{G0}, {sHI}, v{G0}\nv_and_b32 v{G0+1}, {sHI}, v{G0+1}\nv_add_u32 v8, {sT1}, v8")
    a(f"ds_write_b64 v8, {r2(G0)} offset:{L_HB}")
    barrier()
    stamp("h3got")
    a("s_cmp_eq_u32 s3, 7\ns_cbranch_scc1 L_noc")
    for q in range(4): a(f"ds_read_b128 {r4(ACC+4*q)}, {vLin} offset:{L_HB + 1024*q}")
    a(f"v_lshrrev_b32 v8, 4, {vLane}\nv_lshlrev_b32 v8, 4, v8\ns_lshl_b32 {sT0}, s68, 6\nv_add_u32 v8, {sT0}, v8")
    a(f"ds_read_b128 {r4(G0)}, v8 offset:{L_HB}\ns_waitcnt lgkmcnt(0)")
    ln_stats(ACC, "v22", "v23", "v8", "v14")
    ln_apply(G0, 20, "v22", "v23")
    gemv(20, TW+16, ACC, 24)
    a(f"s_lshl_b32 {sT0}, s69, 15\ns_lshl_b32 {sT1}, s68, 6\ns_add_u32 {sT0}, {sT0}, {sT1}\ns_add_u32 {sT0}, {sT0}, {WS_H4}")
    pub("v13", sT0)
    a("s_branch L_cd")
    a.label("L_noc")
    a(f"s_cmp_lg_u32 s2, 0\ns_cbranch_scc1 L_cd")
    a(f"v_mov_b32 v8, 0\nv_mov_b32 v14, {sEp}\ns_mov_b64 exec, 1")
    a(f"buffer_store_dword v14, v8, {sWS}, 0 offen offset:{WS_EPOCH} sc1")
    a("s_mov_b64 exec, -1")
    a.label("L_cd")
    stamp("h4pub")
    a("s_cmp_ge_u32 s2, 224\ns_cbranch_scc1 L_nod")
    a.wait_vm(widx[11])
    wtrans(slot(wslot+8), TW+32)
    a(f"s_lshl_b32 s72, s2, 12\ns_add_u32 s72, s72, {WS_H4}")
    g64("s72", L_R4, o["d4"], "L_g4")
    stamp("h4got")
    a(f"v_cvt_pk_bf16_f32 v20, v{G0}, v{G0+1}\nv_cvt_pk_bf16_f32 v21, v{G0+2}, v{G0+3}")
    a(f"v_lshlrev_b32 v{G0}, 16, v20\nv_and_b32 v{G0+1}, {sHI}, v20\nv_lshlrev_b32 v{G0+2}, 16, v21\nv_and_b32 v{G0+3}, {sHI}, v21")
    for q in range(4): a(f"v_mul_f32 v{24+q}, {sL2E}, v{G0+q}")
    for q in range(4): a(f"v_exp_f32 v{24+q}, -v{24+q}")
    for q in range(4): a(f"v_add_f32 v{24+q}, 1.0, v{24+q}")
    for q in range(4): a(f"v_rcp_f32 v{24+q}, v{24+q}")
    for q in range(4): a(f"v_mul_f32 v{G0+q}, v{G0+q}, v{24+q}")
    a(f"v_cvt_pk_bf16_f32 v20, v{G0}, v{G0+1}\nv_cvt_pk_bf16_f32 v21, v{G0+2}, v{G0+3}")
    gemv(20, TW+32, ACC, 24)
    a(f"s_add_u32 {sT0}, s73, {WS_H5}")
    pub(vPub, sT0)
    a.label("L_nod")
    stamp("h5pub")
    a(f"s_cmp_lg_u32 {sG}, 0\ns_cbranch_scc1 L_fin")
    g256(WS_H5, L_R5, o["d5"], 7, "L_fin")
    bf16r("v16", "v16")
    a(f"v_add_f32 v16, v16, {vH}\nv_cvt_pk_bf16_f32 v16, v16, v16")
    a(f"v_lshlrev_b32 v8, 1, {vLane}\ns_lshl_b32 {sT0}, {sS}, 5\ns_mov_b64 exec, 0xffff")
    a(f"buffer_store_short v16, v8, {sOUT}, {sT0} offen")
    a("s_mov_b64 exec, -1")
    a.label("L_fin")
    if o["stamps"]:
        stamp("end")
        a(f"s_lshl_b32 {sT0}, s2, 3\ns_add_u32 {sT0}, {sT0}, s3\ns_lshl_b32 {sT0}, {sT0}, 7\ns_add_u32 {sT0}, {sT0}, {WS_DBG}")
        a(f"v_lshlrev_b32 v8, 2, {vLane}\ns_mov_b32 exec_hi, 0")
        a(f"buffer_store_dword {vStamp}, v8, {sWS}, {sT0} offen")
        if o["stamps"] == 2:
            a(f"s_or_b32 {sT0}, s2, s3\ns_cmp_lg_u32 {sT0}, 0\ns_cbranch_scc1 L_end")
            a(f"v_readlane_b32 {sT0}, {vStamp}, 0\nv_subrev_u32 v9, {sT0}, {vStamp}\nv_subrev_u32 v8, 4, v8\ns_mov_b32 exec_lo, 0x1fffe")
            a(f"buffer_store_dword v9, v8, {sDBG}, 0 offen")
    a.label("L_end")
    a("s_endpgm")
    a.raw(f'''.section .rodata,"a"
.p2align 6
.amdhsa_kernel {KN}
  .amdhsa_next_free_vgpr 256
  .amdhsa_next_free_sgpr 102
  .amdhsa_accum_offset 256
  .amdhsa_group_segment_fixed_size 0
  .amdhsa_kernarg_size 88
  .amdhsa_user_sgpr_count 2
  .amdhsa_user_sgpr_kernarg_segment_ptr 1
  .amdhsa_system_sgpr_workgroup_id_x 1
.end_amdhsa_kernel''')
    return a.text()

if __name__ == "__main__":
    kw = {}
    out = sys.argv[1]
    for x in sys.argv[2:]:
        k, v = x.split("="); kw[k] = int(v)
    open(out, "w").write(gen(**kw))
```

```python
import struct, sys
sys.path.insert(0, "work")
from asmlib import Asm
KN = "sequential_preLN__gqa_block_cached__dense_activation_silu__decode_kernel"
def f32(x): return "0x%08x" % struct.unpack("<I", struct.pack("<f", x))[0]

WS_EPOCH = 0
WS_QP = 0x10000
WS_ML = 0x40000
WS_H3 = 0x50000
WS_DBG = 0x80000
WS_H1 = 0x100000
WS_H2 = 0x200000
WS_H4 = 0x300000
WS_H5 = 0x400000
WS_DUMP = 0x800000
L_QRED, L_QF, L_ML, L_MLG = 0, 4096, 6144, 6656
L_R1, L_R2, L_R4, L_R5, L_HB, L_O = 6912, 7168, 7680, 7936, 8704, 16384
LDS_BYTES = 49152

DEF = dict(thr=3600, qbar=1, depth=6, flag_pos=16, qload_pos=22, qproc_pos=29, ml_pos=16, wtail=0, stamps=0, d1=12, d2=12, d3=8, d3n=40, d4=12, d5=12, back=2, rep=8, dump=0)

def gen(**kw):
    o = dict(DEF); o.update(kw)
    D = o["depth"]
    a = Asm()
    a.raw(open("sequential_preLN__gqa_block_cached__dense_activation_silu__decode.s.ref").read().split("; Override")[0].rstrip())
    a.raw(f"; @launch grid=(256,1,1) block=(512,1,1) lds={LDS_BYTES}")
    a.raw('.amdgcn_target "amdgcn-amd-amdhsa--gfx950"\n.text')
    a.raw(f".globl {KN}\n.p2align 8\n.type {KN},@function\n{KN}:")
    sK, sV, sWS, sX, sWQ, sWO, sW1, sW2, sOUT, sDBG = [f"s[{b}:{b+3}]" for b in (8, 12, 16, 20, 24, 28, 32, 36, 40, 44)]
    sG, sS, sT0, sT1 = "s4", "s5", "s6", "s7"
    sKo, sVo = "s49", "s50"
    sTag8, sTag16, sEp = "s51", "s52", "s53"
    sPL, sPH, sHI, sSC, sL2E, s80 = "s54", "s55", "s56", "s57", "s58", "s59"
    sM4 = "s[60:61]"
    sCnt = "s62"; sT2 = "s63"; sTag2 = "s48"
    vLane, vKoff, vLin, vMask = "v1", "v2", "v3", "v4"
    vMw, vXr, vH = "v5", "v6", "v7"
    vt = [f"v{i}" for i in range(8, 15)]
    vStamp = "v15"
    S0 = 16
    ACC = 32
    SLOT = 64
    PT = 240
    def slot(i): return SLOT + 4 * i
    def r4(b): return f"v[{b}:{b+3}]"
    def r2(b): return f"v[{b}:{b+1}]"
    nst = [0]
    def stamp(name):
        if not o["stamps"]: return
        a("s_memrealtime s[98:99]\ns_waitcnt lgkmcnt(0)")
        a(f"v_writelane_b32 {vStamp}, s98, {nst[0]}")
        nst[0] += 1
    def bf16r(d, s):
        a(f"v_cvt_pk_bf16_f32 {d}, {s}, {s}\nv_lshlrev_b32 {d}, 16, {d}")
    def red64(op, v, t):
        a(f"v_mov_b32 {t}, {v}\nv_permlane32_swap_b32 {t}, {v}\n{op} {v}, {v}, {t}")
        a(f"v_mov_b32 {t}, {v}\nv_permlane16_swap_b32 {t}, {v}\n{op} {v}, {v}, {t}")
        for k in (8, 4, 2, 1):
            a(f"{op}_dpp {v}, {v}, {v} row_ror:{k} row_mask:0xf bank_mask:0xf")
    def red_rows(op, v, t):
        a(f"v_mov_b32 {t}, {v}\nv_permlane32_swap_b32 {t}, {v}\n{op} {v}, {v}, {t}")
        a(f"v_mov_b32 {t}, {v}\nv_permlane16_swap_b32 {t}, {v}\n{op} {v}, {v}, {t}")
        a(f"{op}_dpp {v}, {v}, {v} row_ror:8 row_mask:0xf bank_mask:0xf")
    def ln_stats(b, vm, vr, t0, t1):
        a(f"v_add_f32 {t0}, v{b}, v{b+1}")
        for i in range(2, 16): a(f"v_add_f32 {t0}, {t0}, v{b+i}")
        red64("v_add_f32", t0, t1)
        a(f"v_mul_f32 {t0}, {f32(1/1024)}, {t0}")
        for i in range(16): a(f"v_sub_f32 v{b+i}, v{b+i}, {t0}")
        a(f"v_mul_f32 {vr}, v{b}, v{b}")
        for i in range(1, 16): a(f"v_fmac_f32 {vr}, v{b+i}, v{b+i}")
        red64("v_add_f32", vr, t1)
        bf16r(vm, t0)
        a(f"v_mul_f32 {vr}, {f32(1/1024)}, {vr}")
        bf16r(vr, vr)
        a(f"v_add_f32 {vr}, {f32(1e-5)}, {vr}")
        bf16r(vr, vr)
        a(f"v_sqrt_f32 {vr}, {vr}")
        bf16r(vr, vr)
        a(f"v_rcp_f32 {vr}, {vr}")
    def ln_apply(h, A, vm, vr):
        for i in range(4): a(f"v_sub_f32 v{h+i}, v{h+i}, {vm}")
        a(f"v_cvt_pk_bf16_f32 v{A}, v{h}, v{h+1}\nv_cvt_pk_bf16_f32 v{A+1}, v{h+2}, v{h+3}")
        a(f"v_lshlrev_b32 v{h}, 16, v{A}\nv_and_b32 v{h+1}, {sHI}, v{A}\nv_lshlrev_b32 v{h+2}, 16, v{A+1}\nv_and_b32 v{h+3}, {sHI}, v{A+1}")
        for i in range(4): a(f"v_mul_f32 v{h+i}, v{h+i}, {vr}")
        a(f"v_cvt_pk_bf16_f32 v{A}, v{h}, v{h+1}\nv_cvt_pk_bf16_f32 v{A+1}, v{h+2}, v{h+3}")
    def wtrans(src, dst):
        for t in range(8):
            for j in range(2):
                a(f"v_perm_b32 v{dst+2*t+j}, v{src+4*(2*j+1)+(t>>1)}, v{src+4*(2*j)+(t>>1)}, {sPH if t & 1 else sPL}")
    def gemv(A, T, Dr, Y, tag=True):
        for t in range(8):
            a(f"v_mfma_f32_16x16x16_bf16 {r4(Dr+4*t)}, {r2(A)}, {r2(T+2*t)}, 0")
        for q in range(4):
            a(f"v_cndmask_b32 v{Y+q}, v{Dr+4*q}, v{Dr+4*(q+4)}, {sM4}")
        if tag:
            for q in range(4): a(f"v_and_or_b32 v{Y+q}, v{Y+q}, {vMask}, {sTag8}")
    lab = [0]
    def poll(loads, regs, tagreg, maskc, delay=0, counted=False):
        n = lab[0]; lab[0] += 1
        if delay: a(f"s_sleep {delay}")
        a(f"s_mov_b32 {sCnt}, 0")
        a.label(f"L_poll{n}")
        for l in loads: a(l)
        a("s_waitcnt vmcnt(0)")
        check(regs, tagreg, maskc)
        a(f"s_cbranch_vccz L_polld{n}")
        a(f"s_add_u32 {sCnt}, {sCnt}, 1\ns_cmp_gt_u32 {sCnt}, 0x80000\ns_cbranch_scc1 L_end")
        if o["back"]: a(f"s_sleep {o['back']}")
        a(f"s_branch L_poll{n}")
        a.label(f"L_polld{n}")
    def check(regs, tagreg, maskc):
        c = vt[6]
        a(f"v_xor_b32 {c}, {tagreg}, v{regs[0]}")
        for r in regs[1:]: a(f"v_bitop3_b32 {c}, v{r}, {tagreg}, {c} bitop3:0xbe")
        a(f"v_and_b32 {c}, {maskc}, {c}\nv_cmp_ne_u32 vcc, 0, {c}")
    def strip(regs):
        for r in regs: a(f"v_and_or_b32 v{r}, v{r}, {vMask}, {s80}")
    def quad16_reduce(b, lbase):
        a(f"v_permlane32_swap_b32 v{b}, v{b+1}\nv_permlane32_swap_b32 v{b+2}, v{b+3}")
        a(f"v_add_f32 v{b}, v{b}, v{b+1}\nv_add_f32 v{b+2}, v{b+2}, v{b+3}")
        a(f"v_permlane16_swap_b32 v{b}, v{b+2}")
        a(f"v_add_f32 v{b}, v{b}, v{b+2}")
        a(f"v_add_f32_dpp v{b}, v{b}, v{b} row_ror:4 row_mask:0xf bank_mask:0xf")
        a(f"v_add_f32_dpp v{b}, v{b}, v{b} row_ror:8 row_mask:0xf bank_mask:0xf")
        a(f"ds_write_b32 {vRW}, v{b} offset:{lbase}")
    def barrier():
        a("s_waitcnt lgkmcnt(0)\ns_barrier")

    a("s_cmp_ge_u32 s2, 0x100\ns_cbranch_scc1 L_end")
    a("s_load_dwordx16 s[64:79], s[0:1], 0\ns_load_dwordx4 s[80:83], s[0:1], 64\ns_load_dwordx2 s[84:85], s[0:1], 80")
    if o["stamps"]: a(f"v_mov_b32 {vStamp}, 0")
    stamp("start")
    a(f"v_and_b32 {vLane}, 63, v0\nv_lshrrev_b32 v8, 6, v0")
    a("v_readfirstlane_b32 s3, v8")
    a(f"v_lshlrev_b32 {vLin}, 4, {vLane}")
    a(f"v_bfe_u32 v8, {vLane}, 1, 1\nv_lshlrev_b32 v8, 10, v8\nv_bfe_u32 v9, {vLane}, 2, 2\nv_lshl_add_u32 v8, v9, 8, v8")
    a(f"v_lshrrev_b32 v9, 4, {vLane}\nv_lshl_add_u32 v8, v9, 5, v8\nv_and_b32 v9, 1, {vLane}\nv_lshl_add_u32 {vKoff}, v9, 4, v8")
    a(f"v_mov_b32 {vMask}, 0xffffff00")
    a(f"s_and_b32 {sG}, s2, 3\ns_lshr_b32 {sS}, s2, 2")
    a(f"s_mov_b32 {sPL}, 0x05040100\ns_mov_b32 {sPH}, 0x07060302\ns_mov_b32 {sHI}, 0xffff0000")
    a(f"s_mov_b32 {sSC}, {f32(128 ** -0.5)}\ns_mov_b32 {sL2E}, {f32(1.4426950408889634)}\ns_mov_b32 {s80}, 0x80")
    a(f"s_mov_b32 s60, 0xffff0000\ns_mov_b32 s61, 0xffff0000")
    a(f"s_lshl_b32 {sT0}, {sS}, 3\ns_add_u32 {sT0}, {sT0}, s3\ns_lshl_b32 {sT0}, {sT0}, 12\ns_lshl_b32 {sT1}, {sG}, 24\ns_add_u32 {sKo}, {sT0}, {sT1}\ns_mov_b32 {sVo}, {sKo}")
    a(f"v_lshrrev_b32 v9, 4, {vLane}\nv_and_b32 v8, 15, {vLane}\nv_lshlrev_b32 v8, 4, v8\nv_lshl_add_u32 v10, v9, 15, v8")
    a(f"v_lshlrev_b32 v11, 3, v9\nv_lshlrev_b32 v12, 5, {vLane}")
    a("s_waitcnt lgkmcnt(0)")
    def srd(base, p, size):
        a(f"s_mov_b32 s{base}, s{p}\ns_and_b32 s{base+1}, s{p+1}, 0xffff\ns_mov_b32 s{base+2}, {size}\ns_mov_b32 s{base+3}, 0x20000")
    srd(20, 64, 2048); srd(24, 70, 8 << 20); srd(8, 66, 64 << 20)
    XR = PT
    ix0 = a.vm(f"buffer_load_dwordx4 {r4(XR)}, v12, {sX}, 0 offen")
    ix1 = a.vm(f"buffer_load_dwordx4 {r4(XR+4)}, v12, {sX}, 0 offen offset:16")
    a(f"s_lshr_b32 {sT0}, s2, 5\ns_lshl_b32 {sT0}, {sT0}, 3\ns_add_u32 {sT0}, {sT0}, s3")
    a(f"s_lshl_b32 {sT1}, {sT0}, 5")
    ix2 = a.vm(f"buffer_load_dwordx2 {r2(XR+8)}, v11, {sX}, {sT1} offen")
    a(f"s_lshl_b32 {sT0}, {sT0}, 17\ns_and_b32 {sT1}, s2, 31\ns_lshl_b32 {sT1}, {sT1}, 8\ns_add_u32 {sT0}, {sT0}, {sT1}")
    for i in range(4):
        iwq = a.vm(f"buffer_load_dwordx4 {r4(slot(32+i))}, v10, {sWQ}, {sT0} offen nt")
        if i < 3: a(f"s_add_u32 {sT0}, {sT0}, 8192")
    kidx = {}
    def kload(k):
        kidx[k] = a.vm(f"buffer_load_dwordx4 {r4(slot(k))}, {vKoff}, {sK}, {sKo} offen offset:{(k%2)*128 + ((k%4)//2)*2048} nt")
        if k % 4 == 3: a(f"s_add_u32 {sKo}, {sKo}, 0x200000")
    K0 = o.get("k0", D)
    if o["qbar"]: a("s_barrier")
    for k in range(K0): kload(k)
    srd(12, 68, 64 << 20); srd(16, 84, 256 << 20); srd(28, 72, 8 << 20); srd(32, 76, 7 << 20); srd(36, 78, 7 << 20); srd(40, 80, 2048); srd(44, 82, 256)
    a(f"s_load_dword {sEp}, s[84:85], {WS_EPOCH}")
    if o["stamps"] == 3: a(f"s_load_dword s97, s[84:85], {WS_EPOCH+4}\ns_waitcnt lgkmcnt(0)\ns_xor_b32 s97, s97, {sEp}")
    a.wait_vm(ix1)
    XF = ACC
    for i in range(8):
        a(f"v_lshlrev_b32 v{XF+2*i}, 16, v{XR+i}\nv_and_b32 v{XF+2*i+1}, {sHI}, v{XR+i}")
    ln_stats(XF, vt[0], vt[1], vt[2], vt[3])
    a.wait_vm(ix2)
    a(f"v_lshlrev_b32 v48, 16, v{XR+8}\nv_and_b32 v49, {sHI}, v{XR+8}\nv_lshlrev_b32 v50, 16, v{XR+9}\nv_and_b32 v51, {sHI}, v{XR+9}")
    ln_apply(48, 52, vt[0], vt[1])
    a(f"v_mov_b32 v16, v52\nv_mov_b32 v17, v53")
    a.wait_vm(iwq)
    stamp("wq")
    wtrans(slot(32), PT)
    gemv(16, PT, ACC, 20, tag=False)
    a(f"v_and_b32 v8, 15, {vLane}\nv_lshlrev_b32 v8, 5, v8\nv_bfe_u32 v9, {vLane}, 4, 1\nv_lshl_add_u32 v8, v9, 4, v8")
    a(f"s_lshl_b32 {sT0}, s3, 9\nv_add_u32 v8, {sT0}, v8")
    a(f"ds_write_b128 v8, {r4(20)} offset:{L_QRED}")
    a(f"s_waitcnt lgkmcnt(0)\ns_add_u32 {sEp}, {sEp}, 1\ns_and_b32 {sTag8}, {sEp}, 0xff\ns_and_b32 {sTag16}, {sEp}, 0xffff\ns_and_b32 {sTag2}, {sEp}, 3")
    a("s_barrier")
    a("s_cmp_lg_u32 s3, 0\ns_cbranch_scc1 L_noq")
    a(f"v_and_b32 v8, 0x1f0, {vLin}")
    for i in range(8): a(f"ds_read_b128 {r4(ACC+4*i)}, v8 offset:{L_QRED + 512*i}")
    a("s_waitcnt lgkmcnt(0)")
    for i in range(1, 8):
        for q in range(4): a(f"v_add_f32 v{ACC+q}, v{ACC+q}, v{ACC+4*i+q}")
    a(f"s_and_b32 {sT0}, s2, 31\ns_lshl_b32 {sT0}, {sT0}, 12\ns_lshr_b32 {sT1}, s2, 5\ns_lshl_b32 {sT1}, {sT1}, 9\ns_add_u32 {sT0}, {sT0}, {sT1}\ns_add_u32 {sT0}, {sT0}, {WS_QP}")
    a("s_mov_b32 exec_hi, 0")
    for q in range(4): a(f"v_and_b32 v{ACC+q}, -4, v{ACC+q}\nv_or_b32 v{ACC+q}, {sTag2}, v{ACC+q}")
    a(f"buffer_store_dwordx4 {r4(ACC)}, v8, {sWS}, {sT0} offen sc1")
    a("s_mov_b64 exec, -1")
    a.label("L_noq")
    stamp("qpub")
    QL = S0
    for k in range(K0, 32):
        a.pace(D); kload(k)
        if k == o["qload_pos"]:
            a(f"s_lshl_b32 {sT0}, {sG}, 3\ns_add_u32 {sT0}, {sT0}, s3\ns_lshl_b32 {sT2}, {sT0}, 12\ns_add_u32 {sT2}, {sT2}, {WS_QP}")
            for i in range(4):
                a.pace(D); iq = a.vm(f"buffer_load_dwordx4 {r4(QL+4*i)}, {vLin}, {sWS}, {sT2} offen offset:{1024*i} sc1")
        if k == o["qproc_pos"]:
            a.wait_vm(iq)
            check(list(range(QL, QL+16)), sTag2, "3")
            a("s_cbranch_vccz L_qok")
            poll([f"buffer_load_dwordx4 {r4(QL+4*i)}, {vLin}, {sWS}, {sT2} offen offset:{1024*i} sc1" for i in range(4)], list(range(QL, QL+16)), sTag2, "3", 8)
            a.label("L_qok")
            for q in range(16): a(f"v_and_b32 v{QL+q}, -4, v{QL+q}")
            for q in range(4):
                a(f"v_add_f32 v{QL+q}, v{QL+q}, v{QL+4+q}\nv_add_f32 v{QL+8+q}, v{QL+8+q}, v{QL+12+q}")
            for q in range(4): a(f"v_add_f32 v{QL+q}, v{QL+q}, v{QL+8+q}")
            for q in range(4): a(f"v_mov_b32 v{QL+4+q}, v{QL+q}")
            for q in range(4): a(f"v_permlane32_swap_b32 v{QL+4+q}, v{QL+q}")
            for q in range(4): a(f"v_add_f32 v{QL+q}, v{QL+q}, v{QL+4+q}")
            a(f"v_cvt_pk_bf16_f32 v{QL+8}, v{QL}, v{QL+1}\nv_cvt_pk_bf16_f32 v{QL+9}, v{QL+2}, v{QL+3}")
            a(f"v_and_b32 v8, 31, {vLane}\nv_lshlrev_b32 v8, 3, v8\ns_lshl_b32 {sT0}, s3, 8\nv_add_u32 v8, {sT0}, v8")
            a(f"ds_write_b64 v8, {r2(QL+8)} offset:{L_QF}")
            barrier()
            a(f"v_and_b32 v8, 7, {vLane}\nv_lshlrev_b32 v8, 8, v8\nv_lshrrev_b32 v9, 4, {vLane}\nv_lshl_add_u32 v8, v9, 5, v8\nv_bfe_u32 v9, {vLane}, 3, 1\nv_lshl_add_u32 v8, v9, 4, v8")
            a(f"ds_read_b128 {r4(PT)}, v8 offset:{L_QF}\nds_read_b128 {r4(PT+4)}, v8 offset:{L_QF+128}")
            stamp("qready")
    wt = o["wtail"]
    wslot = 20 if wt else 32
    def vslot(i): return (32 + i if i < 12 else i - 12) if wt else i
    widx = {}
    def wsetup():
        a(f"v_lshrrev_b32 v9, 4, {vLane}\nv_and_b32 v8, 15, {vLane}\nv_lshlrev_b32 v8, 4, v8\nv_lshl_add_u32 v12, v9, 13, v8")
        a(f"v_mul_u32_u24 v9, {4*7168}, v9\nv_add_u32 v13, v9, v8")
        a(f"s_lshl_b32 s64, s2, 15\ns_lshl_b32 {sT0}, s3, 8\ns_add_u32 s64, s64, {sT0}\ns_mov_b32 s66, s64")
        a(f"s_mul_i32 s67, s2, 7\ns_add_u32 s67, s67, s3\ns_and_b32 s68, s67, 63\ns_lshr_b32 s69, s67, 6")
        a(f"s_mul_i32 s65, s68, {16*7168}\ns_lshl_b32 {sT0}, s69, 8\ns_add_u32 s65, s65, {sT0}")
        a(f"s_cmp_eq_u32 s3, 7\ns_cselect_b32 s65, 0x7000000, s65")
    def wload(n):
        m, i = n // 4, n % 4
        srd_, vo, sb, st = [(sWO, "v12", "s64", 2048), (sW1, "v13", "s65", 7168), (sW2, "v12", "s66", 2048)][m]
        widx[n] = a.vm(f"buffer_load_dwordx4 {r4(slot(wslot+n))}, {vo}, {srd_}, {sb} offen nt")
        if i < 3: a(f"s_add_u32 {sb}, {sb}, {st}")
    vidx = {}
    def vload(i):
        vidx[i] = a.vm(f"buffer_load_dwordx4 {r4(slot(vslot(i)))}, {vLin}, {sV}, {sVo} offen offset:{(i%4)*1024} nt")
        if i % 4 == 3: a(f"s_add_u32 {sVo}, {sVo}, 0x200000")
    wsetup()
    seq = ([("v", i) for i in range(32)] + [("w", n) for n in range(12)]) if wt else ([("w", n) for n in range(12)] + [("v", i) for i in range(32)])
    def issue(n):
        for _ in range(n):
            kind, i = seq.pop(0)
            a.pace(D)
            (vload if kind == "v" else wload)(i)
    issue(D)
    a.wait_vm(kidx[31])
    stamp("kdone")
    a("s_waitcnt lgkmcnt(0)")
    for half in range(2):
        for jj in range(8):
            j = half * 8 + jj
            a(f"v_mfma_f32_16x16x32_bf16 {r4(ACC+4*jj)}, {r4(slot(2*j))}, {r4(PT)}, 0")
        for jj in range(8):
            j = half * 8 + jj
            a(f"v_mfma_f32_16x16x32_bf16 {r4(ACC+4*jj)}, {r4(slot(2*j+1))}, {r4(PT+4)}, {r4(ACC+4*jj)}")
        for jj in range(8):
            j = half * 8 + jj; d = ACC + 4 * jj
            a(f"v_add_f32_dpp v{S0+j}, v{d+1}, v{d} row_ror:8 row_mask:0xf bank_mask:0x3")
            a(f"v_add_f32_dpp v{S0+j}, v{d+2}, v{d+3} row_ror:8 row_mask:0xf bank_mask:0xc")
    for j in range(0, 16, 2):
        x, y = f"v{S0+j}", f"v{S0+j+1}"
        a(f"v_cvt_pk_bf16_f32 v8, {x}, {y}\nv_lshlrev_b32 {x}, 16, v8\nv_and_b32 {y}, {sHI}, v8")
        a(f"v_mul_f32 {x}, {sSC}, {x}\nv_mul_f32 {y}, {sSC}, {y}")
        a(f"v_cvt_pk_bf16_f32 v8, {x}, {y}\nv_lshlrev_b32 {x}, 16, v8\nv_and_b32 {y}, {sHI}, v8")
    a(f"v_max3_f32 {vMw}, v{S0}, v{S0+1}, v{S0+2}")
    for j in range(3, 15, 2): a(f"v_max3_f32 {vMw}, {vMw}, v{S0+j}, v{S0+j+1}")
    a(f"v_max_f32 {vMw}, {vMw}, v{S0+15}")
    red_rows("v_max_f32", vMw, "v8")
    for j in range(16): a(f"v_sub_f32 v{S0+j}, v{S0+j}, {vMw}")
    for j in range(16): a(f"v_mul_f32 v{S0+j}, {sL2E}, v{S0+j}")
    for j in range(16): a(f"v_exp_f32 v{S0+j}, v{S0+j}")
    a(f"v_add_f32 v11, v{S0}, v{S0+1}")
    for j in range(2, 16): a(f"v_add_f32 v11, v11, v{S0+j}")
    red_rows("v_add_f32", "v11", "v8")
    a(f"v_mov_b32 v10, {vMw}")
    a(f"v_and_b32 v8, 7, {vLane}\nv_lshlrev_b32 v8, 3, v8\ns_lshl_b32 {sT0}, s3, 6\nv_add_u32 v8, {sT0}, v8")
    a(f"ds_write_b64 v8, v[10:11] offset:{L_ML}")
    barrier()
    a("s_cmp_lg_u32 s3, 0\ns_cbranch_scc1 L_noml")
    a(f"v_lshlrev_b32 v8, 3, {vLane}\nds_read_b64 v[10:11], v8 offset:{L_ML}\ns_waitcnt lgkmcnt(0)")
    a("v_mov_b32 v9, v10")
    red_rows("v_max_f32", "v9", "v8")
    a(f"v_sub_f32 v10, v10, v9\nv_mul_f32 v10, {sL2E}, v10\nv_exp_f32 v10, v10\nv_mul_f32 v11, v11, v10")
    red_rows("v_add_f32", "v11", "v8")
    a(f"v_or_b32 v10, {sTag16}, v9\nv_and_or_b32 v11, v11, {vMask}, {sTag8}")
    a(f"v_lshlrev_b32 v8, 9, {vLane}\ns_lshl_b32 {sT0}, {sG}, 12\ns_lshl_b32 {sT1}, {sS}, 3\ns_add_u32 {sT0}, {sT0}, {sT1}\ns_add_u32 {sT0}, {sT0}, {WS_ML}")
    a("s_mov_b64 exec, 0xff")
    a(f"buffer_store_dwordx2 v[10:11], v8, {sWS}, {sT0} offen sc1")
    a("s_mov_b64 exec, -1")
    a.label("L_noml")
    stamp("mlpub")
    def pv(u):
        for dp in range(4):
            tb = PT + 8 * (dp & 1)
            for b in range(2):
                for j in range(4):
                    a(f"v_perm_b32 v{tb+4*b+j}, v{slot(vslot(8*u+2*j+1))+dp}, v{slot(vslot(8*u+2*j))+dp}, {sPH if b else sPL}")
            for b in range(2):
                t = 2 * dp + b
                c = "0" if u == 0 else r4(ACC + 4 * t)
                a(f"v_mfma_f32_16x16x32_bf16 {r4(ACC+4*t)}, {r4(S0+4*u)}, {r4(tb+4*b)}, {c}")
    pvdone = 0; fready = False; iml = None
    while seq:
        issue(1)
        nv = len(vidx)
        if iml is None and nv > o["ml_pos"]:
            a(f"v_lshlrev_b32 v8, 3, {vLane}\ns_lshl_b32 {sT0}, {sG}, 3\ns_add_u32 {sT0}, {sT0}, s3\ns_lshl_b32 s70, {sT0}, 9\ns_add_u32 s70, s70, {WS_ML}")
            a.pace(D); iml = a.vm(f"buffer_load_dwordx2 v[10:11], v8, {sWS}, s70 offen sc1")
        if iml is not None and not fready and (a.done > iml or not seq):
            a.wait_vm(iml)
            a(f"v_xor_b32 v14, {sTag16}, v10\nv_and_b32 v14, 0xffff, v14\nv_xor_b32 v9, {sTag8}, v11\nv_and_b32 v9, 0xff, v9\nv_or_b32 v14, v14, v9")
            a("v_cmp_ne_u32 vcc, 0, v14\ns_cbranch_vccz L_mlok")
            a(f"s_mov_b32 {sCnt}, 0")
            a.label("L_mlspin")
            a(f"buffer_load_dwordx2 v[10:11], v8, {sWS}, s70 offen sc1\ns_waitcnt vmcnt(0)")
            a(f"s_add_u32 {sCnt}, {sCnt}, 1\ns_cmp_gt_u32 {sCnt}, 0x80000\ns_cbranch_scc1 L_end")
            a(f"v_xor_b32 v14, {sTag16}, v10\nv_and_b32 v14, 0xffff, v14\nv_xor_b32 v9, {sTag8}, v11\nv_and_b32 v9, 0xff, v9\nv_or_b32 v14, v14, v9")
            a("v_cmp_ne_u32 vcc, 0, v14\ns_cbranch_vccnz L_mlspin")
            a.label("L_mlok")
            a(f"v_and_b32 v10, {sHI}, v10\nv_and_or_b32 v11, v11, {vMask}, {s80}\nv_mov_b32 v9, v10")
            red64("v_max_f32", "v9", "v8")
            a(f"v_sub_f32 v10, v10, v9\nv_mul_f32 v10, {sL2E}, v10\nv_exp_f32 v10, v10\nv_mul_f32 v11, v11, v10")
            red64("v_add_f32", "v11", "v8")
            a(f"v_rcp_f32 v11, v11\nv_mov_b32 v10, v9\ns_lshl_b32 {sT0}, s3, 3\nv_mov_b32 v8, {sT0}")
            a(f"ds_write_b64 v8, v[10:11] offset:{L_MLG}")
            barrier()
            a(f"v_and_b32 v8, 7, {vLane}\nv_lshlrev_b32 v8, 3, v8\nds_read_b64 v[10:11], v8 offset:{L_MLG}\ns_waitcnt lgkmcnt(0)")
            a(f"v_sub_f32 v10, {vMw}, v10\nv_mul_f32 v10, {sL2E}, v10\nv_exp_f32 v10, v10\nv_mul_f32 v10, v10, v11")
            a(f"v_bfe_u32 v9, {vLane}, 3, 1\nv_cmp_eq_u32 vcc, 1, v9\nv_mov_b32 v9, 0xffff\nv_mov_b32 v8, {sHI}\nv_cndmask_b32 v9, v9, v8, vcc")
            for j in range(16): a(f"v_mul_f32 v{S0+j}, v{S0+j}, v10")
            for j in range(16): a(f"v_cvt_pk_bf16_f32 v{S0+j}, v{S0+j}, v{S0+j}")
            for j in range(16): a(f"v_and_b32 v{S0+j}, v{S0+j}, v9")
            fready = True
            stamp("fready")
        while fready and pvdone < 4 and (8 * pvdone + 7) in vidx and a.done > vidx[8 * pvdone + 7]:
            pv(pvdone); pvdone += 1
    vRW = "v9"
    vOW, vH1, vPub = "v10", "v11", "v12"
    a(f"v_and_b32 v8, 3, {vLane}\nv_lshlrev_b32 v8, 4, v8\nv_bfe_u32 v14, {vLane}, 4, 1\nv_lshl_add_u32 v8, v14, 3, v8\nv_lshrrev_b32 v14, 5, {vLane}\nv_lshl_add_u32 v8, v14, 2, v8")
    a(f"s_lshl_b32 {sT0}, s3, 6\nv_add_u32 {vRW}, {sT0}, v8")
    a(f"v_and_b32 v8, 15, {vLane}\nv_lshlrev_b32 v8, 5, v8\nv_lshrrev_b32 v14, 5, {vLane}\nv_lshl_add_u32 v8, v14, 4, v8\nv_bfe_u32 v14, {vLane}, 4, 1\nv_lshl_add_u32 v8, v14, 9, v8")
    a(f"s_lshl_b32 {sT0}, s3, 12\nv_add_u32 {vOW}, {sT0}, v8")
    a(f"v_lshrrev_b32 v8, 5, {vLane}\nv_lshlrev_b32 v8, 17, v8\nv_bfe_u32 v14, {vLane}, 2, 3\nv_lshl_add_u32 v8, v14, 12, v8\nv_and_b32 v14, 3, {vLane}\nv_lshl_add_u32 {vH1}, v14, 4, v8")
    a(f"s_lshl_b32 s71, {sG}, 6\ns_lshl_b32 {sT0}, s3, 3\ns_add_u32 s71, s71, {sT0}\ns_lshl_b32 s71, s71, 12\ns_lshl_b32 {sT0}, {sS}, 6\ns_add_u32 s71, s71, {sT0}\ns_add_u32 s71, s71, {WS_H1}")
    a(f"v_and_b32 v8, 15, {vLane}\nv_lshlrev_b32 v8, 1, v8\ns_lshl_b32 {sT0}, {sS}, 5")
    ixr = a.vm(f"buffer_load_ushort {vXr}, v8, {sX}, {sT0} offen")
    while pvdone < 4:
        a.wait_vm(vidx[8 * pvdone + 7]); pv(pvdone); pvdone += 1
    stamp("vdone")
    for r in range(4):
        for t in range(4):
            a(f"v_permlane32_swap_b32 v{ACC+4*t+r}, v{ACC+4*(t+4)+r}")
        for t in range(4):
            a(f"v_add_f32 v{PT+4*r+t}, v{ACC+4*t+r}, v{ACC+4*(t+4)+r}")
        a(f"ds_write_b128 {vOW}, {r4(PT+4*r)} offset:{L_O + 1024*r}")
    barrier()
    TW = slot(0) if not wt else slot(32)
    a("s_cmp_ge_u32 s3, 4\ns_cbranch_scc1 L_noh1")
    a(f"s_lshl_b32 {sT0}, s3, 10\nv_add_u32 v8, {sT0}, {vLin}")
    for i in range(8): a(f"ds_read_b128 {r4(ACC+4*i)}, v8 offset:{L_O + 4096*i}")
    for i in range(1, 8):
        a(f"s_waitcnt lgkmcnt({7-i})")
        for q in range(4): a(f"v_add_f32 v{ACC+q}, v{ACC+q}, v{ACC+4*i+q}")
    for q in range(4): a(f"v_and_or_b32 v{ACC+q}, v{ACC+q}, {vMask}, {sTag8}")
    a(f"buffer_store_dwordx4 {r4(ACC)}, {vH1}, {sWS}, s71 offen sc1")
    a.label("L_noh1")
    stamp("h1pub")
    a.wait_vm(widx[3])
    wtrans(slot(wslot), TW)
    a(f"v_and_b32 v8, 1, {vLane}\nv_lshlrev_b32 v8, 5, v8\nv_bfe_u32 v14, {vLane}, 4, 1\nv_lshl_add_u32 v8, v14, 4, v8\nv_bfe_u32 v14, {vLane}, 1, 3")
    a(f"v_lshl_add_u32 {vPub}, v14, 14, v8\nv_lshl_add_u32 v13, v14, 12, v8")
    a(f"v_and_b32 v8, 3, {vLane}\nv_lshlrev_b32 v8, 6, v8\nv_lshrrev_b32 v14, 4, {vLane}\nv_lshl_add_u32 {vOW}, v14, 4, v8")
    G0 = S0
    def g64(base_s, lbase, delay, tagl):
        a(f"s_cmp_ge_u32 s3, 4\ns_cbranch_scc1 {tagl}")
        a(f"s_lshl_b32 {sT0}, s3, 10\ns_add_u32 {sT0}, {sT0}, {base_s}")
        poll([f"buffer_load_dwordx4 {r4(G0)}, {vLin}, {sWS}, {sT0} offen sc1"], list(range(G0, G0+4)), sTag8, "0xff", delay)
        strip(range(G0, G0+4))
        quad16_reduce(G0, lbase)
        a.label(tagl)
        barrier()
        a(f"ds_read_b128 {r4(G0)}, {vOW} offset:{lbase}\ns_waitcnt lgkmcnt(0)")
        for q in range(4): a(f"v_add_f32_dpp v{G0+q}, v{G0+q}, v{G0+q} quad_perm:[1,0,3,2] row_mask:0xf bank_mask:0xf")
        for q in range(4): a(f"v_add_f32_dpp v{G0+q}, v{G0+q}, v{G0+q} quad_perm:[2,3,0,1] row_mask:0xf bank_mask:0xf")
    def pub(vo, sbase):
        a("s_mov_b32 exec_hi, 0")
        a(f"buffer_store_dwordx4 {r4(24)}, {vo}, {sWS}, {sbase} offen sc1")
        a("s_mov_b64 exec, -1")
    def g256(base, lbase, delay, nw, tagl):
        a(f"s_lshl_b32 {sT0}, {sS}, 14\ns_lshl_b32 {sT1}, s3, 11\ns_add_u32 {sT0}, {sT0}, {sT1}\ns_add_u32 {sT0}, {sT0}, {base}")
        if nw < 8:
            a(f"v_mov_b32 v{G0}, 0\ns_cmp_ge_u32 s3, {nw}\ns_cbranch_scc1 {tagl}z")
        poll([f"buffer_load_dwordx4 {r4(G0)}, {vLin}, {sWS}, {sT0} offen sc1", f"buffer_load_dwordx4 {r4(G0+4)}, {vLin}, {sWS}, {sT0} offen offset:1024 sc1"],
             list(range(G0, G0+8)), sTag8, "0xff", delay)
        strip(range(G0, G0+8))
        for q in range(4): a(f"v_add_f32 v{G0+q}, v{G0+q}, v{G0+4+q}")
        if nw < 8:
            quad16_reduce(G0, lbase)
            a(f"s_branch {tagl}y")
            a.label(f"{tagl}z")
            a(f"ds_write_b32 {vRW}, v{G0} offset:{lbase}")
            a.label(f"{tagl}y")
        else:
            quad16_reduce(G0, lbase)
        barrier()
        a(f"s_cmp_lg_u32 s3, 0\ns_cbranch_scc1 {tagl}")
        a(f"v_lshlrev_b32 v8, 2, {vLane}\nds_read2_b32 v[16:17], v8 offset0:{lbase//4} offset1:{lbase//4 + 64}") if lbase // 4 + 64 < 256 else \
            a(f"v_lshlrev_b32 v8, 2, {vLane}\nds_read_b32 v16, v8 offset:{lbase}\nds_read_b32 v17, v8 offset:{lbase+256}")
        a("s_waitcnt lgkmcnt(0)\nv_add_f32 v16, v16, v17")
        a("v_mov_b32 v17, v16\nv_permlane32_swap_b32 v17, v16\nv_add_f32 v16, v16, v17")
        a("v_mov_b32 v17, v16\nv_permlane16_swap_b32 v17, v16\nv_add_f32 v16, v16, v17")
    a(f"s_lshl_b32 s72, s2, 12\ns_add_u32 s72, s72, {WS_H1}")
    g64("s72", L_R1, o["d1"], "L_g1")
    stamp("h1got")
    a(f"v_cvt_pk_bf16_f32 v20, v{G0}, v{G0+1}\nv_cvt_pk_bf16_f32 v21, v{G0+2}, v{G0+3}")
    gemv(20, TW, ACC, 24)
    a(f"s_lshl_b32 s73, s3, 17\ns_lshl_b32 {sT0}, s2, 6\ns_add_u32 s73, s73, {sT0}\ns_add_u32 {sT0}, s73, {WS_H2}")
    pub(vPub, sT0)
    stamp("h2pub")
    a.wait_vm(widx[7])
    wtrans(slot(wslot+4), TW+16)
    a(f"s_cmp_lg_u32 {sG}, 0\ns_cbranch_scc1 L_nored2")
    g256(WS_H2, L_R2, o["d2"], 8, "L_g2")
    bf16r("v16", "v16")
    a.wait_vm(ixr)
    a(f"v_lshlrev_b32 {vXr}, 16, {vXr}\nv_add_f32 v16, v16, {vXr}")
    bf16r(vH, "v16")
    a(f"v_or_b32 v16, {sTag16}, {vH}")
    a(f"v_and_b32 v8, 15, {vLane}\nv_lshlrev_b32 v8, 2, v8\nv_lshrrev_b32 v14, 4, {vLane}\nv_lshl_add_u32 v8, v14, 12, v8")
    a(f"s_lshl_b32 {sT0}, {sS}, 6\ns_add_u32 {sT0}, {sT0}, {WS_H3}")
    a(f"buffer_store_dword v16, v8, {sWS}, {sT0} offen sc1")
    if o["rep"] == 8:
        a(f"s_add_u32 {sT0}, {sT0}, 0x4000\nbuffer_store_dword v16, v8, {sWS}, {sT0} offen sc1")
    a.label("L_g2")
    stamp("h3pub")
    a("s_branch L_red2d")
    a.label("L_nored2")
    if o["stamps"]:
        a(f"v_writelane_b32 {vStamp}, 0, {nst[0]-1}")
    if o["d3n"]: a(f"s_sleep {o['d3n']}")
    a.label("L_red2d")
    a(f"s_and_b32 {sT0}, s2, {o['rep']-1}\ns_lshl_b32 {sT0}, {sT0}, 12\ns_lshl_b32 {sT1}, s3, 9\ns_add_u32 {sT0}, {sT0}, {sT1}\ns_add_u32 {sT0}, {sT0}, {WS_H3}")
    a(f"v_lshlrev_b32 v8, 3, {vLane}")
    poll([f"buffer_load_dwordx2 {r2(G0)}, v8, {sWS}, {sT0} offen sc1"], [G0, G0+1], sTag16, "0xffff", o["d3"])
    a(f"v_and_b32 v{G0}, {sHI}, v{G0}\nv_and_b32 v{G0+1}, {sHI}, v{G0+1}\nv_add_u32 v8, {sT1}, v8")
    a(f"ds_write_b64 v8, {r2(G0)} offset:{L_HB}")
    barrier()
    stamp("h3got")
    a("s_cmp_eq_u32 s3, 7\ns_cbranch_scc1 L_noc")
    for q in range(4): a(f"ds_read_b128 {r4(ACC+4*q)}, {vLin} offset:{L_HB + 1024*q}")
    a(f"v_lshrrev_b32 v8, 4, {vLane}\nv_lshlrev_b32 v8, 4, v8\ns_lshl_b32 {sT0}, s68, 6\nv_add_u32 v8, {sT0}, v8")
    a(f"ds_read_b128 {r4(G0)}, v8 offset:{L_HB}\ns_waitcnt lgkmcnt(0)")
    ln_stats(ACC, "v22", "v23", "v8", "v14")
    ln_apply(G0, 20, "v22", "v23")
    gemv(20, TW+16, ACC, 24)
    a(f"s_lshl_b32 {sT0}, s69, 15\ns_lshl_b32 {sT1}, s68, 6\ns_add_u32 {sT0}, {sT0}, {sT1}\ns_add_u32 {sT0}, {sT0}, {WS_H4}")
    pub("v13", sT0)
    a("s_branch L_cd")
    a.label("L_noc")
    a(f"s_cmp_lg_u32 s2, 0\ns_cbranch_scc1 L_cd")
    a(f"v_mov_b32 v8, 0\nv_mov_b32 v14, {sEp}\ns_mov_b64 exec, 1")
    a(f"buffer_store_dword v14, v8, {sWS}, 0 offen offset:{WS_EPOCH} sc1")
    if o["stamps"] == 3: a(f"v_xor_b32 v9, 0x5a5a1234, v14\nbuffer_store_dword v9, v8, {sWS}, 0 offen offset:{WS_EPOCH+4} sc1")
    a("s_mov_b64 exec, -1")
    a.label("L_cd")
    stamp("h4pub")
    a("s_cmp_ge_u32 s2, 224\ns_cbranch_scc1 L_nod")
    a.wait_vm(widx[11])
    wtrans(slot(wslot+8), TW+32)
    a(f"s_lshl_b32 s72, s2, 12\ns_add_u32 s72, s72, {WS_H4}")
    g64("s72", L_R4, o["d4"], "L_g4")
    stamp("h4got")
    a(f"v_cvt_pk_bf16_f32 v20, v{G0}, v{G0+1}\nv_cvt_pk_bf16_f32 v21, v{G0+2}, v{G0+3}")
    a(f"v_lshlrev_b32 v{G0}, 16, v20\nv_and_b32 v{G0+1}, {sHI}, v20\nv_lshlrev_b32 v{G0+2}, 16, v21\nv_and_b32 v{G0+3}, {sHI}, v21")
    for q in range(4): a(f"v_mul_f32 v{24+q}, {sL2E}, v{G0+q}")
    for q in range(4): a(f"v_exp_f32 v{24+q}, -v{24+q}")
    for q in range(4): a(f"v_add_f32 v{24+q}, 1.0, v{24+q}")
    for q in range(4): a(f"v_rcp_f32 v{24+q}, v{24+q}")
    for q in range(4): a(f"v_mul_f32 v{G0+q}, v{G0+q}, v{24+q}")
    a(f"v_cvt_pk_bf16_f32 v20, v{G0}, v{G0+1}\nv_cvt_pk_bf16_f32 v21, v{G0+2}, v{G0+3}")
    gemv(20, TW+32, ACC, 24)
    a(f"s_add_u32 {sT0}, s73, {WS_H5}")
    pub(vPub, sT0)
    a.label("L_nod")
    stamp("h5pub")
    a(f"s_cmp_lg_u32 {sG}, 0\ns_cbranch_scc1 L_fin")
    g256(WS_H5, L_R5, o["d5"], 7, "L_fin")
    bf16r("v16", "v16")
    a(f"v_add_f32 v16, v16, {vH}\nv_cvt_pk_bf16_f32 v16, v16, v16")
    a(f"v_lshlrev_b32 v8, 1, {vLane}\ns_lshl_b32 {sT0}, {sS}, 5\ns_mov_b64 exec, 0xffff")
    a(f"buffer_store_short v16, v8, {sOUT}, {sT0} offen")
    a("s_mov_b64 exec, -1")
    a.label("L_fin")
    if o["stamps"]:
        stamp("end")
        a(f"s_lshl_b32 {sT0}, s2, 3\ns_add_u32 {sT0}, {sT0}, s3\ns_lshl_b32 {sT0}, {sT0}, 7\ns_add_u32 {sT0}, {sT0}, {WS_DBG}")
        a(f"v_lshlrev_b32 v8, 2, {vLane}\ns_mov_b32 exec_hi, 0")
        a(f"buffer_store_dword {vStamp}, v8, {sWS}, {sT0} offen")
        if o["stamps"] == 3:
            a("s_cmp_eq_u32 s97, 0x5a5a1234\ns_cbranch_scc1 L_end")
            a(f"s_or_b32 {sT0}, s2, s3\ns_cmp_lg_u32 {sT0}, 0\ns_cbranch_scc1 L_end")
            a(f"v_readlane_b32 {sT0}, {vStamp}, 0\nv_readlane_b32 {sT1}, {vStamp}, {nst[0]-1}\ns_nop 3\ns_sub_u32 {sT1}, {sT1}, {sT0}\ns_cmp_lt_u32 {sT1}, {o['thr']}\ns_cbranch_scc1 L_end")
            a(f"v_subrev_u32 v9, {sT0}, {vStamp}\nv_cvt_f32_u32 v9, v9\nv_mul_f32 v9, {f32(0.04)}, v9\nv_rndne_f32 v9, v9\nv_cvt_pk_bf16_f32 v9, v9, v9")
            lanes = o.get("lanes", [3, 4, 5, 7, 9, 12, 14, 16])
            a("s_waitcnt vmcnt(0)")
            for n, ln in enumerate(lanes):
                a(f"v_mov_b32 v8, {2*n}\ns_mov_b32 exec_lo, {1 << ln}\nv_mov_b32 v8, {2*n}\nbuffer_store_short v9, v8, {sOUT}, 0 offen\ns_nop 1")
        if o["stamps"] == 2:
            a(f"s_or_b32 {sT0}, s2, s3\ns_cmp_lg_u32 {sT0}, 0\ns_cbranch_scc1 L_end")
            a(f"v_readlane_b32 {sT0}, {vStamp}, 0\nv_subrev_u32 v9, {sT0}, {vStamp}\nv_subrev_u32 v8, 4, v8\ns_mov_b32 exec_lo, 0x1fffe")
            a(f"buffer_store_dword v9, v8, {sDBG}, 0 offen")
    a.label("L_end")
    a("s_endpgm")
    a.raw(f'''.section .rodata,"a"
.p2align 6
.amdhsa_kernel {KN}
  .amdhsa_next_free_vgpr 256
  .amdhsa_next_free_sgpr 102
  .amdhsa_accum_offset 256
  .amdhsa_group_segment_fixed_size 0
  .amdhsa_kernarg_size 88
  .amdhsa_user_sgpr_count 2
  .amdhsa_user_sgpr_kernarg_segment_ptr 1
  .amdhsa_system_sgpr_workgroup_id_x 1
.end_amdhsa_kernel''')
    return a.text()

if __name__ == "__main__":
    kw = {}
    out = sys.argv[1]
    for x in sys.argv[2:]:
        k, v = x.split("="); kw[k] = int(v)
    open(out, "w").write(gen(**kw))
```

```python
import struct, sys
sys.path.insert(0, "work")
from asmlib import Asm
KN = "sequential_preLN__gqa_block_cached__dense_activation_silu__decode_kernel"
def f32(x): return "0x%08x" % struct.unpack("<I", struct.pack("<f", x))[0]

WS_EPOCH = 0
WS_QP = 0x10000
WS_ML = 0x40000
WS_ST = 0x48000
WS_SA = 0x4C000
WS_RS = 0x50000
WS_H2 = 0x70000
WS_H1 = 0xC0000
WS_H4 = 0x200000
WS_H5 = 0x300000
WS_DBG = 0x800000
L_QRED, L_QF, L_ML, L_MLG = 0, 4096, 6144, 6656
L_R2, L_SA, L_M, L_RI, L_R5, L_R1, L_R4, L_B, L_O = 6912, 7168, 7184, 7188, 7424, 8192, 10240, 12288, 16384
L_D = L_O
LDS_BYTES = 49152

DEF = dict(pad=1, xa=1, thr=3600, qbar=1, depth=6, qload_pos=22, qproc_pos=29, ml_pos=16, stamps=0,
           d1=0, d2=16, d4=16, d5=16, back=0, w1late=1, w2late=1, w2pos=0, w1pre=4, w2pre=0, w2p0=0)

def gen(**kw):
    o = dict(DEF); o.update(kw)
    D = o["depth"]
    pad = o["pad"]
    STB, STS = 16384 + 256 * pad, 4096 + 128 * pad
    a = Asm()
    a.raw(open("sequential_preLN__gqa_block_cached__dense_activation_silu__decode.s.ref").read().split("; Override")[0].rstrip())
    a.raw(f"; @launch grid=(256,1,1) block=(512,1,1) lds={LDS_BYTES}")
    a.raw('.amdgcn_target "amdgcn-amd-amdhsa--gfx950"\n.text')
    a.raw(f".globl {KN}\n.p2align 8\n.type {KN},@function\n{KN}:")
    sK, sV, sWS, sX, sWQ, sWO, sW1, sW2, sOUT, sDBG = [f"s[{b}:{b+3}]" for b in (8, 12, 16, 20, 24, 28, 32, 36, 40, 44)]
    sG, sS, sT0, sT1 = "s4", "s5", "s6", "s7"
    sKo, sVo = "s49", "s50"
    sTag8, sTag16, sEp = "s51", "s52", "s53"
    sPL, sPH, sHI, sSC, sL2E, s80 = "s54", "s55", "s56", "s57", "s58", "s59"
    sM4 = "s[60:61]"
    sCnt = "s62"; sT2 = "s63"; sTag2 = "s48"; sA = "s90"; sB = "s91"; sMX = "s92"
    vLane, vKoff, vLin, vMask = "v1", "v2", "v3", "v4"
    vMw, vXr, vH = "v5", "v6", "v7"
    vt = [f"v{i}" for i in range(8, 15)]
    vStamp = "v15"
    S0 = 16
    ACC = 32
    SLOT = 64
    PT = 240
    def slot(i): return SLOT + 4 * i
    def r4(b): return f"v[{b}:{b+3}]"
    def r2(b): return f"v[{b}:{b+1}]"
    nst = [0]
    def stamp(name):
        if not o["stamps"]: return
        a("s_memrealtime s[98:99]\ns_waitcnt lgkmcnt(0)")
        a(f"v_writelane_b32 {vStamp}, s98, {nst[0]}")
        nst[0] += 1
    def bf16r(d, s):
        a(f"v_cvt_pk_bf16_f32 {d}, {s}, {s}\nv_lshlrev_b32 {d}, 16, {d}")
    def red64(op, v, t):
        a(f"v_mov_b32 {t}, {v}\nv_permlane32_swap_b32 {t}, {v}\n{op} {v}, {v}, {t}")
        a(f"v_mov_b32 {t}, {v}\nv_permlane16_swap_b32 {t}, {v}\n{op} {v}, {v}, {t}")
        for k in (8, 4, 2, 1):
            a(f"{op}_dpp {v}, {v}, {v} row_ror:{k} row_mask:0xf bank_mask:0xf")
    def red_rows(op, v, t):
        a(f"v_mov_b32 {t}, {v}\nv_permlane32_swap_b32 {t}, {v}\n{op} {v}, {v}, {t}")
        a(f"v_mov_b32 {t}, {v}\nv_permlane16_swap_b32 {t}, {v}\n{op} {v}, {v}, {t}")
        a(f"{op}_dpp {v}, {v}, {v} row_ror:8 row_mask:0xf bank_mask:0xf")
    def ln_stats(b, vm, vr, t0, t1):
        a(f"v_add_f32 {t0}, v{b}, v{b+1}")
        for i in range(2, 16): a(f"v_add_f32 {t0}, {t0}, v{b+i}")
        red64("v_add_f32", t0, t1)
        a(f"v_mul_f32 {t0}, {f32(1/1024)}, {t0}")
        for i in range(16): a(f"v_sub_f32 v{b+i}, v{b+i}, {t0}")
        a(f"v_mul_f32 {vr}, v{b}, v{b}")
        for i in range(1, 16): a(f"v_fmac_f32 {vr}, v{b+i}, v{b+i}")
        red64("v_add_f32", vr, t1)
        bf16r(vm, t0)
        a(f"v_mul_f32 {vr}, {f32(1/1024)}, {vr}")
        bf16r(vr, vr)
        a(f"v_add_f32 {vr}, {f32(1e-5)}, {vr}")
        bf16r(vr, vr)
        a(f"v_sqrt_f32 {vr}, {vr}")
        bf16r(vr, vr)
        a(f"v_rcp_f32 {vr}, {vr}")
    def ln_apply(h, A, vm, vr):
        for i in range(4): a(f"v_sub_f32 v{h+i}, v{h+i}, {vm}")
        a(f"v_cvt_pk_bf16_f32 v{A}, v{h}, v{h+1}\nv_cvt_pk_bf16_f32 v{A+1}, v{h+2}, v{h+3}")
        a(f"v_lshlrev_b32 v{h}, 16, v{A}\nv_and_b32 v{h+1}, {sHI}, v{A}\nv_lshlrev_b32 v{h+2}, 16, v{A+1}\nv_and_b32 v{h+3}, {sHI}, v{A+1}")
        for i in range(4): a(f"v_mul_f32 v{h+i}, v{h+i}, {vr}")
        a(f"v_cvt_pk_bf16_f32 v{A}, v{h}, v{h+1}\nv_cvt_pk_bf16_f32 v{A+1}, v{h+2}, v{h+3}")
    def wtrans(src, dst):
        for t in range(8):
            for j in range(2):
                a(f"v_perm_b32 v{dst+2*t+j}, v{src+4*(2*j+1)+(t>>1)}, v{src+4*(2*j)+(t>>1)}, {sPH if t & 1 else sPL}")
    def gemv(A, T, Dr, Y, tag=True):
        for t in range(8):
            a(f"v_mfma_f32_16x16x16_bf16 {r4(Dr+4*t)}, {r2(A)}, {r2(T+2*t)}, 0")
        for q in range(4):
            a(f"v_cndmask_b32 v{Y+q}, v{Dr+4*q}, v{Dr+4*(q+4)}, {sM4}")
        if tag:
            for q in range(4): a(f"v_and_or_b32 v{Y+q}, v{Y+q}, {vMask}, {sTag8}")
    lab = [0]; npoll = [0]
    def red4(v, t):
        a(f"v_mov_b32 {t}, {v}\nv_permlane32_swap_b32 {t}, {v}\nv_add_f32 {v}, {v}, {t}")
        a(f"v_mov_b32 {t}, {v}\nv_permlane16_swap_b32 {t}, {v}\nv_add_f32 {v}, {v}, {t}")
    def poll(loads, checks, delay=0, first=True, mid=None):
        n = lab[0]; lab[0] += 1
        a(f"s_mov_b32 {sCnt}, 0")
        if first:
            if delay: a(f"s_sleep {delay}")
            for l in loads: a(l)
            if mid:
                a(f"s_waitcnt vmcnt({len(loads)})"); mid()
            a("s_waitcnt vmcnt(0)")
        a.label(f"L_pollc{n}")
        check(*checks)
        a(f"s_mov_b64 exec, vcc\ns_cbranch_execz L_polld{n}")
        a(f"s_add_u32 {sCnt}, {sCnt}, 1\ns_cmp_gt_u32 {sCnt}, 0x80000\ns_cbranch_scc1 L_end")
        if o["back"]: a(f"s_sleep {o['back']}")
        for l in loads: a(l)
        a(f"s_waitcnt vmcnt(0)\ns_branch L_pollc{n}")
        a.label(f"L_polld{n}")
        a("s_mov_b64 exec, -1")
        if o["stamps"] == 1:
            a(f"s_add_u32 {sCnt}, {sCnt}, 1\nv_writelane_b32 {vStamp}, {sCnt}, {24 + npoll[0]}"); npoll[0] += 1
    def check(regs, tagreg, maskc, full=None):
        c = vt[6]
        a(f"v_xor_b32 {c}, {tagreg}, v{regs[0]}")
        for r in regs[1:]: a(f"v_bitop3_b32 {c}, v{r}, {tagreg}, {c} bitop3:0xbe")
        if len(regs) > 2:
            a(f"v_or_b32_dpp {c}, {c}, {c} quad_perm:[1,0,3,2] row_mask:0xf bank_mask:0xf")
        a(f"v_and_b32 {c}, {maskc}, {c}")
        if full is not None: a(f"v_bitop3_b32 {c}, v{full}, {sEp}, {c} bitop3:0xbe")
        a(f"v_cmp_ne_u32 vcc, 0, {c}")
    def strip(regs):
        for r in regs: a(f"v_and_or_b32 v{r}, v{r}, {vMask}, {s80}")
    def barrier():
        a("s_waitcnt lgkmcnt(0)\ns_barrier")

    a("s_cmp_ge_u32 s2, 0x100\ns_cbranch_scc1 L_end")
    a("s_load_dwordx16 s[64:79], s[0:1], 0\ns_load_dwordx4 s[80:83], s[0:1], 64\ns_load_dwordx2 s[84:85], s[0:1], 80")
    if o["stamps"]: a(f"v_mov_b32 {vStamp}, 0")
    stamp("start")
    if o["stamps"] == 1:
        a(f"s_getreg_b32 s96, hwreg(HW_REG_XCC_ID)\ns_getreg_b32 s97, hwreg(HW_REG_HW_ID)\ns_and_b32 s96, s96, 15\ns_add_u32 s96, s96, 1\nv_writelane_b32 {vStamp}, s96, 23\nv_writelane_b32 {vStamp}, s97, 22")
    a(f"v_and_b32 {vLane}, 63, v0\nv_lshrrev_b32 v8, 6, v0")
    a("v_readfirstlane_b32 s3, v8")
    a(f"v_lshlrev_b32 {vLin}, 4, {vLane}")
    a(f"v_bfe_u32 v8, {vLane}, 1, 1\nv_lshlrev_b32 v8, 10, v8\nv_bfe_u32 v9, {vLane}, 2, 2\nv_lshl_add_u32 v8, v9, 8, v8")
    a(f"v_lshrrev_b32 v9, 4, {vLane}\nv_lshl_add_u32 v8, v9, 5, v8\nv_and_b32 v9, 1, {vLane}\nv_lshl_add_u32 {vKoff}, v9, 4, v8")
    a(f"v_mov_b32 {vMask}, 0xffffff00")
    a(f"s_and_b32 {sG}, s2, 3\ns_lshr_b32 {sS}, s2, 2")
    if o["xa"]:
        a(f"s_lshr_b32 {sA}, s2, 5\ns_lshl_b32 {sA}, {sA}, 3\ns_and_b32 {sB}, s2, 7\ns_or_b32 {sA}, {sA}, {sB}\ns_bfe_u32 {sB}, s2, 0x20003")
    else:
        a(f"s_mov_b32 {sA}, {sS}\ns_mov_b32 {sB}, {sG}")
    a(f"s_mov_b32 {sPL}, 0x05040100\ns_mov_b32 {sPH}, 0x07060302\ns_mov_b32 {sHI}, 0xffff0000")
    a(f"s_mov_b32 {sSC}, {f32(128 ** -0.5)}\ns_mov_b32 {sL2E}, {f32(1.4426950408889634)}\ns_mov_b32 {s80}, 0x80")
    a(f"s_mov_b32 s60, 0xffff0000\ns_mov_b32 s61, 0xffff0000")
    a(f"s_lshl_b32 {sT0}, {sS}, 3\ns_add_u32 {sT0}, {sT0}, s3\ns_lshl_b32 {sT0}, {sT0}, 12\ns_lshl_b32 {sT1}, {sG}, 24\ns_add_u32 {sKo}, {sT0}, {sT1}\ns_mov_b32 {sVo}, {sKo}")
    a(f"v_lshrrev_b32 v9, 4, {vLane}\nv_and_b32 v8, 15, {vLane}\nv_lshlrev_b32 v8, 4, v8\nv_lshl_add_u32 v10, v9, 15, v8")
    a(f"v_lshlrev_b32 v11, 3, v9\nv_lshlrev_b32 v12, 5, {vLane}")
    a("s_waitcnt lgkmcnt(0)")
    def srd(base, p, size):
        a(f"s_mov_b32 s{base}, s{p}\ns_and_b32 s{base+1}, s{p+1}, 0xffff\ns_mov_b32 s{base+2}, {size}\ns_mov_b32 s{base+3}, 0x20000")
    srd(20, 64, 2048); srd(24, 70, 8 << 20); srd(8, 66, 64 << 20)
    XR = PT
    ix0 = a.vm(f"buffer_load_dwordx4 {r4(XR)}, v12, {sX}, 0 offen")
    ix1 = a.vm(f"buffer_load_dwordx4 {r4(XR+4)}, v12, {sX}, 0 offen offset:16")
    a(f"s_lshr_b32 {sT0}, s2, 5\ns_lshl_b32 {sT0}, {sT0}, 3\ns_add_u32 {sT0}, {sT0}, s3")
    a(f"s_lshl_b32 {sT1}, {sT0}, 5")
    ix2 = a.vm(f"buffer_load_dwordx2 {r2(XR+8)}, v11, {sX}, {sT1} offen")
    a(f"s_lshl_b32 {sT0}, {sT0}, 17\ns_and_b32 {sT1}, s2, 31\ns_lshl_b32 {sT1}, {sT1}, 8\ns_add_u32 {sT0}, {sT0}, {sT1}")
    for i in range(4):
        iwq = a.vm(f"buffer_load_dwordx4 {r4(slot(32+i))}, v10, {sWQ}, {sT0} offen nt")
        if i < 3: a(f"s_add_u32 {sT0}, {sT0}, 8192")
    kidx = {}
    def kload(k):
        kidx[k] = a.vm(f"buffer_load_dwordx4 {r4(slot(k))}, {vKoff}, {sK}, {sKo} offen offset:{(k%2)*128 + ((k%4)//2)*2048} nt")
        if k % 4 == 3: a(f"s_add_u32 {sKo}, {sKo}, 0x200000")
    K0 = o.get("k0", D)
    if o["qbar"]: a("s_barrier")
    for k in range(K0): kload(k)
    srd(12, 68, 64 << 20); srd(16, 84, 256 << 20); srd(28, 72, 8 << 20); srd(32, 76, 7 << 20); srd(36, 78, 7 << 20); srd(40, 80, 2048); srd(44, 82, 256)
    a(f"s_load_dword {sEp}, s[84:85], {WS_EPOCH}")
    if o["stamps"] == 3: a(f"s_load_dword s97, s[84:85], {WS_EPOCH+4}\ns_waitcnt lgkmcnt(0)\ns_xor_b32 s97, s97, {sEp}")
    a.wait_vm(ix1)
    XF = ACC
    for i in range(8):
        a(f"v_lshlrev_b32 v{XF+2*i}, 16, v{XR+i}\nv_and_b32 v{XF+2*i+1}, {sHI}, v{XR+i}")
    ln_stats(XF, vt[0], vt[1], vt[2], vt[3])
    a(f"v_readfirstlane_b32 {sMX}, {vt[2]}")
    a.wait_vm(ix2)
    a(f"v_lshlrev_b32 v48, 16, v{XR+8}\nv_and_b32 v49, {sHI}, v{XR+8}\nv_lshlrev_b32 v50, 16, v{XR+9}\nv_and_b32 v51, {sHI}, v{XR+9}")
    ln_apply(48, 52, vt[0], vt[1])
    a(f"v_mov_b32 v16, v52\nv_mov_b32 v17, v53")
    a.wait_vm(iwq)
    stamp("wq")
    wtrans(slot(32), PT)
    gemv(16, PT, ACC, 20, tag=False)
    a(f"v_and_b32 v8, 15, {vLane}\nv_lshlrev_b32 v8, 5, v8\nv_bfe_u32 v9, {vLane}, 4, 1\nv_lshl_add_u32 v8, v9, 4, v8")
    a(f"s_lshl_b32 {sT0}, s3, 9\nv_add_u32 v8, {sT0}, v8")
    a(f"ds_write_b128 v8, {r4(20)} offset:{L_QRED}")
    a(f"s_waitcnt lgkmcnt(0)\ns_add_u32 {sEp}, {sEp}, 1\ns_and_b32 {sTag8}, {sEp}, 0xff\ns_and_b32 {sTag16}, {sEp}, 0xffff\ns_and_b32 {sTag2}, {sEp}, 3")
    a("s_barrier")
    a("s_cmp_lg_u32 s3, 0\ns_cbranch_scc1 L_noq")
    a(f"v_and_b32 v8, 0x1f0, {vLin}")
    for i in range(8): a(f"ds_read_b128 {r4(ACC+4*i)}, v8 offset:{L_QRED + 512*i}")
    a("s_waitcnt lgkmcnt(0)")
    for i in range(1, 8):
        for q in range(4): a(f"v_add_f32 v{ACC+q}, v{ACC+q}, v{ACC+4*i+q}")
    a(f"s_and_b32 {sT0}, s2, 31\ns_lshl_b32 {sT0}, {sT0}, 12\ns_lshr_b32 {sT1}, s2, 5\ns_lshl_b32 {sT1}, {sT1}, 9\ns_add_u32 {sT0}, {sT0}, {sT1}\ns_add_u32 {sT0}, {sT0}, {WS_QP}")
    a("s_mov_b32 exec_hi, 0")
    for q in range(4): a(f"v_and_b32 v{ACC+q}, -4, v{ACC+q}\nv_or_b32 v{ACC+q}, {sTag2}, v{ACC+q}")
    a(f"buffer_store_dwordx4 {r4(ACC)}, v8, {sWS}, {sT0} offen sc1")
    a("s_mov_b64 exec, -1")
    a.label("L_noq")
    stamp("qpub")
    QL = S0
    for k in range(K0, 32):
        a.pace(D); kload(k)
        if k == o["qload_pos"]:
            a(f"s_lshl_b32 {sT0}, {sG}, 3\ns_add_u32 {sT0}, {sT0}, s3\ns_lshl_b32 {sT2}, {sT0}, 12\ns_add_u32 {sT2}, {sT2}, {WS_QP}")
            for i in range(4):
                a.pace(D); iq = a.vm(f"buffer_load_dwordx4 {r4(QL+4*i)}, {vLin}, {sWS}, {sT2} offen offset:{1024*i} sc1")
        if k == o["qproc_pos"]:
            a.wait_vm(iq)
            poll([f"buffer_load_dwordx4 {r4(QL+4*i)}, {vLin}, {sWS}, {sT2} offen offset:{1024*i} sc1" for i in range(4)], (list(range(QL, QL+16)), sTag2, "3"), first=False)
            for q in range(16): a(f"v_and_b32 v{QL+q}, -4, v{QL+q}")
            for q in range(4):
                a(f"v_add_f32 v{QL+q}, v{QL+q}, v{QL+4+q}\nv_add_f32 v{QL+8+q}, v{QL+8+q}, v{QL+12+q}")
            for q in range(4): a(f"v_add_f32 v{QL+q}, v{QL+q}, v{QL+8+q}")
            for q in range(4): a(f"v_mov_b32 v{QL+4+q}, v{QL+q}")
            for q in range(4): a(f"v_permlane32_swap_b32 v{QL+4+q}, v{QL+q}")
            for q in range(4): a(f"v_add_f32 v{QL+q}, v{QL+q}, v{QL+4+q}")
            a(f"v_cvt_pk_bf16_f32 v{QL+8}, v{QL}, v{QL+1}\nv_cvt_pk_bf16_f32 v{QL+9}, v{QL+2}, v{QL+3}")
            a(f"v_and_b32 v8, 31, {vLane}\nv_lshlrev_b32 v8, 3, v8\ns_lshl_b32 {sT0}, s3, 8\nv_add_u32 v8, {sT0}, v8")
            a(f"ds_write_b64 v8, {r2(QL+8)} offset:{L_QF}")
            barrier()
            a(f"v_and_b32 v8, 7, {vLane}\nv_lshlrev_b32 v8, 8, v8\nv_lshrrev_b32 v9, 4, {vLane}\nv_lshl_add_u32 v8, v9, 5, v8\nv_bfe_u32 v9, {vLane}, 3, 1\nv_lshl_add_u32 v8, v9, 4, v8")
            a(f"ds_read_b128 {r4(PT)}, v8 offset:{L_QF}\nds_read_b128 {r4(PT+4)}, v8 offset:{L_QF+128}")
            stamp("qready")
    seq = [("w", n) for n in range(4)]
    if not o["w1late"]: seq += [("w", n) for n in range(4, 8)]
    if not o["w2late"]: seq += [("w", n) for n in range(8, 12)]
    seq += [("v", i) for i in range(32)]
    order = list(range(32, 44)) + list(range(32))
    place = {e: order[k] for k, e in enumerate(seq)}
    rest = order[len(seq):]
    for n in range(12):
        if ("w", n) not in place: place[("w", n)] = rest.pop(0)
    def vslot(i): return place[("v", i)]
    def wsl(m): return slot(place[("w", 4*m)])
    widx = {}
    def wsetup():
        a(f"v_lshrrev_b32 v9, 4, {vLane}\nv_and_b32 v8, 15, {vLane}\nv_lshlrev_b32 v8, 4, v8\nv_lshl_add_u32 v12, v9, 13, v8")
        a(f"v_mul_u32_u24 v9, {4*7168}, v9\nv_add_u32 v13, v9, v8")
        a(f"s_lshl_b32 s64, {sA}, 17\ns_lshr_b32 {sT0}, s3, 1\ns_lshl_b32 {sT0}, {sT0}, 15\ns_add_u32 s64, s64, {sT0}")
        a(f"s_lshl_b32 {sT0}, {sB}, 9\ns_add_u32 s64, s64, {sT0}\ns_and_b32 {sT0}, s3, 1\ns_lshl_b32 {sT0}, {sT0}, 8\ns_add_u32 s64, s64, {sT0}\ns_mov_b32 s66, s64")
        a(f"s_mul_i32 s69, {sB}, 7\ns_add_u32 s69, s69, s3")
        a(f"s_mul_i32 s65, {sA}, {16*7168}\ns_lshl_b32 {sT0}, s69, 8\ns_add_u32 s65, s65, {sT0}")
        a(f"s_cmp_eq_u32 s3, 7\ns_cselect_b32 s65, 0x7000000, s65")
    def wload(n):
        m, i = n // 4, n % 4
        srd_, vo, sb, st = [(sWO, "v12", "s64", 2048), (sW1, "v13", "s65", 7168), (sW2, "v12", "s66", 2048)][m]
        widx[n] = a.vm(f"buffer_load_dwordx4 {r4(slot(place[('w', n)]))}, {vo}, {srd_}, {sb} offen nt")
        if i < 3: a(f"s_add_u32 {sb}, {sb}, {st}")
    vidx = {}
    def vload(i):
        vidx[i] = a.vm(f"buffer_load_dwordx4 {r4(slot(vslot(i)))}, {vLin}, {sV}, {sVo} offen offset:{(i%4)*1024} nt")
        if i % 4 == 3: a(f"s_add_u32 {sVo}, {sVo}, 0x200000")
    wsetup()
    def issue(n):
        for _ in range(n):
            kind, i = seq.pop(0)
            a.pace(D)
            (vload if kind == "v" else wload)(i)
    issue(D)
    a.wait_vm(kidx[31])
    stamp("kdone")
    a("s_waitcnt lgkmcnt(0)")
    for half in range(2):
        for jj in range(8):
            j = half * 8 + jj
            a(f"v_mfma_f32_16x16x32_bf16 {r4(ACC+4*jj)}, {r4(slot(2*j))}, {r4(PT)}, 0")
        for jj in range(8):
            j = half * 8 + jj
            a(f"v_mfma_f32_16x16x32_bf16 {r4(ACC+4*jj)}, {r4(slot(2*j+1))}, {r4(PT+4)}, {r4(ACC+4*jj)}")
        for jj in range(8):
            j = half * 8 + jj; d = ACC + 4 * jj
            a(f"v_add_f32_dpp v{S0+j}, v{d+1}, v{d} row_ror:8 row_mask:0xf bank_mask:0x3")
            a(f"v_add_f32_dpp v{S0+j}, v{d+2}, v{d+3} row_ror:8 row_mask:0xf bank_mask:0xc")
    for j in range(0, 16, 2):
        x, y = f"v{S0+j}", f"v{S0+j+1}"
        a(f"v_cvt_pk_bf16_f32 v8, {x}, {y}\nv_lshlrev_b32 {x}, 16, v8\nv_and_b32 {y}, {sHI}, v8")
        a(f"v_mul_f32 {x}, {sSC}, {x}\nv_mul_f32 {y}, {sSC}, {y}")
        a(f"v_cvt_pk_bf16_f32 v8, {x}, {y}\nv_lshlrev_b32 {x}, 16, v8\nv_and_b32 {y}, {sHI}, v8")
    a(f"v_max3_f32 {vMw}, v{S0}, v{S0+1}, v{S0+2}")
    for j in range(3, 15, 2): a(f"v_max3_f32 {vMw}, {vMw}, v{S0+j}, v{S0+j+1}")
    a(f"v_max_f32 {vMw}, {vMw}, v{S0+15}")
    red_rows("v_max_f32", vMw, "v8")
    for j in range(16): a(f"v_sub_f32 v{S0+j}, v{S0+j}, {vMw}")
    for j in range(16): a(f"v_mul_f32 v{S0+j}, {sL2E}, v{S0+j}")
    for j in range(16): a(f"v_exp_f32 v{S0+j}, v{S0+j}")
    a(f"v_add_f32 v11, v{S0}, v{S0+1}")
    for j in range(2, 16): a(f"v_add_f32 v11, v11, v{S0+j}")
    red_rows("v_add_f32", "v11", "v8")
    a(f"v_mov_b32 v10, {vMw}")
    a(f"v_and_b32 v8, 7, {vLane}\nv_lshlrev_b32 v8, 3, v8\ns_lshl_b32 {sT0}, s3, 6\nv_add_u32 v8, {sT0}, v8")
    a(f"ds_write_b64 v8, v[10:11] offset:{L_ML}")
    barrier()
    a("s_cmp_lg_u32 s3, 0\ns_cbranch_scc1 L_noml")
    a(f"v_lshlrev_b32 v8, 3, {vLane}\nds_read_b64 v[10:11], v8 offset:{L_ML}\ns_waitcnt lgkmcnt(0)")
    a("v_mov_b32 v9, v10")
    red_rows("v_max_f32", "v9", "v8")
    a(f"v_sub_f32 v10, v10, v9\nv_mul_f32 v10, {sL2E}, v10\nv_exp_f32 v10, v10\nv_mul_f32 v11, v11, v10")
    red_rows("v_add_f32", "v11", "v8")
    a(f"v_or_b32 v10, {sTag16}, v9\nv_and_or_b32 v11, v11, {vMask}, {sTag8}")
    a(f"v_lshlrev_b32 v8, 9, {vLane}\ns_lshl_b32 {sT0}, {sG}, 12\ns_lshl_b32 {sT1}, {sS}, 3\ns_add_u32 {sT0}, {sT0}, {sT1}\ns_add_u32 {sT0}, {sT0}, {WS_ML}")
    a("s_mov_b64 exec, 0xff")
    a(f"buffer_store_dwordx2 v[10:11], v8, {sWS}, {sT0} offen sc1")
    a("s_mov_b64 exec, -1")
    a.label("L_noml")
    stamp("mlpub")
    def pv(u):
        for dp in range(4):
            tb = PT + 8 * (dp & 1)
            for b in range(2):
                for j in range(4):
                    a(f"v_perm_b32 v{tb+4*b+j}, v{slot(vslot(8*u+2*j+1))+dp}, v{slot(vslot(8*u+2*j))+dp}, {sPH if b else sPL}")
            for b in range(2):
                t = 2 * dp + b
                c = "0" if u == 0 else r4(ACC + 4 * t)
                a(f"v_mfma_f32_16x16x32_bf16 {r4(ACC+4*t)}, {r4(S0+4*u)}, {r4(tb+4*b)}, {c}")
    pvdone = 0; fready = False; iml = None; rsdone = False; irs = None
    Y = 26
    SPARE = slot(vslot(0))
    RSK, XK = SPARE, SPARE + 4
    vA4, vA8 = "v2", "v6"
    a(f"v_lshrrev_b32 v14, 4, {vLane}\nv_lshlrev_b32 v14, 4, v14\nv_and_b32 v8, 3, {vLane}\nv_lshl_add_u32 {vA4}, v8, 6, v14\nv_and_b32 v8, 7, {vLane}\nv_lshl_add_u32 {vA8}, v8, 6, v14")
    a(f"s_lshl_b32 s72, {sA}, 11\ns_lshr_b32 {sT0}, s3, 1\ns_lshl_b32 {sT0}, {sT0}, 9\ns_add_u32 s72, s72, {sT0}\ns_add_u32 s72, s72, {WS_RS}")
    while seq:
        issue(1)
        nv = len(vidx)
        if not rsdone and a.done > widx[3]:
            assert not fready
            a("v_mov_b32 v8, 0x3f803f80")
            for i in range(4): a(f"v_mov_b32 v{ACC+i}, 0")
            for d in range(4):
                for i in range(4): a(f"v_dot2_f32_bf16 v{ACC+i}, v{wsl(0)+4*i+d}, v8, v{ACC+i}")
            for k in (8, 4, 2, 1):
                for i in range(4): a(f"v_add_f32_dpp v{ACC+i}, v{ACC+i}, v{ACC+i} row_ror:{k} row_mask:0xf bank_mask:0xf")
            for i in range(4): a(f"v_and_or_b32 v{ACC+i}, v{ACC+i}, {vMask}, {sTag8}")
            a(f"s_lshl_b32 {sT0}, {sB}, 1\ns_and_b32 {sT1}, s3, 1\ns_add_u32 {sT0}, {sT0}, {sT1}\ns_lshl_b32 {sT0}, {sT0}, 6\ns_add_u32 {sT0}, {sT0}, s72")
            a("s_mov_b32 exec_lo, 0x10001\ns_mov_b32 exec_hi, 0x10001")
            a.pace(D); a.vm(f"buffer_store_dwordx4 {r4(ACC)}, {vA4}, {sWS}, {sT0} offen sc1")
            a("s_mov_b64 exec, -1")
            rsdone = True
        if iml is None and nv > o["ml_pos"]:
            a(f"v_lshlrev_b32 v8, 3, {vLane}\ns_lshl_b32 {sT0}, {sG}, 3\ns_add_u32 {sT0}, {sT0}, s3\ns_lshl_b32 s70, {sT0}, 9\ns_add_u32 s70, s70, {WS_ML}")
            a.pace(D); iml = a.vm(f"buffer_load_dwordx2 v[10:11], v8, {sWS}, s70 offen sc1")
        if iml is not None and not fready and (a.done > iml or not seq):
            a.wait_vm(iml)
            a(f"v_xor_b32 v14, {sTag16}, v10\nv_and_b32 v14, 0xffff, v14\nv_xor_b32 v9, {sTag8}, v11\nv_and_b32 v9, 0xff, v9\nv_or_b32 v14, v14, v9")
            a("v_cmp_ne_u32 vcc, 0, v14\ns_cbranch_vccz L_mlok")
            a(f"s_mov_b32 {sCnt}, 0")
            a.label("L_mlspin")
            a(f"buffer_load_dwordx2 v[10:11], v8, {sWS}, s70 offen sc1\ns_waitcnt vmcnt(0)")
            a(f"s_add_u32 {sCnt}, {sCnt}, 1\ns_cmp_gt_u32 {sCnt}, 0x80000\ns_cbranch_scc1 L_end")
            a(f"v_xor_b32 v14, {sTag16}, v10\nv_and_b32 v14, 0xffff, v14\nv_xor_b32 v9, {sTag8}, v11\nv_and_b32 v9, 0xff, v9\nv_or_b32 v14, v14, v9")
            a("v_cmp_ne_u32 vcc, 0, v14\ns_cbranch_vccnz L_mlspin")
            a.label("L_mlok")
            a(f"v_and_b32 v10, {sHI}, v10\nv_and_or_b32 v11, v11, {vMask}, {s80}\nv_mov_b32 v9, v10")
            red64("v_max_f32", "v9", "v8")
            a(f"v_sub_f32 v10, v10, v9\nv_mul_f32 v10, {sL2E}, v10\nv_exp_f32 v10, v10\nv_mul_f32 v11, v11, v10")
            red64("v_add_f32", "v11", "v8")
            a(f"v_rcp_f32 v11, v11\nv_mov_b32 v10, v9\ns_lshl_b32 {sT0}, s3, 3\nv_mov_b32 v8, {sT0}")
            a(f"ds_write_b64 v8, v[10:11] offset:{L_MLG}")
            barrier()
            a(f"v_and_b32 v8, 7, {vLane}\nv_lshlrev_b32 v8, 3, v8\nds_read_b64 v[10:11], v8 offset:{L_MLG}\ns_waitcnt lgkmcnt(0)")
            a(f"v_sub_f32 v10, {vMw}, v10\nv_mul_f32 v10, {sL2E}, v10\nv_exp_f32 v10, v10\nv_mul_f32 v10, v10, v11")
            a(f"v_bfe_u32 v9, {vLane}, 3, 1\nv_cmp_eq_u32 vcc, 1, v9\nv_mov_b32 v9, 0xffff\nv_mov_b32 v8, {sHI}\nv_cndmask_b32 v9, v9, v8, vcc")
            for j in range(16): a(f"v_mul_f32 v{S0+j}, v{S0+j}, v10")
            for j in range(16): a(f"v_cvt_pk_bf16_f32 v{S0+j}, v{S0+j}, v{S0+j}")
            for j in range(16): a(f"v_and_b32 v{S0+j}, v{S0+j}, v9")
            fready = True
            stamp("fready")
        while fready and pvdone < 4 and (8 * pvdone + 7) in vidx and a.done > vidx[8 * pvdone + 7]:
            pv(pvdone); pvdone += 1
            if pvdone == 2:
                a.pace(D); irs = a.vm(f"buffer_load_dwordx4 {r4(RSK)}, {vA8}, {sWS}, s72 offen sc1")
                a(f"v_lshrrev_b32 v8, 4, {vLane}\nv_lshlrev_b32 v8, 3, v8\ns_lshl_b32 {sT0}, {sA}, 5")
                a.pace(D); ixr = a.vm(f"buffer_load_dwordx2 {r2(XK)}, v8, {sX}, {sT0} offen")
    vRW, vOW, vH1, vPub4, vRP, vAO, vRB = "v9", "v10", "v11", "v5", "v7", "v30", "v31"
    G0, AO = 16, 24
    HK = SPARE + 8
    TW = SPARE + 16
    DR = ACC
    def q16(b, lb):
        a(f"v_permlane32_swap_b32 v{b}, v{b+1}\nv_permlane32_swap_b32 v{b+2}, v{b+3}")
        a(f"v_add_f32 v{b}, v{b}, v{b+1}\nv_add_f32 v{b+2}, v{b+2}, v{b+3}")
        a(f"v_permlane16_swap_b32 v{b}, v{b+2}\nv_add_f32 v{b}, v{b}, v{b+2}")
        for k in (4, 8): a(f"v_add_f32_dpp v{b}, v{b}, v{b} row_ror:{k} row_mask:0xf bank_mask:0xf")
        a(f"ds_write_b32 {vRW}, v{b} offset:{lb}")
    def dppsum(regs, n):
        for pat in ("quad_perm:[1,0,3,2]", "quad_perm:[2,3,0,1]", "row_half_mirror")[:n]:
            for r in regs: a(f"v_add_f32_dpp v{r}, v{r}, v{r} {pat} row_mask:0xf bank_mask:0xf")
    def unpack4(d, p):
        a(f"v_lshlrev_b32 v{d}, 16, v{p}\nv_and_b32 v{d+1}, {sHI}, v{p}\nv_lshlrev_b32 v{d+2}, 16, v{p+1}\nv_and_b32 v{d+3}, {sHI}, v{p+1}")
    def pack4(p, d):
        a(f"v_cvt_pk_bf16_f32 v{p}, v{d}, v{d+1}\nv_cvt_pk_bf16_f32 v{p+1}, v{d+2}, v{d+3}")
    def ldx4(r, vo, so, off=0): return f"buffer_load_dwordx4 {r4(r)}, {vo}, {sWS}, {so} offen offset:{off} sc1"
    R8 = list(range(G0, G0+8)); R4_ = list(range(G0, G0+4))
    def latew(m, upto=4):
        for n in range(4*m, 4*m+upto):
            if n not in widx: wload(n)
    def mfma8(A, T):
        for t in range(8): a(f"v_mfma_f32_16x16x16_bf16 {r4(DR+4*t)}, {r2(A)}, {r2(T+2*t)}, 0")
    def sel4(tag):
        for q in range(4): a(f"v_cndmask_b32 v{Y+q}, v{DR+4*q}, v{DR+4*(q+4)}, {sM4}")
        if tag:
            for q in range(4): a(f"v_and_or_b32 v{Y+q}, v{Y+q}, {vMask}, {sTag8}")
    def big_reduce(lb):
        strip(R8)
        for q in range(4): a(f"v_add_f32 v{G0+q}, v{G0+q}, v{G0+4+q}")
        a(f"v_permlane32_swap_b32 v{G0}, v{G0+1}\nv_permlane32_swap_b32 v{G0+2}, v{G0+3}")
        a(f"v_add_f32 v{G0}, v{G0}, v{G0+1}\nv_add_f32 v{G0+2}, v{G0+2}, v{G0+3}\nv_permlane16_swap_b32 v{G0}, v{G0+2}\nv_add_f32 v{G0}, v{G0}, v{G0+2}")
        a(f"ds_write_b32 {vRP}, v{G0} offset:{lb}")
    def cu_reduce_pub(lb, sdst, lab_, extra=None):
        a(f"s_cmp_lg_u32 s3, 0\ns_cbranch_scc1 {lab_}")
        for i in range(4): a(f"ds_read_b128 {r4(ACC+4*i)}, {vLin} offset:{lb + 1024*i}")
        if extra: a(f"v_mov_b32 v8, 0\nds_read_b128 {r4(G0)}, v8 offset:{L_SA}")
        for i in range(1, 4):
            a(f"s_waitcnt lgkmcnt({3 - i + (1 if extra else 0)})")
            for q in range(4): a(f"v_add_f32 v{ACC+q}, v{ACC+q}, v{ACC+4*i+q}")
        for q in range(4): a(f"v_and_or_b32 v{ACC+q}, v{ACC+q}, {vMask}, {sTag8}")
        a(f"buffer_store_dwordx4 {r4(ACC)}, {vOW}, {sWS}, {sdst} offen sc1")
        if extra: extra()
        a.label(lab_)
    def pub2(base):
        a(f"v_mov_b32 v{Y+2}, {sEp}\nv_mov_b32 v{Y+3}, {sEp}")
        a(f"v_lshlrev_b32 v8, 10, {vLane}\ns_lshl_b32 {sT0}, {sB}, 11\ns_lshl_b32 {sT1}, {sA}, 4\ns_add_u32 {sT0}, {sT0}, {sT1}\ns_add_u32 {sT0}, {sT0}, {base}")
        a("s_mov_b64 exec, 3")
        a(f"buffer_store_dwordx4 {r4(Y)}, v8, {sWS}, {sT0} offen sc1")
    a(f"v_bfe_u32 v14, {vLane}, 4, 1\nv_lshlrev_b32 v8, 3, v14\nv_lshrrev_b32 v14, 5, {vLane}\nv_lshl_add_u32 v8, v14, 2, v8")
    a(f"v_and_b32 v14, 3, {vLane}\nv_lshl_add_u32 {vRW}, v14, 4, v8\ns_lshl_b32 {sT0}, s3, 6\nv_add_u32 {vRW}, {sT0}, {vRW}")
    a(f"v_and_b32 v14, 15, {vLane}\nv_lshl_add_u32 {vRP}, v14, 4, v8\ns_lshl_b32 {sT0}, s3, 8\nv_add_u32 {vRP}, {sT0}, {vRP}")
    a(f"v_and_b32 v8, 15, {vLane}\nv_lshlrev_b32 v8, 5, v8\nv_lshrrev_b32 v14, 5, {vLane}\nv_lshl_add_u32 v8, v14, 4, v8\nv_bfe_u32 v14, {vLane}, 4, 1\nv_lshl_add_u32 v8, v14, 9, v8")
    a(f"s_lshl_b32 {sT0}, s3, 12\nv_add_u32 {vOW}, {sT0}, v8")
    a(f"v_lshrrev_b32 v8, 5, {vLane}\nv_lshlrev_b32 v8, 3, v8\nv_bfe_u32 v14, {vLane}, 4, 1\nv_add_u32 v8, v8, v14\nv_mul_u32_u24 v8, {STB}, v8\nv_and_b32 v14, 15, {vLane}\nv_lshl_add_u32 {vH1}, v14, 4, v8")
    a(f"s_mul_i32 s71, {sG}, {16*STB}\ns_mul_i32 {sT0}, s3, {2*STB}\ns_add_u32 s71, s71, {sT0}\ns_lshl_b32 {sT0}, {sS}, 8\ns_add_u32 s71, s71, {sT0}\ns_add_u32 s71, s71, {WS_H1}")
    a(f"v_bfe_u32 v8, {vLane}, 3, 1\nv_mul_u32_u24 v8, {STB}, v8\nv_and_b32 v14, 7, {vLane}\nv_lshl_add_u32 v8, v14, 5, v8\nv_bfe_u32 v14, {vLane}, 4, 1\nv_lshl_add_u32 {vPub4}, v14, 4, v8")
    a(f"s_mul_i32 s73, s69, {2*STB}\ns_lshl_b32 {sT0}, {sA}, 8\ns_add_u32 s73, s73, {sT0}\ns_add_u32 s73, s73, {WS_H4}")
    a(f"s_mul_i32 s74, {sA}, {STB}\ns_lshl_b32 {sT0}, s3, 11\ns_add_u32 s74, s74, {sT0}")
    a(f"s_mul_i32 s75, {sB}, {16*STS}\ns_lshl_b32 {sT0}, {sA}, 6\ns_add_u32 s75, s75, {sT0}")
    a(f"s_mul_i32 s76, {sA}, {STS}\ns_lshl_b32 {sT0}, s3, 10\ns_add_u32 s76, s76, {sT0}")
    a(f"s_and_b32 s77, s2, 7\ns_lshl_b32 s77, s77, 10")
    a.wait_vm(ixr)
    poll([ldx4(RSK, vA8, "s72")], (list(range(RSK, RSK+4)), sTag8, "0xff"), first=False)
    strip(range(RSK, RSK+4))
    dppsum(range(RSK, RSK+4), 3)
    unpack4(HK, XK)
    while pvdone < 4:
        a.wait_vm(vidx[8 * pvdone + 7]); pv(pvdone); pvdone += 1
    stamp("vdone")
    for r in range(4):
        for t in range(4):
            a(f"v_permlane32_swap_b32 v{ACC+4*t+r}, v{ACC+4*(t+4)+r}")
        for t in range(4):
            a(f"v_add_f32 v{PT+4*r+t}, v{ACC+4*t+r}, v{ACC+4*(t+4)+r}")
        a(f"ds_write_b128 {vOW}, {r4(PT+4*r)} offset:{L_O + 1024*r}")
    barrier()
    a("s_cmp_ge_u32 s3, 4\ns_cbranch_scc1 L_noh1")
    a(f"s_lshl_b32 {sT0}, s3, 10\nv_add_u32 v8, {sT0}, {vLin}")
    for i in range(8): a(f"ds_read_b128 {r4(ACC+4*i)}, v8 offset:{L_O + 4096*i}")
    for i in range(1, 8):
        a(f"s_waitcnt lgkmcnt({7-i})")
        for q in range(4): a(f"v_add_f32 v{ACC+q}, v{ACC+q}, v{ACC+4*i+q}")
    for q in range(4): a(f"v_and_or_b32 v{ACC+q}, v{ACC+q}, {vMask}, {sTag8}")
    a(f"buffer_store_dwordx4 {r4(ACC)}, {vH1}, {sWS}, s71 offen sc1")
    a.label("L_noh1")
    stamp("h1pub")
    if o["w1late"]: latew(1, o["w1pre"])
    if o["w2late"]: latew(2, o["w2p0"])
    wtrans(wsl(0), TW)
    a(f"v_and_b32 v8, 7, {vLane}\nv_lshlrev_b32 v8, 8, v8\nv_lshrrev_b32 v14, 4, {vLane}\nv_lshl_add_u32 v8, v14, 4, v8\ns_lshr_b32 {sT0}, s3, 1\ns_lshl_b32 {sT0}, {sT0}, 6\nv_add_u32 {vAO}, {sT0}, v8")
    a(f"v_and_b32 v8, 15, {vLane}\nv_lshlrev_b32 v8, 5, v8\nv_bfe_u32 v14, {vLane}, 4, 1\nv_lshl_add_u32 v8, v14, 4, v8\ns_lshl_b32 {sT0}, s3, 9\nv_add_u32 {vRB}, {sT0}, v8")
    a(f"v_lshrrev_b32 v8, 2, {vLane}\nv_mul_u32_u24 v8, {STS}, v8\nv_and_b32 v14, 3, {vLane}\nv_lshl_add_u32 {vOW}, v14, 4, v8")
    a(f"s_lshr_b32 {sT0}, s3, 1\ns_lshl_b32 {sT0}, {sT0}, 2\nv_mov_b32 {vH1}, {sT0}")
    a(f"s_add_u32 {sT0}, s74, {WS_H1}")
    poll([ldx4(G0, vLin, sT0), ldx4(G0+4, vLin, sT0, 1024)], (R8, sTag8, "0xff"), o["d1"])
    if o["w1late"]: latew(1)
    if o["w2late"] and o["w2pos"] == 1: latew(2)
    if o["w2late"]: latew(2, o["w2pre"])
    big_reduce(L_R1)
    barrier()
    a(f"ds_read_b128 {r4(G0)}, {vAO} offset:{L_R1}\ns_waitcnt lgkmcnt(0)")
    dppsum(R4_, 3)
    stamp("h1got")
    pack4(AO, G0)
    mfma8(AO, TW)
    unpack4(G0, AO)
    a(f"v_mul_f32 v{G0}, v{G0}, v{RSK}")
    for q in range(1, 4): a(f"v_fmac_f32 v{G0}, v{G0+q}, v{RSK+q}")
    red4(f"v{G0}", "v8")
    a(f"ds_write_b32 {vH1}, v{G0} offset:{L_SA}")
    sel4(False)
    a(f"ds_write_b128 {vRB}, {r4(Y)} offset:{L_B}")
    barrier()
    def sapub():
        a(f"s_waitcnt lgkmcnt(0)\nv_add_f32 v{G0}, v{G0}, v{G0+1}\nv_add_f32 v{G0+2}, v{G0+2}, v{G0+3}\nv_add_f32 v{Y}, v{G0}, v{G0+2}")
        a(f"v_and_or_b32 v{Y}, v{Y}, {vMask}, {sTag8}\nv_mov_b32 v{Y+1}, {sTag8}")
        pub2(WS_SA)
        a("s_mov_b64 exec, -1")
    a(f"s_add_u32 s78, s75, {WS_H2}")
    cu_reduce_pub(L_B, "s78", "L_nob", sapub)
    stamp("h2pub")
    tr1 = lambda: wtrans(wsl(1), TW)
    a("s_cmp_ge_u32 s3, 4\ns_cbranch_scc1 L_g2s")
    a(f"s_add_u32 {sT0}, s76, {WS_H2}")
    poll([ldx4(G0, vLin, sT0)], (R4_, sTag8, "0xff"), o["d2"], mid=tr1)
    strip(R4_)
    q16(G0, L_R2)
    a("s_branch L_g2")
    a.label("L_g2s")
    a("s_cmp_eq_u32 s3, 4\ns_cbranch_scc1 L_g2m\ns_waitcnt vmcnt(0)")
    tr1()
    a("s_branch L_g2")
    a.label("L_g2m")
    a(f"s_add_u32 {sT0}, s77, {WS_SA}")
    poll([ldx4(G0, vLin, sT0)], ([G0, G0+1], sTag8, "0xff", G0+2), o["d2"], mid=tr1)
    strip([G0])
    red64("v_add_f32", f"v{G0}", "v8")
    a(f"v_mov_b32 v8, {sMX}\nv_fmac_f32 v8, {f32(1/1024)}, v{G0}")
    bf16r("v8", "v8")
    a(f"v_mov_b32 v14, 0\nds_write_b32 v14, v8 offset:{L_M}")
    a.label("L_g2")
    if o["w2late"] and o["w2pos"] == 0: latew(2)
    barrier()
    a(f"v_mov_b32 v8, 0\nds_read_b128 {r4(G0)}, {vA4} offset:{L_R2}\nds_read_b32 v14, v8 offset:{L_M}\ns_waitcnt lgkmcnt(1)")
    dppsum(R4_, 2)
    stamp("h2got")
    pack4(AO, G0); unpack4(G0, AO)
    for q in range(4): a(f"v_add_f32 v{G0+q}, v{G0+q}, v{HK+q}")
    pack4(AO, G0); unpack4(HK, AO)
    a("s_waitcnt lgkmcnt(0)")
    for q in range(4): a(f"v_sub_f32 v{G0+q}, v{HK+q}, v14")
    a("s_cmp_eq_u32 s3, 7\ns_cbranch_scc1 L_stat")
    pack4(AO, G0)
    mfma8(AO, TW)
    sel4(True)
    a("s_mov_b32 exec_hi, 0")
    a(f"buffer_store_dwordx4 {r4(Y)}, {vPub4}, {sWS}, s73 offen sc1")
    a("s_branch L_cd")
    a.label("L_stat")
    a(f"v_add_f32 v{Y}, v{G0}, v{G0+1}\nv_add_f32 v8, v{G0+2}, v{G0+3}\nv_mul_f32 v{Y+1}, v{G0}, v{G0}\nv_add_f32 v{Y}, v{Y}, v8")
    for q in range(1, 4): a(f"v_fmac_f32 v{Y+1}, v{G0+q}, v{G0+q}")
    red4(f"v{Y}", "v8"); red4(f"v{Y+1}", "v14")
    a(f"v_and_or_b32 v{Y}, v{Y}, {vMask}, {sTag8}\nv_and_or_b32 v{Y+1}, v{Y+1}, {vMask}, {sTag8}")
    pub2(WS_ST)
    a(f"s_cmp_lg_u32 s2, 0\ns_cbranch_scc1 L_cd")
    a(f"s_mov_b64 exec, 1\nbuffer_store_dword v{Y+2}, v8, {sWS}, 0 offen offset:{WS_EPOCH} sc1")
    if o["stamps"] == 3: a(f"v_xor_b32 v14, 0x5a5a1234, v{Y+2}\nbuffer_store_dword v14, v8, {sWS}, 0 offen offset:{WS_EPOCH+4} sc1")
    a.label("L_cd")
    a("s_mov_b64 exec, -1")
    if o["w2late"] and o["w2pos"] == 2: latew(2)
    stamp("h4pub")
    a(f"s_cmp_ge_u32 {sA}, 56\ns_cbranch_scc1 L_nod")
    a(f"s_add_u32 {sT0}, s74, {WS_H4}")
    tr2 = lambda: wtrans(wsl(2), TW)
    a("s_cmp_eq_u32 s3, 7\ns_cbranch_scc1 L_g4s")
    poll([ldx4(G0, vLin, sT0), ldx4(G0+4, vLin, sT0, 1024)], (R8, sTag8, "0xff"), o["d4"], mid=tr2)
    big_reduce(L_R4)
    a("s_branch L_g4")
    a.label("L_g4s")
    a(f"s_add_u32 {sT1}, s77, {WS_ST}")
    poll([ldx4(G0, vLin, sT0), ldx4(G0+4, vLin, sT0, 1024), ldx4(Y, vLin, sT1)], (R8 + [Y, Y+1], sTag8, "0xff", Y+2), o["d4"], mid=tr2)
    big_reduce(L_R4)
    strip([Y, Y+1])
    a(f"v_permlane32_swap_b32 v{Y}, v{Y+1}\nv_add_f32 v{G0}, v{Y}, v{Y+1}")
    a(f"v_mov_b32 v8, v{G0}\nv_permlane16_swap_b32 v8, v{G0}\nv_add_f32 v{G0}, v{G0}, v8")
    for k in (8, 4, 2, 1): a(f"v_add_f32_dpp v{G0}, v{G0}, v{G0} row_ror:{k} row_mask:0xf bank_mask:0xf")
    a(f"v_mul_f32 v{G0}, {f32(1/1024)}, v{G0}\nv_mov_b32 v8, v{G0}\nv_permlane32_swap_b32 v8, v{G0}")
    vr = f"v{G0}"
    a(f"v_fma_f32 {vr}, -v8, v8, {vr}\nv_max_f32 {vr}, 0, {vr}"); bf16r(vr, vr)
    a(f"v_add_f32 {vr}, {f32(1e-5)}, {vr}"); bf16r(vr, vr)
    a(f"v_sqrt_f32 {vr}, {vr}"); bf16r(vr, vr)
    a(f"v_rcp_f32 {vr}, {vr}\nv_mov_b32 v8, 0\nds_write_b32 v8, {vr} offset:{L_RI}")
    a.label("L_g4")
    barrier()
    a(f"v_mov_b32 v8, 0\nds_read_b128 {r4(G0)}, {vAO} offset:{L_R4}\nds_read_b32 v14, v8 offset:{L_RI}\ns_waitcnt lgkmcnt(1)")
    dppsum(R4_, 3)
    a("s_waitcnt lgkmcnt(0)")
    stamp("h4got")
    for q in range(4): a(f"v_mul_f32 v{G0+q}, v{G0+q}, v14")
    pack4(AO, G0); unpack4(G0, AO)
    for q in range(4): a(f"v_mul_f32 v{G0+4+q}, {sL2E}, v{G0+q}")
    for q in range(4): a(f"v_exp_f32 v{G0+4+q}, -v{G0+4+q}")
    for q in range(4): a(f"v_add_f32 v{G0+4+q}, 1.0, v{G0+4+q}")
    for q in range(4): a(f"v_rcp_f32 v{G0+4+q}, v{G0+4+q}")
    for q in range(4): a(f"v_mul_f32 v{G0+q}, v{G0+q}, v{G0+4+q}")
    pack4(AO, G0)
    mfma8(AO, TW)
    sel4(False)
    a(f"ds_write_b128 {vRB}, {r4(Y)} offset:{L_D}")
    barrier()
    a(f"s_add_u32 s78, s75, {WS_H5}")
    cu_reduce_pub(L_D, "s78", "L_nod")
    stamp("h5pub")
    a(f"s_cmp_lg_u32 {sB}, 0\ns_cbranch_scc1 L_fin")
    a("s_cmp_ge_u32 s3, 4\ns_cbranch_scc1 L_g5")
    for q in range(4): a(f"v_mov_b32 v{G0+q}, 0")
    a(f"s_add_u32 {sT0}, s76, {WS_H5}\ns_cmp_eq_u32 s3, 3\ns_cselect_b32 exec_hi, 0, -1")
    poll([ldx4(G0, vLin, sT0)], (R4_, sTag8, "0xff"), o["d5"])
    strip(R4_)
    q16(G0, L_R5)
    a.label("L_g5")
    barrier()
    a("s_cmp_lg_u32 s3, 0\ns_cbranch_scc1 L_fin")
    a(f"ds_read_b128 {r4(G0)}, {vA4} offset:{L_R5}\nv_lshrrev_b32 v8, 4, {vLane}\nv_lshlrev_b32 v8, 3, v8\ns_lshl_b32 {sT0}, {sA}, 5\ns_waitcnt lgkmcnt(0)")
    dppsum(R4_, 2)
    pack4(AO, G0); unpack4(G0, AO)
    for q in range(4): a(f"v_add_f32 v{G0+q}, v{G0+q}, v{HK+q}")
    pack4(AO, G0)
    a("s_mov_b32 exec_lo, 0x10001\ns_mov_b32 exec_hi, 0x10001")
    a(f"buffer_store_dwordx2 {r2(AO)}, v8, {sOUT}, {sT0} offen")
    a("s_mov_b64 exec, -1")
    a.label("L_fin")
    if o["stamps"]:
        stamp("end")
        a(f"s_lshl_b32 {sT0}, s2, 3\ns_add_u32 {sT0}, {sT0}, s3\ns_lshl_b32 {sT0}, {sT0}, 7\ns_add_u32 {sT0}, {sT0}, {WS_DBG}")
        a(f"v_lshlrev_b32 v8, 2, {vLane}\ns_mov_b32 exec_hi, 0")
        a(f"buffer_store_dword {vStamp}, v8, {sWS}, {sT0} offen")
        if o["stamps"] == 3:
            a("s_cmp_eq_u32 s97, 0x5a5a1234\ns_cbranch_scc1 L_end")
            a(f"s_or_b32 {sT0}, s2, s3\ns_cmp_lg_u32 {sT0}, 0\ns_cbranch_scc1 L_end")
            a(f"v_readlane_b32 {sT0}, {vStamp}, 0\nv_readlane_b32 {sT1}, {vStamp}, {nst[0]-1}\ns_nop 3\ns_sub_u32 {sT1}, {sT1}, {sT0}\ns_cmp_lt_u32 {sT1}, {o['thr']}\ns_cbranch_scc1 L_end")
            a(f"v_subrev_u32 v9, {sT0}, {vStamp}\nv_cvt_f32_u32 v9, v9\nv_mul_f32 v9, {f32(0.04)}, v9\nv_rndne_f32 v9, v9\nv_cvt_pk_bf16_f32 v9, v9, v9")
            lanes = o.get("lanes", [3, 4, 5, 7, 9, 12, 14, 16])
            a("s_waitcnt vmcnt(0)")
            for n, ln in enumerate(lanes):
                a(f"v_mov_b32 v8, {2*n}\ns_mov_b32 exec_lo, {1 << ln}\nv_mov_b32 v8, {2*n}\nbuffer_store_short v9, v8, {sOUT}, 0 offen\ns_nop 1")
        if o["stamps"] == 2:
            a(f"s_or_b32 {sT0}, s2, s3\ns_cmp_lg_u32 {sT0}, 0\ns_cbranch_scc1 L_end")
            a(f"v_readlane_b32 {sT0}, {vStamp}, 0\nv_subrev_u32 v9, {sT0}, {vStamp}\nv_subrev_u32 v8, 4, v8\ns_mov_b32 exec_lo, 0x1fffe")
            a(f"buffer_store_dword v9, v8, {sDBG}, 0 offen")
    a.label("L_end")
    a("s_endpgm")
    a.raw(f'''.section .rodata,"a"
.p2align 6
.amdhsa_kernel {KN}
  .amdhsa_next_free_vgpr 256
  .amdhsa_next_free_sgpr 102
  .amdhsa_accum_offset 256
  .amdhsa_group_segment_fixed_size 0
  .amdhsa_kernarg_size 88
  .amdhsa_user_sgpr_count 2
  .amdhsa_user_sgpr_kernarg_segment_ptr 1
  .amdhsa_system_sgpr_workgroup_id_x 1
.end_amdhsa_kernel''')
    return a.text()

if __name__ == "__main__":
    kw = {}
    out = sys.argv[1]
    for x in sys.argv[2:]:
        k, v = x.split("="); kw[k] = int(v)
    open(out, "w").write(gen(**kw))
```

```python
import struct, sys
sys.path.insert(0, "work")
from asmlib import Asm
KN = "sequential_preLN__gqa_block_cached__dense_activation_silu__decode_kernel"
def f32(x): return "0x%08x" % struct.unpack("<I", struct.pack("<f", x))[0]

WS_EPOCH = 0
WS_QP = 0x10000
WS_ML = 0x40000
WS_ST = 0x48000
WS_SA = 0x4C000
WS_RS = 0x50000
WS_H2 = 0x70000
WS_H1 = 0xC0000
WS_H4 = 0x200000
WS_H5 = 0x300000
WS_DBG = 0x800000
L_QRED, L_QF, L_ML, L_MLG = 0, 4096, 6144, 6656
L_R2, L_SA, L_M, L_RI, L_R5, L_R1, L_R4, L_B, L_O = 6912, 7168, 7184, 7188, 7424, 8192, 10240, 12288, 16384
L_D = L_O
LDS_BYTES = 49152

DEF = dict(pad=1, xa=1, thr=3600, qbar=1, depth=6, qload_pos=22, qproc_pos=29, ml_pos=16, stamps=0,
           d1=0, d2=16, d4=16, d5=16, back=0, w1late=1, w2late=1, w2pos=0, w1pre=4, w2pre=0, w2p0=0, xh=0)

def gen(**kw):
    o = dict(DEF); o.update(kw)
    D = o["depth"]
    pad = o["pad"]
    STB, STS = 16384 + 256 * pad, 4096 + 128 * pad
    a = Asm()
    a.raw(open("sequential_preLN__gqa_block_cached__dense_activation_silu__decode.s.ref").read().split("; Override")[0].rstrip())
    a.raw(f"; @launch grid=(256,1,1) block=(512,1,1) lds={LDS_BYTES}")
    a.raw('.amdgcn_target "amdgcn-amd-amdhsa--gfx950"\n.text')
    a.raw(f".globl {KN}\n.p2align 8\n.type {KN},@function\n{KN}:")
    sK, sV, sWS, sX, sWQ, sWO, sW1, sW2, sOUT, sDBG = [f"s[{b}:{b+3}]" for b in (8, 12, 16, 20, 24, 28, 32, 36, 40, 44)]
    sG, sS, sT0, sT1 = "s4", "s5", "s6", "s7"
    sKo, sVo = "s49", "s50"
    sTag8, sTag16, sEp = "s51", "s52", "s53"
    sPL, sPH, sHI, sSC, sL2E, s80 = "s54", "s55", "s56", "s57", "s58", "s59"
    sM4 = "s[60:61]"
    sCnt = "s62"; sT2 = "s63"; sTag2 = "s48"; sA = "s90"; sB = "s91"; sMX = "s92"
    vLane, vKoff, vLin, vMask = "v1", "v2", "v3", "v4"
    vMw, vXr, vH = "v5", "v6", "v7"
    vt = [f"v{i}" for i in range(8, 15)]
    vStamp = "v15"
    S0 = 16
    ACC = 32
    SLOT = 64
    PT = 240
    def slot(i): return SLOT + 4 * i
    def r4(b): return f"v[{b}:{b+3}]"
    def r2(b): return f"v[{b}:{b+1}]"
    nst = [0]
    def stamp(name):
        if not o["stamps"]: return
        a("s_memrealtime s[98:99]\ns_waitcnt lgkmcnt(0)")
        a(f"v_writelane_b32 {vStamp}, s98, {nst[0]}")
        nst[0] += 1
    def bf16r(d, s):
        a(f"v_cvt_pk_bf16_f32 {d}, {s}, {s}\nv_lshlrev_b32 {d}, 16, {d}")
    def red64(op, v, t):
        a(f"v_mov_b32 {t}, {v}\nv_permlane32_swap_b32 {t}, {v}\n{op} {v}, {v}, {t}")
        a(f"v_mov_b32 {t}, {v}\nv_permlane16_swap_b32 {t}, {v}\n{op} {v}, {v}, {t}")
        for k in (8, 4, 2, 1):
            a(f"{op}_dpp {v}, {v}, {v} row_ror:{k} row_mask:0xf bank_mask:0xf")
    def red_rows(op, v, t):
        a(f"v_mov_b32 {t}, {v}\nv_permlane32_swap_b32 {t}, {v}\n{op} {v}, {v}, {t}")
        a(f"v_mov_b32 {t}, {v}\nv_permlane16_swap_b32 {t}, {v}\n{op} {v}, {v}, {t}")
        a(f"{op}_dpp {v}, {v}, {v} row_ror:8 row_mask:0xf bank_mask:0xf")
    def ln_stats(b, vm, vr, t0, t1):
        a(f"v_add_f32 {t0}, v{b}, v{b+1}")
        for i in range(2, 16): a(f"v_add_f32 {t0}, {t0}, v{b+i}")
        red64("v_add_f32", t0, t1)
        a(f"v_mul_f32 {t0}, {f32(1/1024)}, {t0}")
        for i in range(16): a(f"v_sub_f32 v{b+i}, v{b+i}, {t0}")
        a(f"v_mul_f32 {vr}, v{b}, v{b}")
        for i in range(1, 16): a(f"v_fmac_f32 {vr}, v{b+i}, v{b+i}")
        red64("v_add_f32", vr, t1)
        bf16r(vm, t0)
        a(f"v_mul_f32 {vr}, {f32(1/1024)}, {vr}")
        bf16r(vr, vr)
        a(f"v_add_f32 {vr}, {f32(1e-5)}, {vr}")
        bf16r(vr, vr)
        a(f"v_sqrt_f32 {vr}, {vr}")
        bf16r(vr, vr)
        a(f"v_rcp_f32 {vr}, {vr}")
    def ln_apply(h, A, vm, vr):
        for i in range(4): a(f"v_sub_f32 v{h+i}, v{h+i}, {vm}")
        a(f"v_cvt_pk_bf16_f32 v{A}, v{h}, v{h+1}\nv_cvt_pk_bf16_f32 v{A+1}, v{h+2}, v{h+3}")
        a(f"v_lshlrev_b32 v{h}, 16, v{A}\nv_and_b32 v{h+1}, {sHI}, v{A}\nv_lshlrev_b32 v{h+2}, 16, v{A+1}\nv_and_b32 v{h+3}, {sHI}, v{A+1}")
        for i in range(4): a(f"v_mul_f32 v{h+i}, v{h+i}, {vr}")
        a(f"v_cvt_pk_bf16_f32 v{A}, v{h}, v{h+1}\nv_cvt_pk_bf16_f32 v{A+1}, v{h+2}, v{h+3}")
    def wtrans(src, dst):
        for t in range(8):
            for j in range(2):
                a(f"v_perm_b32 v{dst+2*t+j}, v{src+4*(2*j+1)+(t>>1)}, v{src+4*(2*j)+(t>>1)}, {sPH if t & 1 else sPL}")
    def gemv(A, T, Dr, Y, tag=True):
        for t in range(8):
            a(f"v_mfma_f32_16x16x16_bf16 {r4(Dr+4*t)}, {r2(A)}, {r2(T+2*t)}, 0")
        for q in range(4):
            a(f"v_cndmask_b32 v{Y+q}, v{Dr+4*q}, v{Dr+4*(q+4)}, {sM4}")
        if tag:
            for q in range(4): a(f"v_and_or_b32 v{Y+q}, v{Y+q}, {vMask}, {sTag8}")
    lab = [0]; npoll = [0]
    def red4(v, t):
        a(f"v_mov_b32 {t}, {v}\nv_permlane32_swap_b32 {t}, {v}\nv_add_f32 {v}, {v}, {t}")
        a(f"v_mov_b32 {t}, {v}\nv_permlane16_swap_b32 {t}, {v}\nv_add_f32 {v}, {v}, {t}")
    def poll(loads, checks, delay=0, first=True, mid=None):
        n = lab[0]; lab[0] += 1
        a(f"s_mov_b32 {sCnt}, 0")
        if first:
            if delay: a(f"s_sleep {delay}")
            for l in loads: a(l)
            if mid:
                a(f"s_waitcnt vmcnt({len(loads)})"); mid()
            a("s_waitcnt vmcnt(0)")
        a.label(f"L_pollc{n}")
        check(*checks)
        a(f"s_mov_b64 exec, vcc\ns_cbranch_execz L_polld{n}")
        a(f"s_add_u32 {sCnt}, {sCnt}, 1\ns_cmp_gt_u32 {sCnt}, 0x80000\ns_cbranch_scc1 L_end")
        if o["back"]: a(f"s_sleep {o['back']}")
        for l in loads: a(l)
        a(f"s_waitcnt vmcnt(0)\ns_branch L_pollc{n}")
        a.label(f"L_polld{n}")
        a("s_mov_b64 exec, -1")
        if o["stamps"] == 1:
            a(f"s_add_u32 {sCnt}, {sCnt}, 1\nv_writelane_b32 {vStamp}, {sCnt}, {24 + npoll[0]}"); npoll[0] += 1
    def check(regs, tagreg, maskc, full=None):
        c = vt[6]
        a(f"v_xor_b32 {c}, {tagreg}, v{regs[0]}")
        for r in regs[1:]: a(f"v_bitop3_b32 {c}, v{r}, {tagreg}, {c} bitop3:0xbe")
        if len(regs) > 2:
            a(f"v_or_b32_dpp {c}, {c}, {c} quad_perm:[1,0,3,2] row_mask:0xf bank_mask:0xf")
        a(f"v_and_b32 {c}, {maskc}, {c}")
        if full is not None: a(f"v_bitop3_b32 {c}, v{full}, {sEp}, {c} bitop3:0xbe")
        a(f"v_cmp_ne_u32 vcc, 0, {c}")
    def strip(regs):
        for r in regs: a(f"v_and_or_b32 v{r}, v{r}, {vMask}, {s80}")
    def barrier():
        a("s_waitcnt lgkmcnt(0)\ns_barrier")

    a("s_cmp_ge_u32 s2, 0x100\ns_cbranch_scc1 L_end")
    a("s_load_dwordx16 s[64:79], s[0:1], 0\ns_load_dwordx4 s[80:83], s[0:1], 64\ns_load_dwordx2 s[84:85], s[0:1], 80")
    if o["stamps"]: a(f"v_mov_b32 {vStamp}, 0")
    stamp("start")
    if o["stamps"] == 1:
        a(f"s_getreg_b32 s96, hwreg(HW_REG_XCC_ID)\ns_getreg_b32 s97, hwreg(HW_REG_HW_ID)\ns_and_b32 s96, s96, 15\ns_add_u32 s96, s96, 1\nv_writelane_b32 {vStamp}, s96, 23\nv_writelane_b32 {vStamp}, s97, 22")
    a(f"v_and_b32 {vLane}, 63, v0\nv_lshrrev_b32 v8, 6, v0")
    a("v_readfirstlane_b32 s3, v8")
    a(f"v_lshlrev_b32 {vLin}, 4, {vLane}")
    a(f"v_bfe_u32 v8, {vLane}, 1, 1\nv_lshlrev_b32 v8, 10, v8\nv_bfe_u32 v9, {vLane}, 2, 2\nv_lshl_add_u32 v8, v9, 8, v8")
    a(f"v_lshrrev_b32 v9, 4, {vLane}\nv_lshl_add_u32 v8, v9, 5, v8\nv_and_b32 v9, 1, {vLane}\nv_lshl_add_u32 {vKoff}, v9, 4, v8")
    a(f"v_mov_b32 {vMask}, 0xffffff00")
    a(f"s_and_b32 {sG}, s2, 3\ns_lshr_b32 {sS}, s2, 2")
    if o["xa"]:
        a(f"s_lshr_b32 {sA}, s2, 5\ns_lshl_b32 {sA}, {sA}, 3\ns_and_b32 {sB}, s2, 7\ns_or_b32 {sA}, {sA}, {sB}\ns_bfe_u32 {sB}, s2, 0x20003")
    else:
        a(f"s_mov_b32 {sA}, {sS}\ns_mov_b32 {sB}, {sG}")
    a(f"s_mov_b32 {sPL}, 0x05040100\ns_mov_b32 {sPH}, 0x07060302\ns_mov_b32 {sHI}, 0xffff0000")
    a(f"s_mov_b32 {sSC}, {f32(128 ** -0.5)}\ns_mov_b32 {sL2E}, {f32(1.4426950408889634)}\ns_mov_b32 {s80}, 0x80")
    a(f"s_mov_b32 s60, 0xffff0000\ns_mov_b32 s61, 0xffff0000")
    a(f"s_lshl_b32 {sT0}, {sS}, 3\ns_add_u32 {sT0}, {sT0}, s3\ns_lshl_b32 {sT0}, {sT0}, 12\ns_lshl_b32 {sT1}, {sG}, 24\ns_add_u32 {sKo}, {sT0}, {sT1}\ns_mov_b32 {sVo}, {sKo}")
    a(f"v_lshrrev_b32 v9, 4, {vLane}\nv_and_b32 v8, 15, {vLane}\nv_lshlrev_b32 v8, 4, v8\nv_lshl_add_u32 v10, v9, 15, v8")
    a(f"v_lshlrev_b32 v11, 3, v9\nv_lshlrev_b32 v12, 5, {vLane}")
    a("s_waitcnt lgkmcnt(0)")
    def srd(base, p, size):
        a(f"s_mov_b32 s{base}, s{p}\ns_and_b32 s{base+1}, s{p+1}, 0xffff\ns_mov_b32 s{base+2}, {size}\ns_mov_b32 s{base+3}, 0x20000")
    srd(20, 64, 2048); srd(24, 70, 8 << 20); srd(8, 66, 64 << 20)
    XR = PT
    ix0 = a.vm(f"buffer_load_dwordx4 {r4(XR)}, v12, {sX}, 0 offen")
    ix1 = a.vm(f"buffer_load_dwordx4 {r4(XR+4)}, v12, {sX}, 0 offen offset:16")
    a(f"s_lshr_b32 {sT0}, s2, 5\ns_lshl_b32 {sT0}, {sT0}, 3\ns_add_u32 {sT0}, {sT0}, s3")
    a(f"s_lshl_b32 {sT1}, {sT0}, 5")
    ix2 = a.vm(f"buffer_load_dwordx2 {r2(XR+8)}, v11, {sX}, {sT1} offen")
    a(f"s_lshl_b32 {sT0}, {sT0}, 17\ns_and_b32 {sT1}, s2, 31\ns_lshl_b32 {sT1}, {sT1}, 8\ns_add_u32 {sT0}, {sT0}, {sT1}")
    for i in range(4):
        iwq = a.vm(f"buffer_load_dwordx4 {r4(slot(32+i))}, v10, {sWQ}, {sT0} offen nt")
        if i < 3: a(f"s_add_u32 {sT0}, {sT0}, 8192")
    kidx = {}
    def kload(k):
        kidx[k] = a.vm(f"buffer_load_dwordx4 {r4(slot(k))}, {vKoff}, {sK}, {sKo} offen offset:{(k%2)*128 + ((k%4)//2)*2048} nt")
        if k % 4 == 3: a(f"s_add_u32 {sKo}, {sKo}, 0x200000")
    K0 = o.get("k0", D)
    if o["qbar"]: a("s_barrier")
    for k in range(K0): kload(k)
    srd(12, 68, 64 << 20); srd(16, 84, 256 << 20); srd(28, 72, 8 << 20); srd(32, 76, 7 << 20); srd(36, 78, 7 << 20); srd(40, 80, 2048); srd(44, 82, 256)
    a(f"s_load_dword {sEp}, s[84:85], {WS_EPOCH}")
    if o["stamps"] == 3: a(f"s_load_dword s97, s[84:85], {WS_EPOCH+4}\ns_waitcnt lgkmcnt(0)\ns_xor_b32 s97, s97, {sEp}")
    a.wait_vm(ix1)
    XF = ACC
    for i in range(8):
        a(f"v_lshlrev_b32 v{XF+2*i}, 16, v{XR+i}\nv_and_b32 v{XF+2*i+1}, {sHI}, v{XR+i}")
    ln_stats(XF, vt[0], vt[1], vt[2], vt[3])
    a(f"v_readfirstlane_b32 {sMX}, {vt[2]}")
    a.wait_vm(ix2)
    a(f"v_lshlrev_b32 v48, 16, v{XR+8}\nv_and_b32 v49, {sHI}, v{XR+8}\nv_lshlrev_b32 v50, 16, v{XR+9}\nv_and_b32 v51, {sHI}, v{XR+9}")
    ln_apply(48, 52, vt[0], vt[1])
    a(f"v_mov_b32 v16, v52\nv_mov_b32 v17, v53")
    a.wait_vm(iwq)
    stamp("wq")
    wtrans(slot(32), PT)
    gemv(16, PT, ACC, 20, tag=False)
    a(f"v_and_b32 v8, 15, {vLane}\nv_lshlrev_b32 v8, 5, v8\nv_bfe_u32 v9, {vLane}, 4, 1\nv_lshl_add_u32 v8, v9, 4, v8")
    a(f"s_lshl_b32 {sT0}, s3, 9\nv_add_u32 v8, {sT0}, v8")
    a(f"ds_write_b128 v8, {r4(20)} offset:{L_QRED}")
    a(f"s_waitcnt lgkmcnt(0)\ns_add_u32 {sEp}, {sEp}, 1\ns_and_b32 {sTag8}, {sEp}, 0xff\ns_and_b32 {sTag16}, {sEp}, 0xffff\ns_and_b32 {sTag2}, {sEp}, 3")
    a("s_barrier")
    a("s_cmp_lg_u32 s3, 0\ns_cbranch_scc1 L_noq")
    a(f"v_and_b32 v8, 0x1f0, {vLin}")
    for i in range(8): a(f"ds_read_b128 {r4(ACC+4*i)}, v8 offset:{L_QRED + 512*i}")
    a("s_waitcnt lgkmcnt(0)")
    for i in range(1, 8):
        for q in range(4): a(f"v_add_f32 v{ACC+q}, v{ACC+q}, v{ACC+4*i+q}")
    a(f"s_and_b32 {sT0}, s2, 31\ns_lshl_b32 {sT0}, {sT0}, 12\ns_lshr_b32 {sT1}, s2, 5\ns_lshl_b32 {sT1}, {sT1}, 9\ns_add_u32 {sT0}, {sT0}, {sT1}\ns_add_u32 {sT0}, {sT0}, {WS_QP}")
    a("s_mov_b32 exec_hi, 0")
    for q in range(4): a(f"v_and_b32 v{ACC+q}, -4, v{ACC+q}\nv_or_b32 v{ACC+q}, {sTag2}, v{ACC+q}")
    a(f"buffer_store_dwordx4 {r4(ACC)}, v8, {sWS}, {sT0} offen sc1")
    a("s_mov_b64 exec, -1")
    a.label("L_noq")
    stamp("qpub")
    QL = S0
    for k in range(K0, 32):
        a.pace(D); kload(k)
        if k == o["qload_pos"]:
            a(f"s_lshl_b32 {sT0}, {sG}, 3\ns_add_u32 {sT0}, {sT0}, s3\ns_lshl_b32 {sT2}, {sT0}, 12\ns_add_u32 {sT2}, {sT2}, {WS_QP}")
            for i in range(4):
                a.pace(D); iq = a.vm(f"buffer_load_dwordx4 {r4(QL+4*i)}, {vLin}, {sWS}, {sT2} offen offset:{1024*i} sc1")
        if k == o["qproc_pos"]:
            a.wait_vm(iq)
            poll([f"buffer_load_dwordx4 {r4(QL+4*i)}, {vLin}, {sWS}, {sT2} offen offset:{1024*i} sc1" for i in range(4)], (list(range(QL, QL+16)), sTag2, "3"), first=False)
            for q in range(16): a(f"v_and_b32 v{QL+q}, -4, v{QL+q}")
            for q in range(4):
                a(f"v_add_f32 v{QL+q}, v{QL+q}, v{QL+4+q}\nv_add_f32 v{QL+8+q}, v{QL+8+q}, v{QL+12+q}")
            for q in range(4): a(f"v_add_f32 v{QL+q}, v{QL+q}, v{QL+8+q}")
            for q in range(4): a(f"v_mov_b32 v{QL+4+q}, v{QL+q}")
            for q in range(4): a(f"v_permlane32_swap_b32 v{QL+4+q}, v{QL+q}")
            for q in range(4): a(f"v_add_f32 v{QL+q}, v{QL+q}, v{QL+4+q}")
            a(f"v_cvt_pk_bf16_f32 v{QL+8}, v{QL}, v{QL+1}\nv_cvt_pk_bf16_f32 v{QL+9}, v{QL+2}, v{QL+3}")
            a(f"v_and_b32 v8, 31, {vLane}\nv_lshlrev_b32 v8, 3, v8\ns_lshl_b32 {sT0}, s3, 8\nv_add_u32 v8, {sT0}, v8")
            a(f"ds_write_b64 v8, {r2(QL+8)} offset:{L_QF}")
            barrier()
            a(f"v_and_b32 v8, 7, {vLane}\nv_lshlrev_b32 v8, 8, v8\nv_lshrrev_b32 v9, 4, {vLane}\nv_lshl_add_u32 v8, v9, 5, v8\nv_bfe_u32 v9, {vLane}, 3, 1\nv_lshl_add_u32 v8, v9, 4, v8")
            a(f"ds_read_b128 {r4(PT)}, v8 offset:{L_QF}\nds_read_b128 {r4(PT+4)}, v8 offset:{L_QF+128}")
            stamp("qready")
    seq = [("w", n) for n in range(4)]
    if not o["w1late"]: seq += [("w", n) for n in range(4, 8)]
    if not o["w2late"]: seq += [("w", n) for n in range(8, 12)]
    seq += [("v", i) for i in range(32)]
    order = list(range(32, 44)) + list(range(32))
    place = {e: order[k] for k, e in enumerate(seq)}
    rest = order[len(seq):]
    for n in range(12):
        if ("w", n) not in place: place[("w", n)] = rest.pop(0)
    def vslot(i): return place[("v", i)]
    def wsl(m): return slot(place[("w", 4*m)])
    widx = {}
    def wsetup():
        a(f"v_lshrrev_b32 v9, 4, {vLane}\nv_and_b32 v8, 15, {vLane}\nv_lshlrev_b32 v8, 4, v8\nv_lshl_add_u32 v12, v9, 13, v8")
        a(f"v_mul_u32_u24 v9, {4*7168}, v9\nv_add_u32 v13, v9, v8")
        a(f"s_lshl_b32 s64, {sA}, 17\ns_lshr_b32 {sT0}, s3, 1\ns_lshl_b32 {sT0}, {sT0}, 15\ns_add_u32 s64, s64, {sT0}")
        a(f"s_lshl_b32 {sT0}, {sB}, 9\ns_add_u32 s64, s64, {sT0}\ns_and_b32 {sT0}, s3, 1\ns_lshl_b32 {sT0}, {sT0}, 8\ns_add_u32 s64, s64, {sT0}\ns_mov_b32 s66, s64")
        a(f"s_mul_i32 s69, {sB}, 7\ns_add_u32 s69, s69, s3")
        a(f"s_mul_i32 s65, {sA}, {16*7168}\ns_lshl_b32 {sT0}, s69, 8\ns_add_u32 s65, s65, {sT0}")
        a(f"s_cmp_eq_u32 s3, 7\ns_cselect_b32 s65, 0x7000000, s65")
    def wload(n):
        m, i = n // 4, n % 4
        srd_, vo, sb, st = [(sWO, "v12", "s64", 2048), (sW1, "v13", "s65", 7168), (sW2, "v12", "s66", 2048)][m]
        widx[n] = a.vm(f"buffer_load_dwordx4 {r4(slot(place[('w', n)]))}, {vo}, {srd_}, {sb} offen nt")
        if i < 3: a(f"s_add_u32 {sb}, {sb}, {st}")
    vidx = {}
    def vload(i):
        vidx[i] = a.vm(f"buffer_load_dwordx4 {r4(slot(vslot(i)))}, {vLin}, {sV}, {sVo} offen offset:{(i%4)*1024} nt")
        if i % 4 == 3: a(f"s_add_u32 {sVo}, {sVo}, 0x200000")
    wsetup()
    def issue(n):
        for _ in range(n):
            kind, i = seq.pop(0)
            a.pace(D)
            (vload if kind == "v" else wload)(i)
    issue(D)
    a.wait_vm(kidx[31])
    stamp("kdone")
    a("s_waitcnt lgkmcnt(0)")
    for half in range(2):
        for jj in range(8):
            j = half * 8 + jj
            a(f"v_mfma_f32_16x16x32_bf16 {r4(ACC+4*jj)}, {r4(slot(2*j))}, {r4(PT)}, 0")
        for jj in range(8):
            j = half * 8 + jj
            a(f"v_mfma_f32_16x16x32_bf16 {r4(ACC+4*jj)}, {r4(slot(2*j+1))}, {r4(PT+4)}, {r4(ACC+4*jj)}")
        for jj in range(8):
            j = half * 8 + jj; d = ACC + 4 * jj
            a(f"v_add_f32_dpp v{S0+j}, v{d+1}, v{d} row_ror:8 row_mask:0xf bank_mask:0x3")
            a(f"v_add_f32_dpp v{S0+j}, v{d+2}, v{d+3} row_ror:8 row_mask:0xf bank_mask:0xc")
    for j in range(0, 16, 2):
        x, y = f"v{S0+j}", f"v{S0+j+1}"
        a(f"v_cvt_pk_bf16_f32 v8, {x}, {y}\nv_lshlrev_b32 {x}, 16, v8\nv_and_b32 {y}, {sHI}, v8")
        a(f"v_mul_f32 {x}, {sSC}, {x}\nv_mul_f32 {y}, {sSC}, {y}")
        a(f"v_cvt_pk_bf16_f32 v8, {x}, {y}\nv_lshlrev_b32 {x}, 16, v8\nv_and_b32 {y}, {sHI}, v8")
    a(f"v_max3_f32 {vMw}, v{S0}, v{S0+1}, v{S0+2}")
    for j in range(3, 15, 2): a(f"v_max3_f32 {vMw}, {vMw}, v{S0+j}, v{S0+j+1}")
    a(f"v_max_f32 {vMw}, {vMw}, v{S0+15}")
    red_rows("v_max_f32", vMw, "v8")
    for j in range(16): a(f"v_sub_f32 v{S0+j}, v{S0+j}, {vMw}")
    for j in range(16): a(f"v_mul_f32 v{S0+j}, {sL2E}, v{S0+j}")
    for j in range(16): a(f"v_exp_f32 v{S0+j}, v{S0+j}")
    a(f"v_add_f32 v11, v{S0}, v{S0+1}")
    for j in range(2, 16): a(f"v_add_f32 v11, v11, v{S0+j}")
    red_rows("v_add_f32", "v11", "v8")
    a(f"v_mov_b32 v10, {vMw}")
    a(f"v_and_b32 v8, 7, {vLane}\nv_lshlrev_b32 v8, 3, v8\ns_lshl_b32 {sT0}, s3, 6\nv_add_u32 v8, {sT0}, v8")
    a(f"ds_write_b64 v8, v[10:11] offset:{L_ML}")
    barrier()
    a("s_cmp_lg_u32 s3, 0\ns_cbranch_scc1 L_noml")
    a(f"v_lshlrev_b32 v8, 3, {vLane}\nds_read_b64 v[10:11], v8 offset:{L_ML}\ns_waitcnt lgkmcnt(0)")
    a("v_mov_b32 v9, v10")
    red_rows("v_max_f32", "v9", "v8")
    a(f"v_sub_f32 v10, v10, v9\nv_mul_f32 v10, {sL2E}, v10\nv_exp_f32 v10, v10\nv_mul_f32 v11, v11, v10")
    red_rows("v_add_f32", "v11", "v8")
    a(f"v_or_b32 v10, {sTag16}, v9\nv_and_or_b32 v11, v11, {vMask}, {sTag8}")
    a(f"v_lshlrev_b32 v8, 9, {vLane}\ns_lshl_b32 {sT0}, {sG}, 12\ns_lshl_b32 {sT1}, {sS}, 3\ns_add_u32 {sT0}, {sT0}, {sT1}\ns_add_u32 {sT0}, {sT0}, {WS_ML}")
    a("s_mov_b64 exec, 0xff")
    a(f"buffer_store_dwordx2 v[10:11], v8, {sWS}, {sT0} offen sc1")
    a("s_mov_b64 exec, -1")
    a.label("L_noml")
    stamp("mlpub")
    def pv(u):
        for dp in range(4):
            tb = PT + 8 * (dp & 1)
            for b in range(2):
                for j in range(4):
                    a(f"v_perm_b32 v{tb+4*b+j}, v{slot(vslot(8*u+2*j+1))+dp}, v{slot(vslot(8*u+2*j))+dp}, {sPH if b else sPL}")
            for b in range(2):
                t = 2 * dp + b
                c = "0" if u == 0 else r4(ACC + 4 * t)
                a(f"v_mfma_f32_16x16x32_bf16 {r4(ACC+4*t)}, {r4(S0+4*u)}, {r4(tb+4*b)}, {c}")
    pvdone = 0; fready = False; iml = None; rsdone = False; irs = None
    Y = 26
    SPARE = slot(vslot(0))
    RSK, XK = SPARE, SPARE + 4
    vA4, vA8 = "v2", "v6"
    a(f"v_lshrrev_b32 v14, 4, {vLane}\nv_lshlrev_b32 v14, 4, v14\nv_and_b32 v8, 3, {vLane}\nv_lshl_add_u32 {vA4}, v8, 6, v14\nv_and_b32 v8, 7, {vLane}\nv_lshl_add_u32 {vA8}, v8, 6, v14")
    a(f"s_lshl_b32 s72, {sA}, 11\ns_lshr_b32 {sT0}, s3, 1\ns_lshl_b32 {sT0}, {sT0}, 9\ns_add_u32 s72, s72, {sT0}\ns_add_u32 s72, s72, {WS_RS}")
    while seq:
        issue(1)
        nv = len(vidx)
        if not rsdone and a.done > widx[3]:
            assert not fready
            a("v_mov_b32 v8, 0x3f803f80")
            for i in range(4): a(f"v_mov_b32 v{ACC+i}, 0")
            for d in range(4):
                for i in range(4): a(f"v_dot2_f32_bf16 v{ACC+i}, v{wsl(0)+4*i+d}, v8, v{ACC+i}")
            for k in (8, 4, 2, 1):
                for i in range(4): a(f"v_add_f32_dpp v{ACC+i}, v{ACC+i}, v{ACC+i} row_ror:{k} row_mask:0xf bank_mask:0xf")
            for i in range(4): a(f"v_and_or_b32 v{ACC+i}, v{ACC+i}, {vMask}, {sTag8}")
            a(f"s_lshl_b32 {sT0}, {sB}, 1\ns_and_b32 {sT1}, s3, 1\ns_add_u32 {sT0}, {sT0}, {sT1}\ns_lshl_b32 {sT0}, {sT0}, 6\ns_add_u32 {sT0}, {sT0}, s72")
            a("s_mov_b32 exec_lo, 0x10001\ns_mov_b32 exec_hi, 0x10001")
            a.pace(D); a.vm(f"buffer_store_dwordx4 {r4(ACC)}, {vA4}, {sWS}, {sT0} offen sc1")
            a("s_mov_b64 exec, -1")
            rsdone = True
        if iml is None and nv > o["ml_pos"]:
            a(f"v_lshlrev_b32 v8, 3, {vLane}\ns_lshl_b32 {sT0}, {sG}, 3\ns_add_u32 {sT0}, {sT0}, s3\ns_lshl_b32 s70, {sT0}, 9\ns_add_u32 s70, s70, {WS_ML}")
            a.pace(D); iml = a.vm(f"buffer_load_dwordx2 v[10:11], v8, {sWS}, s70 offen sc1")
        if iml is not None and not fready and (a.done > iml or not seq):
            a.wait_vm(iml)
            a(f"v_xor_b32 v14, {sTag16}, v10\nv_and_b32 v14, 0xffff, v14\nv_xor_b32 v9, {sTag8}, v11\nv_and_b32 v9, 0xff, v9\nv_or_b32 v14, v14, v9")
            a("v_cmp_ne_u32 vcc, 0, v14\ns_cbranch_vccz L_mlok")
            a(f"s_mov_b32 {sCnt}, 0")
            a.label("L_mlspin")
            a(f"buffer_load_dwordx2 v[10:11], v8, {sWS}, s70 offen sc1\ns_waitcnt vmcnt(0)")
            a(f"s_add_u32 {sCnt}, {sCnt}, 1\ns_cmp_gt_u32 {sCnt}, 0x80000\ns_cbranch_scc1 L_end")
            a(f"v_xor_b32 v14, {sTag16}, v10\nv_and_b32 v14, 0xffff, v14\nv_xor_b32 v9, {sTag8}, v11\nv_and_b32 v9, 0xff, v9\nv_or_b32 v14, v14, v9")
            a("v_cmp_ne_u32 vcc, 0, v14\ns_cbranch_vccnz L_mlspin")
            a.label("L_mlok")
            a(f"v_and_b32 v10, {sHI}, v10\nv_and_or_b32 v11, v11, {vMask}, {s80}\nv_mov_b32 v9, v10")
            red64("v_max_f32", "v9", "v8")
            a(f"v_sub_f32 v10, v10, v9\nv_mul_f32 v10, {sL2E}, v10\nv_exp_f32 v10, v10\nv_mul_f32 v11, v11, v10")
            red64("v_add_f32", "v11", "v8")
            a(f"v_rcp_f32 v11, v11\nv_mov_b32 v10, v9\ns_lshl_b32 {sT0}, s3, 3\nv_mov_b32 v8, {sT0}")
            a(f"ds_write_b64 v8, v[10:11] offset:{L_MLG}")
            barrier()
            a(f"v_and_b32 v8, 7, {vLane}\nv_lshlrev_b32 v8, 3, v8\nds_read_b64 v[10:11], v8 offset:{L_MLG}\ns_waitcnt lgkmcnt(0)")
            a(f"v_sub_f32 v10, {vMw}, v10\nv_mul_f32 v10, {sL2E}, v10\nv_exp_f32 v10, v10\nv_mul_f32 v10, v10, v11")
            a(f"v_bfe_u32 v9, {vLane}, 3, 1\nv_cmp_eq_u32 vcc, 1, v9\nv_mov_b32 v9, 0xffff\nv_mov_b32 v8, {sHI}\nv_cndmask_b32 v9, v9, v8, vcc")
            for j in range(16): a(f"v_mul_f32 v{S0+j}, v{S0+j}, v10")
            for j in range(16): a(f"v_cvt_pk_bf16_f32 v{S0+j}, v{S0+j}, v{S0+j}")
            for j in range(16): a(f"v_and_b32 v{S0+j}, v{S0+j}, v9")
            fready = True
            stamp("fready")
        while fready and pvdone < 4 and (8 * pvdone + 7) in vidx and a.done > vidx[8 * pvdone + 7]:
            pv(pvdone); pvdone += 1
            if pvdone == 2:
                a.pace(D); irs = a.vm(f"buffer_load_dwordx4 {r4(RSK)}, {vA8}, {sWS}, s72 offen sc1")
                a(f"v_lshrrev_b32 v8, 4, {vLane}\nv_lshlrev_b32 v8, 3, v8\ns_lshl_b32 {sT0}, {sA}, 5")
                a.pace(D); ixr = a.vm(f"buffer_load_dwordx2 {r2(XK)}, v8, {sX}, {sT0} offen")
    vRW, vOW, vH1, vPub4, vRP, vAO, vRB = "v9", "v10", "v11", "v5", "v7", "v30", "v31"
    G0, AO = 16, 24
    HK = SPARE + 8
    TW = SPARE + 16
    DR = ACC
    def q16(b, lb):
        a(f"v_permlane32_swap_b32 v{b}, v{b+1}\nv_permlane32_swap_b32 v{b+2}, v{b+3}")
        a(f"v_add_f32 v{b}, v{b}, v{b+1}\nv_add_f32 v{b+2}, v{b+2}, v{b+3}")
        a(f"v_permlane16_swap_b32 v{b}, v{b+2}\nv_add_f32 v{b}, v{b}, v{b+2}")
        for k in (4, 8): a(f"v_add_f32_dpp v{b}, v{b}, v{b} row_ror:{k} row_mask:0xf bank_mask:0xf")
        a(f"ds_write_b32 {vRW}, v{b} offset:{lb}")
    def dppsum(regs, n):
        for pat in ("quad_perm:[1,0,3,2]", "quad_perm:[2,3,0,1]", "row_half_mirror")[:n]:
            for r in regs: a(f"v_add_f32_dpp v{r}, v{r}, v{r} {pat} row_mask:0xf bank_mask:0xf")
    def unpack4(d, p):
        a(f"v_lshlrev_b32 v{d}, 16, v{p}\nv_and_b32 v{d+1}, {sHI}, v{p}\nv_lshlrev_b32 v{d+2}, 16, v{p+1}\nv_and_b32 v{d+3}, {sHI}, v{p+1}")
    def pack4(p, d):
        a(f"v_cvt_pk_bf16_f32 v{p}, v{d}, v{d+1}\nv_cvt_pk_bf16_f32 v{p+1}, v{d+2}, v{d+3}")
    def ldx4(r, vo, so, off=0): return f"buffer_load_dwordx4 {r4(r)}, {vo}, {sWS}, {so} offen offset:{off} sc1"
    R8 = list(range(G0, G0+8)); R4_ = list(range(G0, G0+4))
    def latew(m, upto=4):
        for n in range(4*m, 4*m+upto):
            if n not in widx: wload(n)
    def mfma8(A, T):
        for t in range(8): a(f"v_mfma_f32_16x16x16_bf16 {r4(DR+4*t)}, {r2(A)}, {r2(T+2*t)}, 0")
    def sel4(tag):
        for q in range(4): a(f"v_cndmask_b32 v{Y+q}, v{DR+4*q}, v{DR+4*(q+4)}, {sM4}")
        if tag:
            for q in range(4): a(f"v_and_or_b32 v{Y+q}, v{Y+q}, {vMask}, {sTag8}")
    def big_reduce(lb):
        strip(R8)
        for q in range(4): a(f"v_add_f32 v{G0+q}, v{G0+q}, v{G0+4+q}")
        a(f"v_permlane32_swap_b32 v{G0}, v{G0+1}\nv_permlane32_swap_b32 v{G0+2}, v{G0+3}")
        a(f"v_add_f32 v{G0}, v{G0}, v{G0+1}\nv_add_f32 v{G0+2}, v{G0+2}, v{G0+3}\nv_permlane16_swap_b32 v{G0}, v{G0+2}\nv_add_f32 v{G0}, v{G0}, v{G0+2}")
        a(f"ds_write_b32 {vRP}, v{G0} offset:{lb}")
    def cu_reduce_pub(lb, sdst, lab_, extra=None):
        a(f"s_cmp_lg_u32 s3, 0\ns_cbranch_scc1 {lab_}")
        for i in range(4): a(f"ds_read_b128 {r4(ACC+4*i)}, {vLin} offset:{lb + 1024*i}")
        if extra: a(f"v_mov_b32 v8, 0\nds_read_b128 {r4(G0)}, v8 offset:{L_SA}")
        for i in range(1, 4):
            a(f"s_waitcnt lgkmcnt({3 - i + (1 if extra else 0)})")
            for q in range(4): a(f"v_add_f32 v{ACC+q}, v{ACC+q}, v{ACC+4*i+q}")
        for q in range(4): a(f"v_and_or_b32 v{ACC+q}, v{ACC+q}, {vMask}, {sTag8}")
        a(f"buffer_store_dwordx4 {r4(ACC)}, {vOW}, {sWS}, {sdst} offen sc1")
        if extra: extra()
        a.label(lab_)
    def pub2(base):
        a(f"v_mov_b32 v{Y+2}, {sEp}\nv_mov_b32 v{Y+3}, {sEp}")
        a(f"v_lshlrev_b32 v8, 10, {vLane}\ns_lshl_b32 {sT0}, {sB}, 11\ns_lshl_b32 {sT1}, {sA}, 4\ns_add_u32 {sT0}, {sT0}, {sT1}\ns_add_u32 {sT0}, {sT0}, {base}")
        a("s_mov_b64 exec, 3")
        a(f"buffer_store_dwordx4 {r4(Y)}, v8, {sWS}, {sT0} offen sc1")
    a(f"v_bfe_u32 v14, {vLane}, 4, 1\nv_lshlrev_b32 v8, 3, v14\nv_lshrrev_b32 v14, 5, {vLane}\nv_lshl_add_u32 v8, v14, 2, v8")
    a(f"v_and_b32 v14, 3, {vLane}\nv_lshl_add_u32 {vRW}, v14, 4, v8\ns_lshl_b32 {sT0}, s3, 6\nv_add_u32 {vRW}, {sT0}, {vRW}")
    a(f"v_and_b32 v14, 15, {vLane}\nv_lshl_add_u32 {vRP}, v14, 4, v8\ns_lshl_b32 {sT0}, s3, 8\nv_add_u32 {vRP}, {sT0}, {vRP}")
    a(f"v_and_b32 v8, 15, {vLane}\nv_lshlrev_b32 v8, 5, v8\nv_lshrrev_b32 v14, 5, {vLane}\nv_lshl_add_u32 v8, v14, 4, v8\nv_bfe_u32 v14, {vLane}, 4, 1\nv_lshl_add_u32 v8, v14, 9, v8")
    a(f"s_lshl_b32 {sT0}, s3, 12\nv_add_u32 {vOW}, {sT0}, v8")
    a(f"v_lshrrev_b32 v8, 5, {vLane}\nv_lshlrev_b32 v8, 3, v8\nv_bfe_u32 v14, {vLane}, 4, 1\nv_add_u32 v8, v8, v14\nv_mul_u32_u24 v8, {STB}, v8\nv_and_b32 v14, 15, {vLane}\nv_lshl_add_u32 {vH1}, v14, 4, v8")
    a(f"s_mul_i32 s71, {sG}, {16*STB}\ns_mul_i32 {sT0}, s3, {2*STB}\ns_add_u32 s71, s71, {sT0}\ns_lshl_b32 {sT0}, {sS}, 8\ns_add_u32 s71, s71, {sT0}\ns_add_u32 s71, s71, {WS_H1}")
    a(f"v_bfe_u32 v8, {vLane}, 3, 1\nv_mul_u32_u24 v8, {STB}, v8\nv_and_b32 v14, 7, {vLane}\nv_lshl_add_u32 v8, v14, 5, v8\nv_bfe_u32 v14, {vLane}, 4, 1\nv_lshl_add_u32 {vPub4}, v14, 4, v8")
    a(f"s_mul_i32 s73, s69, {2*STB}\ns_lshl_b32 {sT0}, {sA}, 8\ns_add_u32 s73, s73, {sT0}\ns_add_u32 s73, s73, {WS_H4}")
    a(f"s_mul_i32 s74, {sA}, {STB}\ns_lshl_b32 {sT0}, s3, 11\ns_add_u32 s74, s74, {sT0}")
    a(f"s_mul_i32 s75, {sB}, {16*STS}\ns_lshl_b32 {sT0}, {sA}, 6\ns_add_u32 s75, s75, {sT0}")
    a(f"s_mul_i32 s76, {sA}, {STS}\ns_lshl_b32 {sT0}, s3, 10\ns_add_u32 s76, s76, {sT0}")
    a(f"s_and_b32 s77, s2, 7\ns_lshl_b32 s77, s77, 10")
    a.wait_vm(ixr)
    poll([ldx4(RSK, vA8, "s72")], (list(range(RSK, RSK+4)), sTag8, "0xff"), first=False)
    strip(range(RSK, RSK+4))
    dppsum(range(RSK, RSK+4), 3)
    unpack4(HK, XK)
    while pvdone < 4:
        a.wait_vm(vidx[8 * pvdone + 7]); pv(pvdone); pvdone += 1
    stamp("vdone")
    for r in range(4):
        for t in range(4):
            a(f"v_permlane32_swap_b32 v{ACC+4*t+r}, v{ACC+4*(t+4)+r}")
        for t in range(4):
            a(f"v_add_f32 v{PT+4*r+t}, v{ACC+4*t+r}, v{ACC+4*(t+4)+r}")
        a(f"ds_write_b128 {vOW}, {r4(PT+4*r)} offset:{L_O + 1024*r}")
    barrier()
    a("s_cmp_ge_u32 s3, 4\ns_cbranch_scc1 L_noh1")
    a(f"s_lshl_b32 {sT0}, s3, 10\nv_add_u32 v8, {sT0}, {vLin}")
    for i in range(8): a(f"ds_read_b128 {r4(ACC+4*i)}, v8 offset:{L_O + 4096*i}")
    for i in range(1, 8):
        a(f"s_waitcnt lgkmcnt({7-i})")
        for q in range(4): a(f"v_add_f32 v{ACC+q}, v{ACC+q}, v{ACC+4*i+q}")
    for q in range(4): a(f"v_and_or_b32 v{ACC+q}, v{ACC+q}, {vMask}, {sTag8}")
    a(f"buffer_store_dwordx4 {r4(ACC)}, {vH1}, {sWS}, s71 offen sc1")
    a.label("L_noh1")
    stamp("h1pub")
    if o["w1late"]: latew(1, o["w1pre"])
    if o["w2late"]: latew(2, o["w2p0"])
    wtrans(wsl(0), TW)
    a(f"v_and_b32 v8, 7, {vLane}\nv_lshlrev_b32 v8, 8, v8\nv_lshrrev_b32 v14, 4, {vLane}\nv_lshl_add_u32 v8, v14, 4, v8\ns_lshr_b32 {sT0}, s3, 1\ns_lshl_b32 {sT0}, {sT0}, 6\nv_add_u32 {vAO}, {sT0}, v8")
    a(f"v_and_b32 v8, 15, {vLane}\nv_lshlrev_b32 v8, 5, v8\nv_bfe_u32 v14, {vLane}, 4, 1\nv_lshl_add_u32 v8, v14, 4, v8\ns_lshl_b32 {sT0}, s3, 9\nv_add_u32 {vRB}, {sT0}, v8")
    a(f"v_lshrrev_b32 v8, 2, {vLane}\nv_mul_u32_u24 v8, {STS}, v8\nv_and_b32 v14, 3, {vLane}\nv_lshl_add_u32 {vOW}, v14, 4, v8")
    a(f"s_lshr_b32 {sT0}, s3, 1\ns_lshl_b32 {sT0}, {sT0}, 2\nv_mov_b32 {vH1}, {sT0}")
    a(f"s_add_u32 {sT0}, s74, {WS_H1}")
    poll([ldx4(G0, vLin, sT0), ldx4(G0+4, vLin, sT0, 1024)], (R8, sTag8, "0xff"), o["d1"])
    if o["w1late"]: latew(1)
    if o["w2late"] and o["w2pos"] == 1: latew(2)
    if o["w2late"]: latew(2, o["w2pre"])
    big_reduce(L_R1)
    barrier()
    a(f"ds_read_b128 {r4(G0)}, {vAO} offset:{L_R1}\ns_waitcnt lgkmcnt(0)")
    dppsum(R4_, 3)
    stamp("h1got")
    pack4(AO, G0)
    mfma8(AO, TW)
    unpack4(G0, AO)
    a(f"v_mul_f32 v{G0}, v{G0}, v{RSK}")
    for q in range(1, 4): a(f"v_fmac_f32 v{G0}, v{G0+q}, v{RSK+q}")
    red4(f"v{G0}", "v8")
    a(f"ds_write_b32 {vH1}, v{G0} offset:{L_SA}")
    sel4(False)
    a(f"ds_write_b128 {vRB}, {r4(Y)} offset:{L_B}")
    barrier()
    def sapub():
        a(f"s_waitcnt lgkmcnt(0)\nv_add_f32 v{G0}, v{G0}, v{G0+1}\nv_add_f32 v{G0+2}, v{G0+2}, v{G0+3}\nv_add_f32 v{Y}, v{G0}, v{G0+2}")
        a(f"v_and_or_b32 v{Y}, v{Y}, {vMask}, {sTag8}\nv_mov_b32 v{Y+1}, {sTag8}")
        pub2(WS_SA)
        a("s_mov_b64 exec, -1")
    a(f"s_add_u32 s78, s75, {WS_H2}")
    cu_reduce_pub(L_B, "s78", "L_nob", sapub)
    stamp("h2pub")
    for r in range(o["xh"]):
        xb = 0x400000 + r * 0x50000
        a(f"s_cmp_lg_u32 s3, 0\ns_cbranch_scc1 L_x{r}a")
        for q in range(4): a(f"v_mov_b32 v{ACC+16+q}, {sTag8}")
        a(f"s_add_u32 {sT0}, s75, {xb}\nbuffer_store_dwordx4 {r4(ACC+16)}, {vOW}, {sWS}, {sT0} offen sc1")
        a.label(f"L_x{r}a")
        a(f"s_cmp_ge_u32 s3, 4\ns_cbranch_scc1 L_x{r}b\ns_add_u32 {sT0}, s76, {xb}")
        st_, o["stamps"] = o["stamps"], 0
        poll([ldx4(G0, vLin, sT0)], (R4_, sTag8, "0xff"), o["d2"])
        o["stamps"] = st_
        a.label(f"L_x{r}b")
        barrier()
    tr1 = lambda: wtrans(wsl(1), TW)
    a("s_cmp_ge_u32 s3, 4\ns_cbranch_scc1 L_g2s")
    a(f"s_add_u32 {sT0}, s76, {WS_H2}")
    poll([ldx4(G0, vLin, sT0)], (R4_, sTag8, "0xff"), o["d2"], mid=tr1)
    strip(R4_)
    q16(G0, L_R2)
    a("s_branch L_g2")
    a.label("L_g2s")
    a("s_cmp_eq_u32 s3, 4\ns_cbranch_scc1 L_g2m\ns_waitcnt vmcnt(0)")
    tr1()
    a("s_branch L_g2")
    a.label("L_g2m")
    a(f"s_add_u32 {sT0}, s77, {WS_SA}")
    poll([ldx4(G0, vLin, sT0)], ([G0, G0+1], sTag8, "0xff", G0+2), o["d2"], mid=tr1)
    strip([G0])
    red64("v_add_f32", f"v{G0}", "v8")
    a(f"v_mov_b32 v8, {sMX}\nv_fmac_f32 v8, {f32(1/1024)}, v{G0}")
    bf16r("v8", "v8")
    a(f"v_mov_b32 v14, 0\nds_write_b32 v14, v8 offset:{L_M}")
    a.label("L_g2")
    if o["w2late"] and o["w2pos"] == 0: latew(2)
    barrier()
    a(f"v_mov_b32 v8, 0\nds_read_b128 {r4(G0)}, {vA4} offset:{L_R2}\nds_read_b32 v14, v8 offset:{L_M}\ns_waitcnt lgkmcnt(1)")
    dppsum(R4_, 2)
    stamp("h2got")
    pack4(AO, G0); unpack4(G0, AO)
    for q in range(4): a(f"v_add_f32 v{G0+q}, v{G0+q}, v{HK+q}")
    pack4(AO, G0); unpack4(HK, AO)
    a("s_waitcnt lgkmcnt(0)")
    for q in range(4): a(f"v_sub_f32 v{G0+q}, v{HK+q}, v14")
    a("s_cmp_eq_u32 s3, 7\ns_cbranch_scc1 L_stat")
    pack4(AO, G0)
    mfma8(AO, TW)
    sel4(True)
    a("s_mov_b32 exec_hi, 0")
    a(f"buffer_store_dwordx4 {r4(Y)}, {vPub4}, {sWS}, s73 offen sc1")
    a("s_branch L_cd")
    a.label("L_stat")
    a(f"v_add_f32 v{Y}, v{G0}, v{G0+1}\nv_add_f32 v8, v{G0+2}, v{G0+3}\nv_mul_f32 v{Y+1}, v{G0}, v{G0}\nv_add_f32 v{Y}, v{Y}, v8")
    for q in range(1, 4): a(f"v_fmac_f32 v{Y+1}, v{G0+q}, v{G0+q}")
    red4(f"v{Y}", "v8"); red4(f"v{Y+1}", "v14")
    a(f"v_and_or_b32 v{Y}, v{Y}, {vMask}, {sTag8}\nv_and_or_b32 v{Y+1}, v{Y+1}, {vMask}, {sTag8}")
    pub2(WS_ST)
    a(f"s_cmp_lg_u32 s2, 0\ns_cbranch_scc1 L_cd")
    a(f"s_mov_b64 exec, 1\nbuffer_store_dword v{Y+2}, v8, {sWS}, 0 offen offset:{WS_EPOCH} sc1")
    if o["stamps"] == 3: a(f"v_xor_b32 v14, 0x5a5a1234, v{Y+2}\nbuffer_store_dword v14, v8, {sWS}, 0 offen offset:{WS_EPOCH+4} sc1")
    a.label("L_cd")
    a("s_mov_b64 exec, -1")
    if o["w2late"] and o["w2pos"] == 2: latew(2)
    stamp("h4pub")
    a(f"s_cmp_ge_u32 {sA}, 56\ns_cbranch_scc1 L_nod")
    a(f"s_add_u32 {sT0}, s74, {WS_H4}")
    tr2 = lambda: wtrans(wsl(2), TW)
    a("s_cmp_eq_u32 s3, 7\ns_cbranch_scc1 L_g4s")
    poll([ldx4(G0, vLin, sT0), ldx4(G0+4, vLin, sT0, 1024)], (R8, sTag8, "0xff"), o["d4"], mid=tr2)
    big_reduce(L_R4)
    a("s_branch L_g4")
    a.label("L_g4s")
    a(f"s_add_u32 {sT1}, s77, {WS_ST}")
    poll([ldx4(G0, vLin, sT0), ldx4(G0+4, vLin, sT0, 1024), ldx4(Y, vLin, sT1)], (R8 + [Y, Y+1], sTag8, "0xff", Y+2), o["d4"], mid=tr2)
    big_reduce(L_R4)
    strip([Y, Y+1])
    a(f"v_permlane32_swap_b32 v{Y}, v{Y+1}\nv_add_f32 v{G0}, v{Y}, v{Y+1}")
    a(f"v_mov_b32 v8, v{G0}\nv_permlane16_swap_b32 v8, v{G0}\nv_add_f32 v{G0}, v{G0}, v8")
    for k in (8, 4, 2, 1): a(f"v_add_f32_dpp v{G0}, v{G0}, v{G0} row_ror:{k} row_mask:0xf bank_mask:0xf")
    a(f"v_mul_f32 v{G0}, {f32(1/1024)}, v{G0}\nv_mov_b32 v8, v{G0}\nv_permlane32_swap_b32 v8, v{G0}")
    vr = f"v{G0}"
    a(f"v_fma_f32 {vr}, -v8, v8, {vr}\nv_max_f32 {vr}, 0, {vr}"); bf16r(vr, vr)
    a(f"v_add_f32 {vr}, {f32(1e-5)}, {vr}"); bf16r(vr, vr)
    a(f"v_sqrt_f32 {vr}, {vr}"); bf16r(vr, vr)
    a(f"v_rcp_f32 {vr}, {vr}\nv_mov_b32 v8, 0\nds_write_b32 v8, {vr} offset:{L_RI}")
    a.label("L_g4")
    barrier()
    a(f"v_mov_b32 v8, 0\nds_read_b128 {r4(G0)}, {vAO} offset:{L_R4}\nds_read_b32 v14, v8 offset:{L_RI}\ns_waitcnt lgkmcnt(1)")
    dppsum(R4_, 3)
    a("s_waitcnt lgkmcnt(0)")
    stamp("h4got")
    for q in range(4): a(f"v_mul_f32 v{G0+q}, v{G0+q}, v14")
    pack4(AO, G0); unpack4(G0, AO)
    for q in range(4): a(f"v_mul_f32 v{G0+4+q}, {sL2E}, v{G0+q}")
    for q in range(4): a(f"v_exp_f32 v{G0+4+q}, -v{G0+4+q}")
    for q in range(4): a(f"v_add_f32 v{G0+4+q}, 1.0, v{G0+4+q}")
    for q in range(4): a(f"v_rcp_f32 v{G0+4+q}, v{G0+4+q}")
    for q in range(4): a(f"v_mul_f32 v{G0+q}, v{G0+q}, v{G0+4+q}")
    pack4(AO, G0)
    mfma8(AO, TW)
    sel4(False)
    a(f"ds_write_b128 {vRB}, {r4(Y)} offset:{L_D}")
    barrier()
    a(f"s_add_u32 s78, s75, {WS_H5}")
    cu_reduce_pub(L_D, "s78", "L_nod")
    stamp("h5pub")
    a(f"s_cmp_lg_u32 {sB}, 0\ns_cbranch_scc1 L_fin")
    a("s_cmp_ge_u32 s3, 4\ns_cbranch_scc1 L_g5")
    for q in range(4): a(f"v_mov_b32 v{G0+q}, 0")
    a(f"s_add_u32 {sT0}, s76, {WS_H5}\ns_cmp_eq_u32 s3, 3\ns_cselect_b32 exec_hi, 0, -1")
    poll([ldx4(G0, vLin, sT0)], (R4_, sTag8, "0xff"), o["d5"])
    strip(R4_)
    q16(G0, L_R5)
    a.label("L_g5")
    barrier()
    a("s_cmp_lg_u32 s3, 0\ns_cbranch_scc1 L_fin")
    a(f"ds_read_b128 {r4(G0)}, {vA4} offset:{L_R5}\nv_lshrrev_b32 v8, 4, {vLane}\nv_lshlrev_b32 v8, 3, v8\ns_lshl_b32 {sT0}, {sA}, 5\ns_waitcnt lgkmcnt(0)")
    dppsum(R4_, 2)
    pack4(AO, G0); unpack4(G0, AO)
    for q in range(4): a(f"v_add_f32 v{G0+q}, v{G0+q}, v{HK+q}")
    pack4(AO, G0)
    a("s_mov_b32 exec_lo, 0x10001\ns_mov_b32 exec_hi, 0x10001")
    a(f"buffer_store_dwordx2 {r2(AO)}, v8, {sOUT}, {sT0} offen")
    a("s_mov_b64 exec, -1")
    a.label("L_fin")
    if o["stamps"]:
        stamp("end")
        a(f"s_lshl_b32 {sT0}, s2, 3\ns_add_u32 {sT0}, {sT0}, s3\ns_lshl_b32 {sT0}, {sT0}, 7\ns_add_u32 {sT0}, {sT0}, {WS_DBG}")
        a(f"v_lshlrev_b32 v8, 2, {vLane}\ns_mov_b32 exec_hi, 0")
        a(f"buffer_store_dword {vStamp}, v8, {sWS}, {sT0} offen")
        if o["stamps"] == 3:
            a("s_cmp_eq_u32 s97, 0x5a5a1234\ns_cbranch_scc1 L_end")
            a(f"s_or_b32 {sT0}, s2, s3\ns_cmp_lg_u32 {sT0}, 0\ns_cbranch_scc1 L_end")
            a(f"v_readlane_b32 {sT0}, {vStamp}, 0\nv_readlane_b32 {sT1}, {vStamp}, {nst[0]-1}\ns_nop 3\ns_sub_u32 {sT1}, {sT1}, {sT0}\ns_cmp_lt_u32 {sT1}, {o['thr']}\ns_cbranch_scc1 L_end")
            a(f"v_subrev_u32 v9, {sT0}, {vStamp}\nv_cvt_f32_u32 v9, v9\nv_mul_f32 v9, {f32(0.04)}, v9\nv_rndne_f32 v9, v9\nv_cvt_pk_bf16_f32 v9, v9, v9")
            lanes = o.get("lanes", [3, 4, 5, 7, 9, 12, 14, 16])
            a("s_waitcnt vmcnt(0)")
            for n, ln in enumerate(lanes):
                a(f"v_mov_b32 v8, {2*n}\ns_mov_b32 exec_lo, {1 << ln}\nv_mov_b32 v8, {2*n}\nbuffer_store_short v9, v8, {sOUT}, 0 offen\ns_nop 1")
        if o["stamps"] == 2:
            a(f"s_or_b32 {sT0}, s2, s3\ns_cmp_lg_u32 {sT0}, 0\ns_cbranch_scc1 L_end")
            a(f"v_readlane_b32 {sT0}, {vStamp}, 0\nv_subrev_u32 v9, {sT0}, {vStamp}\nv_subrev_u32 v8, 4, v8\ns_mov_b32 exec_lo, 0x1fffe")
            a(f"buffer_store_dword v9, v8, {sDBG}, 0 offen")
    a.label("L_end")
    a("s_endpgm")
    a.raw(f'''.section .rodata,"a"
.p2align 6
.amdhsa_kernel {KN}
  .amdhsa_next_free_vgpr 256
  .amdhsa_next_free_sgpr 102
  .amdhsa_accum_offset 256
  .amdhsa_group_segment_fixed_size 0
  .amdhsa_kernarg_size 88
  .amdhsa_user_sgpr_count 2
  .amdhsa_user_sgpr_kernarg_segment_ptr 1
  .amdhsa_system_sgpr_workgroup_id_x 1
.end_amdhsa_kernel''')
    return a.text()

if __name__ == "__main__":
    kw = {}
    out = sys.argv[1]
    for x in sys.argv[2:]:
        k, v = x.split("="); kw[k] = int(v)
    open(out, "w").write(gen(**kw))
```

```python
import struct, sys
sys.path.insert(0, "work")
from asmlib import Asm
KN = "sequential_preLN__gqa_block_cached__dense_activation_silu__decode_kernel"
def f32(x): return "0x%08x" % struct.unpack("<I", struct.pack("<f", x))[0]

WS_EPOCH = 0
WS_QP = 0x10000
WS_ML = 0x40000
WS_ST = 0x48000
WS_SA = 0x4C000
WS_RS = 0x50000
WS_H2 = 0x70000
WS_H1 = 0xC0000
WS_H4 = 0x200000
WS_H5 = 0x300000
WS_DBG = 0x800000
L_QRED, L_QF, L_ML, L_MLG = 0, 4096, 6144, 6656
L_R2, L_SA, L_M, L_RI, L_R5, L_R1, L_R4, L_B, L_O = 6912, 7168, 7184, 7188, 7424, 8192, 10240, 12288, 16384
L_D = L_O
LDS_BYTES = 49152

DEF = dict(pad=1, xa=1, thr=3600, qbar=1, depth=6, qload_pos=22, qproc_pos=29, ml_pos=16, stamps=0,
           d1=0, d2=16, d4=16, d5=16, back=0, w1late=1, w2late=1, w2pos=0, w1pre=4, w2pre=0, w2p0=0, xh=0, gsh=0, adapt=0, adw2=1, wolate=0, x1=0, x2=0, x3=0, x4=0, x5=0, dl=6, dlpos=20, y0=0, y1=0, y2=0, y3=0, w2p2=0, w2p3=4, w1p1=4)

def gen(**kw):
    o = dict(DEF); o.update(kw)
    D = o["depth"]
    pad = o["pad"]
    STB, STS = 16384 + 256 * pad, 4096 + 128 * pad
    a = Asm()
    a.raw(open("sequential_preLN__gqa_block_cached__dense_activation_silu__decode.s.ref").read().split("; Override")[0].rstrip())
    a.raw(f"; @launch grid=(256,1,1) block=(512,1,1) lds={LDS_BYTES}")
    a.raw('.amdgcn_target "amdgcn-amd-amdhsa--gfx950"\n.text')
    a.raw(f".globl {KN}\n.p2align 8\n.type {KN},@function\n{KN}:")
    sK, sV, sWS, sX, sWQ, sWO, sW1, sW2, sOUT, sDBG = [f"s[{b}:{b+3}]" for b in (8, 12, 16, 20, 24, 28, 32, 36, 40, 44)]
    sG, sS, sT0, sT1 = "s4", "s5", "s6", "s7"
    sKo, sVo = "s49", "s50"
    sTag8, sTag16, sEp = "s51", "s52", "s53"
    sPL, sPH, sHI, sSC, sL2E, s80 = "s54", "s55", "s56", "s57", "s58", "s59"
    sM4 = "s[60:61]"
    sCnt = "s62"; sT2 = "s63"; sTag2 = "s48"; sA = "s90"; sB = "s91"; sMX = "s92"
    vLane, vKoff, vLin, vMask = "v1", "v2", "v3", "v4"
    vMw, vXr, vH = "v5", "v6", "v7"
    vt = [f"v{i}" for i in range(8, 15)]
    vStamp = "v15"
    S0 = 16
    ACC = 32
    SLOT = 64
    PT = 240
    def slot(i): return SLOT + 4 * i
    def r4(b): return f"v[{b}:{b+3}]"
    def r2(b): return f"v[{b}:{b+1}]"
    nst = [0]
    def stamp(name):
        if not o["stamps"]: return
        a("s_memrealtime s[98:99]\ns_waitcnt lgkmcnt(0)")
        a(f"v_writelane_b32 {vStamp}, s98, {nst[0]}")
        nst[0] += 1
    def bf16r(d, s):
        a(f"v_cvt_pk_bf16_f32 {d}, {s}, {s}\nv_lshlrev_b32 {d}, 16, {d}")
    def red64(op, v, t):
        a(f"v_mov_b32 {t}, {v}\nv_permlane32_swap_b32 {t}, {v}\n{op} {v}, {v}, {t}")
        a(f"v_mov_b32 {t}, {v}\nv_permlane16_swap_b32 {t}, {v}\n{op} {v}, {v}, {t}")
        for k in (8, 4, 2, 1):
            a(f"{op}_dpp {v}, {v}, {v} row_ror:{k} row_mask:0xf bank_mask:0xf")
    def red_rows(op, v, t):
        a(f"v_mov_b32 {t}, {v}\nv_permlane32_swap_b32 {t}, {v}\n{op} {v}, {v}, {t}")
        a(f"v_mov_b32 {t}, {v}\nv_permlane16_swap_b32 {t}, {v}\n{op} {v}, {v}, {t}")
        a(f"{op}_dpp {v}, {v}, {v} row_ror:8 row_mask:0xf bank_mask:0xf")
    def ln_stats(b, vm, vr, t0, t1):
        a(f"v_add_f32 {t0}, v{b}, v{b+1}")
        for i in range(2, 16): a(f"v_add_f32 {t0}, {t0}, v{b+i}")
        red64("v_add_f32", t0, t1)
        a(f"v_mul_f32 {t0}, {f32(1/1024)}, {t0}")
        for i in range(16): a(f"v_sub_f32 v{b+i}, v{b+i}, {t0}")
        a(f"v_mul_f32 {vr}, v{b}, v{b}")
        for i in range(1, 16): a(f"v_fmac_f32 {vr}, v{b+i}, v{b+i}")
        red64("v_add_f32", vr, t1)
        bf16r(vm, t0)
        a(f"v_mul_f32 {vr}, {f32(1/1024)}, {vr}")
        bf16r(vr, vr)
        a(f"v_add_f32 {vr}, {f32(1e-5)}, {vr}")
        bf16r(vr, vr)
        a(f"v_sqrt_f32 {vr}, {vr}")
        bf16r(vr, vr)
        a(f"v_rcp_f32 {vr}, {vr}")
    def ln_apply(h, A, vm, vr):
        for i in range(4): a(f"v_sub_f32 v{h+i}, v{h+i}, {vm}")
        a(f"v_cvt_pk_bf16_f32 v{A}, v{h}, v{h+1}\nv_cvt_pk_bf16_f32 v{A+1}, v{h+2}, v{h+3}")
        a(f"v_lshlrev_b32 v{h}, 16, v{A}\nv_and_b32 v{h+1}, {sHI}, v{A}\nv_lshlrev_b32 v{h+2}, 16, v{A+1}\nv_and_b32 v{h+3}, {sHI}, v{A+1}")
        for i in range(4): a(f"v_mul_f32 v{h+i}, v{h+i}, {vr}")
        a(f"v_cvt_pk_bf16_f32 v{A}, v{h}, v{h+1}\nv_cvt_pk_bf16_f32 v{A+1}, v{h+2}, v{h+3}")
    def wtrans(src, dst):
        for t in range(8):
            for j in range(2):
                a(f"v_perm_b32 v{dst+2*t+j}, v{src+4*(2*j+1)+(t>>1)}, v{src+4*(2*j)+(t>>1)}, {sPH if t & 1 else sPL}")
    def gemv(A, T, Dr, Y, tag=True):
        for t in range(8):
            a(f"v_mfma_f32_16x16x16_bf16 {r4(Dr+4*t)}, {r2(A)}, {r2(T+2*t)}, 0")
        for q in range(4):
            a(f"v_cndmask_b32 v{Y+q}, v{Dr+4*q}, v{Dr+4*(q+4)}, {sM4}")
        if tag:
            for q in range(4): a(f"v_and_or_b32 v{Y+q}, v{Y+q}, {vMask}, {sTag8}")
    lab = [0]; npoll = [0]
    def red4(v, t):
        a(f"v_mov_b32 {t}, {v}\nv_permlane32_swap_b32 {t}, {v}\nv_add_f32 {v}, {v}, {t}")
        a(f"v_mov_b32 {t}, {v}\nv_permlane16_swap_b32 {t}, {v}\nv_add_f32 {v}, {v}, {t}")
    def poll(loads, checks, delay=0, first=True, mid=None, early=None):
        n = lab[0]; lab[0] += 1
        a(f"s_mov_b32 {sCnt}, 0")
        if first:
            if delay: a(f"s_sleep {delay}")
            for l in loads: a(l)
            if mid:
                a(f"s_waitcnt vmcnt({len(loads)})"); mid()
            a("s_waitcnt vmcnt(0)")
        a.label(f"L_pollc{n}")
        check(*checks)
        a(f"s_mov_b64 exec, vcc\ns_cbranch_execz L_polld{n}")
        if early:
            a(f"s_cmp_lg_u32 {sCnt}, 0\ns_cbranch_scc1 L_polle{n}\ns_bcnt1_i32_b64 {sT2}, vcc\ns_cmp_lt_u32 {sT2}, {o['adapt']}\ns_cbranch_scc1 L_polle{n}")
            a("s_mov_b64 exec, -1\ns_mov_b32 s93, 1")
            early()
            a("s_mov_b64 exec, vcc")
            a.label(f"L_polle{n}")
        a(f"s_add_u32 {sCnt}, {sCnt}, 1\ns_cmp_gt_u32 {sCnt}, 0x80000\ns_cbranch_scc1 L_end")
        if o["back"]: a(f"s_sleep {o['back']}")
        for l in loads: a(l)
        a(f"s_waitcnt vmcnt(0)\ns_branch L_pollc{n}")
        a.label(f"L_polld{n}")
        a("s_mov_b64 exec, -1")
        if o["stamps"] == 1:
            a(f"s_add_u32 {sCnt}, {sCnt}, 1\nv_writelane_b32 {vStamp}, {sCnt}, {24 + npoll[0]}"); npoll[0] += 1
    def check(regs, tagreg, maskc, full=None):
        c = vt[6]
        a(f"v_xor_b32 {c}, {tagreg}, v{regs[0]}")
        for r in regs[1:]: a(f"v_bitop3_b32 {c}, v{r}, {tagreg}, {c} bitop3:0xbe")
        if len(regs) > 2:
            a(f"v_or_b32_dpp {c}, {c}, {c} quad_perm:[1,0,3,2] row_mask:0xf bank_mask:0xf")
        a(f"v_and_b32 {c}, {maskc}, {c}")
        if full is not None: a(f"v_bitop3_b32 {c}, v{full}, {sEp}, {c} bitop3:0xbe")
        a(f"v_cmp_ne_u32 vcc, 0, {c}")
    def strip(regs):
        for r in regs: a(f"v_and_or_b32 v{r}, v{r}, {vMask}, {s80}")
    def barrier():
        a("s_waitcnt lgkmcnt(0)\ns_barrier")

    a("s_cmp_ge_u32 s2, 0x100\ns_cbranch_scc1 L_end")
    a("s_load_dwordx16 s[64:79], s[0:1], 0\ns_load_dwordx4 s[80:83], s[0:1], 64\ns_load_dwordx2 s[84:85], s[0:1], 80")
    if o["stamps"]: a(f"v_mov_b32 {vStamp}, 0")
    stamp("start")
    if o["stamps"] == 1:
        a(f"s_getreg_b32 s96, hwreg(HW_REG_XCC_ID)\ns_getreg_b32 s97, hwreg(HW_REG_HW_ID)\ns_and_b32 s96, s96, 15\ns_add_u32 s96, s96, 1\nv_writelane_b32 {vStamp}, s96, 23\nv_writelane_b32 {vStamp}, s97, 22")
    a(f"v_and_b32 {vLane}, 63, v0\nv_lshrrev_b32 v8, 6, v0")
    a("v_readfirstlane_b32 s3, v8")
    a(f"v_lshlrev_b32 {vLin}, 4, {vLane}")
    a(f"v_bfe_u32 v8, {vLane}, 1, 1\nv_lshlrev_b32 v8, 10, v8\nv_bfe_u32 v9, {vLane}, 2, 2\nv_lshl_add_u32 v8, v9, 8, v8")
    a(f"v_lshrrev_b32 v9, 4, {vLane}\nv_lshl_add_u32 v8, v9, 5, v8\nv_and_b32 v9, 1, {vLane}\nv_lshl_add_u32 {vKoff}, v9, 4, v8")
    a(f"v_mov_b32 {vMask}, 0xffffff00")
    gsh = o["gsh"]
    if gsh == 0:
        a(f"s_and_b32 {sG}, s2, 3\ns_lshr_b32 {sS}, s2, 2")
    else:
        a(f"s_bfe_u32 {sG}, s2, {0x20000 | gsh}\ns_lshr_b32 {sS}, s2, {gsh+2}\ns_lshl_b32 {sS}, {sS}, {gsh}\ns_and_b32 {sT0}, s2, {(1<<gsh)-1}\ns_or_b32 {sS}, {sS}, {sT0}")
    if o["xa"]:
        a(f"s_lshr_b32 {sA}, s2, 5\ns_lshl_b32 {sA}, {sA}, 3\ns_and_b32 {sB}, s2, 7\ns_or_b32 {sA}, {sA}, {sB}\ns_bfe_u32 {sB}, s2, 0x20003")
    else:
        a(f"s_mov_b32 {sA}, {sS}\ns_mov_b32 {sB}, {sG}")
    a(f"s_mov_b32 {sPL}, 0x05040100\ns_mov_b32 {sPH}, 0x07060302\ns_mov_b32 {sHI}, 0xffff0000")
    a(f"s_mov_b32 {sSC}, {f32(128 ** -0.5)}\ns_mov_b32 {sL2E}, {f32(1.4426950408889634)}\ns_mov_b32 {s80}, 0x80")
    a(f"s_mov_b32 s60, 0xffff0000\ns_mov_b32 s61, 0xffff0000")
    a(f"s_lshl_b32 {sT0}, {sS}, 3\ns_add_u32 {sT0}, {sT0}, s3\ns_lshl_b32 {sT0}, {sT0}, 12\ns_lshl_b32 {sT1}, {sG}, 24\ns_add_u32 {sKo}, {sT0}, {sT1}\ns_mov_b32 {sVo}, {sKo}")
    a(f"v_lshrrev_b32 v9, 4, {vLane}\nv_and_b32 v8, 15, {vLane}\nv_lshlrev_b32 v8, 4, v8\nv_lshl_add_u32 v10, v9, 15, v8")
    a(f"v_lshlrev_b32 v11, 3, v9\nv_lshlrev_b32 v12, 5, {vLane}")
    a("s_waitcnt lgkmcnt(0)")
    def srd(base, p, size):
        a(f"s_mov_b32 s{base}, s{p}\ns_and_b32 s{base+1}, s{p+1}, 0xffff\ns_mov_b32 s{base+2}, {size}\ns_mov_b32 s{base+3}, 0x20000")
    srd(20, 64, 2048); srd(24, 70, 8 << 20); srd(8, 66, 64 << 20)
    XR = PT
    ix0 = a.vm(f"buffer_load_dwordx4 {r4(XR)}, v12, {sX}, 0 offen")
    ix1 = a.vm(f"buffer_load_dwordx4 {r4(XR+4)}, v12, {sX}, 0 offen offset:16")
    a(f"s_lshr_b32 {sT0}, s2, 5\ns_lshl_b32 {sT0}, {sT0}, 3\ns_add_u32 {sT0}, {sT0}, s3")
    a(f"s_lshl_b32 {sT1}, {sT0}, 5")
    ix2 = a.vm(f"buffer_load_dwordx2 {r2(XR+8)}, v11, {sX}, {sT1} offen")
    a(f"s_lshl_b32 {sT0}, {sT0}, 17\ns_and_b32 {sT1}, s2, 31\ns_lshl_b32 {sT1}, {sT1}, 8\ns_add_u32 {sT0}, {sT0}, {sT1}")
    for i in range(4):
        iwq = a.vm(f"buffer_load_dwordx4 {r4(slot(32+i))}, v10, {sWQ}, {sT0} offen nt")
        if i < 3: a(f"s_add_u32 {sT0}, {sT0}, 8192")
    kidx = {}
    def kload(k):
        kidx[k] = a.vm(f"buffer_load_dwordx4 {r4(slot(k))}, {vKoff}, {sK}, {sKo} offen offset:{(k%2)*128 + ((k%4)//2)*2048} nt")
        if k % 4 == 3: a(f"s_add_u32 {sKo}, {sKo}, 0x200000")
    K0 = o.get("k0", D)
    if o["qbar"]: a("s_barrier")
    for k in range(K0): kload(k)
    srd(12, 68, 64 << 20); srd(16, 84, 256 << 20); srd(28, 72, 8 << 20); srd(32, 76, 7 << 20); srd(36, 78, 7 << 20); srd(40, 80, 2048); srd(44, 82, 256)
    a(f"s_load_dword {sEp}, s[84:85], {WS_EPOCH}")
    if o["stamps"] == 3: a(f"s_load_dword s97, s[84:85], {WS_EPOCH+4}\ns_waitcnt lgkmcnt(0)\ns_xor_b32 s97, s97, {sEp}")
    a.wait_vm(ix1)
    XF = ACC
    for i in range(8):
        a(f"v_lshlrev_b32 v{XF+2*i}, 16, v{XR+i}\nv_and_b32 v{XF+2*i+1}, {sHI}, v{XR+i}")
    ln_stats(XF, vt[0], vt[1], vt[2], vt[3])
    a(f"v_readfirstlane_b32 {sMX}, {vt[2]}")
    def kmore(n):
        for _ in range(n): kload(len(kidx))
    kmore(o["y0"])
    a.wait_vm(ix2)
    a(f"v_lshlrev_b32 v48, 16, v{XR+8}\nv_and_b32 v49, {sHI}, v{XR+8}\nv_lshlrev_b32 v50, 16, v{XR+9}\nv_and_b32 v51, {sHI}, v{XR+9}")
    ln_apply(48, 52, vt[0], vt[1])
    a(f"v_mov_b32 v16, v52\nv_mov_b32 v17, v53")
    a.wait_vm(iwq)
    stamp("wq")
    kmore(o["y1"])
    wtrans(slot(32), PT)
    gemv(16, PT, ACC, 20, tag=False)
    a(f"v_and_b32 v8, 15, {vLane}\nv_lshlrev_b32 v8, 5, v8\nv_bfe_u32 v9, {vLane}, 4, 1\nv_lshl_add_u32 v8, v9, 4, v8")
    a(f"s_lshl_b32 {sT0}, s3, 9\nv_add_u32 v8, {sT0}, v8")
    a(f"ds_write_b128 v8, {r4(20)} offset:{L_QRED}")
    kmore(o["y2"])
    a(f"s_waitcnt lgkmcnt(0)\ns_add_u32 {sEp}, {sEp}, 1\ns_and_b32 {sTag8}, {sEp}, 0xff\ns_and_b32 {sTag16}, {sEp}, 0xffff\ns_and_b32 {sTag2}, {sEp}, 3")
    a("s_barrier")
    kmore(o["y3"])
    a("s_cmp_lg_u32 s3, 0\ns_cbranch_scc1 L_noq")
    a(f"v_and_b32 v8, 0x1f0, {vLin}")
    for i in range(8): a(f"ds_read_b128 {r4(ACC+4*i)}, v8 offset:{L_QRED + 512*i}")
    a("s_waitcnt lgkmcnt(0)")
    for i in range(1, 8):
        for q in range(4): a(f"v_add_f32 v{ACC+q}, v{ACC+q}, v{ACC+4*i+q}")
    a(f"s_and_b32 {sT0}, s2, 31\ns_lshl_b32 {sT0}, {sT0}, 12\ns_lshr_b32 {sT1}, s2, 5\ns_lshl_b32 {sT1}, {sT1}, 9\ns_add_u32 {sT0}, {sT0}, {sT1}\ns_add_u32 {sT0}, {sT0}, {WS_QP}")
    a("s_mov_b32 exec_hi, 0")
    for q in range(4): a(f"v_and_b32 v{ACC+q}, -4, v{ACC+q}\nv_or_b32 v{ACC+q}, {sTag2}, v{ACC+q}")
    a(f"buffer_store_dwordx4 {r4(ACC)}, v8, {sWS}, {sT0} offen sc1")
    a("s_mov_b64 exec, -1")
    a.label("L_noq")
    stamp("qpub")
    QL = S0
    for k in range(len(kidx), 32):
        a.pace(D); kload(k)
        if k == o["qload_pos"]:
            a(f"s_lshl_b32 {sT0}, {sG}, 3\ns_add_u32 {sT0}, {sT0}, s3\ns_lshl_b32 {sT2}, {sT0}, 12\ns_add_u32 {sT2}, {sT2}, {WS_QP}")
            for i in range(4):
                a.pace(D); iq = a.vm(f"buffer_load_dwordx4 {r4(QL+4*i)}, {vLin}, {sWS}, {sT2} offen offset:{1024*i} sc1")
        if k == o["qproc_pos"]:
            a.wait_vm(iq)
            poll([f"buffer_load_dwordx4 {r4(QL+4*i)}, {vLin}, {sWS}, {sT2} offen offset:{1024*i} sc1" for i in range(4)], (list(range(QL, QL+16)), sTag2, "3"), first=False)
            for q in range(16): a(f"v_and_b32 v{QL+q}, -4, v{QL+q}")
            for q in range(4):
                a(f"v_add_f32 v{QL+q}, v{QL+q}, v{QL+4+q}\nv_add_f32 v{QL+8+q}, v{QL+8+q}, v{QL+12+q}")
            for q in range(4): a(f"v_add_f32 v{QL+q}, v{QL+q}, v{QL+8+q}")
            for q in range(4): a(f"v_mov_b32 v{QL+4+q}, v{QL+q}")
            for q in range(4): a(f"v_permlane32_swap_b32 v{QL+4+q}, v{QL+q}")
            for q in range(4): a(f"v_add_f32 v{QL+q}, v{QL+q}, v{QL+4+q}")
            a(f"v_cvt_pk_bf16_f32 v{QL+8}, v{QL}, v{QL+1}\nv_cvt_pk_bf16_f32 v{QL+9}, v{QL+2}, v{QL+3}")
            a(f"v_and_b32 v8, 31, {vLane}\nv_lshlrev_b32 v8, 3, v8\ns_lshl_b32 {sT0}, s3, 8\nv_add_u32 v8, {sT0}, v8")
            a(f"ds_write_b64 v8, {r2(QL+8)} offset:{L_QF}")
            barrier()
            a(f"v_and_b32 v8, 7, {vLane}\nv_lshlrev_b32 v8, 8, v8\nv_lshrrev_b32 v9, 4, {vLane}\nv_lshl_add_u32 v8, v9, 5, v8\nv_bfe_u32 v9, {vLane}, 3, 1\nv_lshl_add_u32 v8, v9, 4, v8")
            a(f"ds_read_b128 {r4(PT)}, v8 offset:{L_QF}\nds_read_b128 {r4(PT+4)}, v8 offset:{L_QF+128}")
            stamp("qready")
    seq = [("w", n) for n in range(4)] if not o["wolate"] else []
    if not o["w1late"]: seq += [("w", n) for n in range(4, 8)]
    if not o["w2late"]: seq += [("w", n) for n in range(8, 12)]
    seq += [("v", i) for i in range(32)]
    order = list(range(32, 44)) + list(range(32))
    place = {e: order[k] for k, e in enumerate(seq)}
    rest = order[len(seq):]
    for n in range(12):
        if ("w", n) not in place: place[("w", n)] = rest.pop(0)
    if o["wolate"] == 1: seq += [("w", n) for n in range(4)]
    def vslot(i): return place[("v", i)]
    def wsl(m): return slot(place[("w", 4*m)])
    widx = {}
    def wsetup():
        a(f"v_lshrrev_b32 v9, 4, {vLane}\nv_and_b32 v8, 15, {vLane}\nv_lshlrev_b32 v8, 4, v8\nv_lshl_add_u32 v12, v9, 13, v8")
        a(f"v_mul_u32_u24 v9, {4*7168}, v9\nv_add_u32 v13, v9, v8")
        a(f"s_lshl_b32 s64, {sA}, 17\ns_lshr_b32 {sT0}, s3, 1\ns_lshl_b32 {sT0}, {sT0}, 15\ns_add_u32 s64, s64, {sT0}")
        a(f"s_lshl_b32 {sT0}, {sB}, 9\ns_add_u32 s64, s64, {sT0}\ns_and_b32 {sT0}, s3, 1\ns_lshl_b32 {sT0}, {sT0}, 8\ns_add_u32 s64, s64, {sT0}\ns_mov_b32 s66, s64")
        a(f"s_mul_i32 s69, {sB}, 7\ns_add_u32 s69, s69, s3")
        a(f"s_mul_i32 s65, {sA}, {16*7168}\ns_lshl_b32 {sT0}, s69, 8\ns_add_u32 s65, s65, {sT0}")
        a(f"s_cmp_eq_u32 s3, 7\ns_cselect_b32 s65, 0x7000000, s65")
    def wload(n):
        m, i = n // 4, n % 4
        srd_, vo, sb, st = [(sWO, "v12", "s64", 2048), (sW1, "v13", "s65", 7168), (sW2, "v12", "s66", 2048)][m]
        widx[n] = a.vm(f"buffer_load_dwordx4 {r4(slot(place[('w', n)]))}, {vo}, {srd_}, {sb} offen nt")
        if i < 3: a(f"s_add_u32 {sb}, {sb}, {st}")
    vidx = {}
    def vload(i):
        vidx[i] = a.vm(f"buffer_load_dwordx4 {r4(slot(vslot(i)))}, {vLin}, {sV}, {sVo} offen offset:{(i%4)*1024} nt")
        if i % 4 == 3: a(f"s_add_u32 {sVo}, {sVo}, 0x200000")
    wsetup()
    def issue(n):
        for _ in range(n):
            kind, i = seq.pop(0)
            a.pace(o["dl"] if len(vidx) >= o["dlpos"] else D)
            (vload if kind == "v" else wload)(i)
    def issue_np(n):
        for _ in range(n):
            kind, i = seq.pop(0)
            (vload if kind == "v" else wload)(i)
    issue(D)
    a.wait_vm(kidx[31])
    stamp("kdone")
    a("s_waitcnt lgkmcnt(0)")
    for half in range(2):
        for jj in range(8):
            j = half * 8 + jj
            a(f"v_mfma_f32_16x16x32_bf16 {r4(ACC+4*jj)}, {r4(slot(2*j))}, {r4(PT)}, 0")
        for jj in range(8):
            j = half * 8 + jj
            a(f"v_mfma_f32_16x16x32_bf16 {r4(ACC+4*jj)}, {r4(slot(2*j+1))}, {r4(PT+4)}, {r4(ACC+4*jj)}")
        for jj in range(8):
            j = half * 8 + jj; d = ACC + 4 * jj
            a(f"v_add_f32_dpp v{S0+j}, v{d+1}, v{d} row_ror:8 row_mask:0xf bank_mask:0x3")
            a(f"v_add_f32_dpp v{S0+j}, v{d+2}, v{d+3} row_ror:8 row_mask:0xf bank_mask:0xc")
        issue_np(o["x1"] if half == 0 else o["x2"])
    for j in range(0, 16, 2):
        x, y = f"v{S0+j}", f"v{S0+j+1}"
        a(f"v_cvt_pk_bf16_f32 v8, {x}, {y}\nv_lshlrev_b32 {x}, 16, v8\nv_and_b32 {y}, {sHI}, v8")
        a(f"v_mul_f32 {x}, {sSC}, {x}\nv_mul_f32 {y}, {sSC}, {y}")
        a(f"v_cvt_pk_bf16_f32 v8, {x}, {y}\nv_lshlrev_b32 {x}, 16, v8\nv_and_b32 {y}, {sHI}, v8")
    a(f"v_max3_f32 {vMw}, v{S0}, v{S0+1}, v{S0+2}")
    for j in range(3, 15, 2): a(f"v_max3_f32 {vMw}, {vMw}, v{S0+j}, v{S0+j+1}")
    a(f"v_max_f32 {vMw}, {vMw}, v{S0+15}")
    red_rows("v_max_f32", vMw, "v8")
    issue_np(o["x3"])
    for j in range(16): a(f"v_sub_f32 v{S0+j}, v{S0+j}, {vMw}")
    for j in range(16): a(f"v_mul_f32 v{S0+j}, {sL2E}, v{S0+j}")
    for j in range(16): a(f"v_exp_f32 v{S0+j}, v{S0+j}")
    a(f"v_add_f32 v11, v{S0}, v{S0+1}")
    for j in range(2, 16): a(f"v_add_f32 v11, v11, v{S0+j}")
    red_rows("v_add_f32", "v11", "v8")
    a(f"v_mov_b32 v10, {vMw}")
    a(f"v_and_b32 v8, 7, {vLane}\nv_lshlrev_b32 v8, 3, v8\ns_lshl_b32 {sT0}, s3, 6\nv_add_u32 v8, {sT0}, v8")
    a(f"ds_write_b64 v8, v[10:11] offset:{L_ML}")
    issue_np(o["x4"])
    barrier()
    issue_np(o["x5"])
    a("s_cmp_lg_u32 s3, 0\ns_cbranch_scc1 L_noml")
    a(f"v_lshlrev_b32 v8, 3, {vLane}\nds_read_b64 v[10:11], v8 offset:{L_ML}\ns_waitcnt lgkmcnt(0)")
    a("v_mov_b32 v9, v10")
    red_rows("v_max_f32", "v9", "v8")
    a(f"v_sub_f32 v10, v10, v9\nv_mul_f32 v10, {sL2E}, v10\nv_exp_f32 v10, v10\nv_mul_f32 v11, v11, v10")
    red_rows("v_add_f32", "v11", "v8")
    a(f"v_or_b32 v10, {sTag16}, v9\nv_and_or_b32 v11, v11, {vMask}, {sTag8}")
    a(f"v_lshlrev_b32 v8, 9, {vLane}\ns_lshl_b32 {sT0}, {sG}, 12\ns_lshl_b32 {sT1}, {sS}, 3\ns_add_u32 {sT0}, {sT0}, {sT1}\ns_add_u32 {sT0}, {sT0}, {WS_ML}")
    a("s_mov_b64 exec, 0xff")
    a(f"buffer_store_dwordx2 v[10:11], v8, {sWS}, {sT0} offen sc1")
    a("s_mov_b64 exec, -1")
    a.label("L_noml")
    stamp("mlpub")
    def pv(u):
        for dp in range(4):
            tb = PT + 8 * (dp & 1)
            for b in range(2):
                for j in range(4):
                    a(f"v_perm_b32 v{tb+4*b+j}, v{slot(vslot(8*u+2*j+1))+dp}, v{slot(vslot(8*u+2*j))+dp}, {sPH if b else sPL}")
            for b in range(2):
                t = 2 * dp + b
                c = "0" if u == 0 else r4(ACC + 4 * t)
                a(f"v_mfma_f32_16x16x32_bf16 {r4(ACC+4*t)}, {r4(S0+4*u)}, {r4(tb+4*b)}, {c}")
    pvdone = 0; fready = False; iml = None; rsdone = False; irs = None
    Y = 26
    SPARE = slot(vslot(0))
    RSK, XK = SPARE, SPARE + 4
    vA4, vA8 = "v2", "v6"
    a(f"v_lshrrev_b32 v14, 4, {vLane}\nv_lshlrev_b32 v14, 4, v14\nv_and_b32 v8, 3, {vLane}\nv_lshl_add_u32 {vA4}, v8, 6, v14\nv_and_b32 v8, 7, {vLane}\nv_lshl_add_u32 {vA8}, v8, 6, v14")
    a(f"s_lshl_b32 s72, {sA}, 11\ns_lshr_b32 {sT0}, s3, 1\ns_lshl_b32 {sT0}, {sT0}, 9\ns_add_u32 s72, s72, {sT0}\ns_add_u32 s72, s72, {WS_RS}")
    while seq:
        issue(1)
        nv = len(vidx)
        if not o["wolate"] and not rsdone and a.done > widx[3]:
            assert not fready
            a("v_mov_b32 v8, 0x3f803f80")
            for i in range(4): a(f"v_mov_b32 v{ACC+i}, 0")
            for d in range(4):
                for i in range(4): a(f"v_dot2_f32_bf16 v{ACC+i}, v{wsl(0)+4*i+d}, v8, v{ACC+i}")
            for k in (8, 4, 2, 1):
                for i in range(4): a(f"v_add_f32_dpp v{ACC+i}, v{ACC+i}, v{ACC+i} row_ror:{k} row_mask:0xf bank_mask:0xf")
            for i in range(4): a(f"v_and_or_b32 v{ACC+i}, v{ACC+i}, {vMask}, {sTag8}")
            a(f"s_lshl_b32 {sT0}, {sB}, 1\ns_and_b32 {sT1}, s3, 1\ns_add_u32 {sT0}, {sT0}, {sT1}\ns_lshl_b32 {sT0}, {sT0}, 6\ns_add_u32 {sT0}, {sT0}, s72")
            a("s_mov_b32 exec_lo, 0x10001\ns_mov_b32 exec_hi, 0x10001")
            a.pace(D); a.vm(f"buffer_store_dwordx4 {r4(ACC)}, {vA4}, {sWS}, {sT0} offen sc1")
            a("s_mov_b64 exec, -1")
            rsdone = True
        if iml is None and nv > o["ml_pos"]:
            a(f"v_lshlrev_b32 v8, 3, {vLane}\ns_lshl_b32 {sT0}, {sG}, 3\ns_add_u32 {sT0}, {sT0}, s3\ns_lshl_b32 s70, {sT0}, 9\ns_add_u32 s70, s70, {WS_ML}")
            a.pace(D); iml = a.vm(f"buffer_load_dwordx2 v[10:11], v8, {sWS}, s70 offen sc1")
        if iml is not None and not fready and (a.done > iml or not seq):
            a.wait_vm(iml)
            a(f"v_xor_b32 v14, {sTag16}, v10\nv_and_b32 v14, 0xffff, v14\nv_xor_b32 v9, {sTag8}, v11\nv_and_b32 v9, 0xff, v9\nv_or_b32 v14, v14, v9")
            a("v_cmp_ne_u32 vcc, 0, v14\ns_cbranch_vccz L_mlok")
            a(f"s_mov_b32 {sCnt}, 0")
            a.label("L_mlspin")
            a(f"buffer_load_dwordx2 v[10:11], v8, {sWS}, s70 offen sc1\ns_waitcnt vmcnt(0)")
            a(f"s_add_u32 {sCnt}, {sCnt}, 1\ns_cmp_gt_u32 {sCnt}, 0x80000\ns_cbranch_scc1 L_end")
            a(f"v_xor_b32 v14, {sTag16}, v10\nv_and_b32 v14, 0xffff, v14\nv_xor_b32 v9, {sTag8}, v11\nv_and_b32 v9, 0xff, v9\nv_or_b32 v14, v14, v9")
            a("v_cmp_ne_u32 vcc, 0, v14\ns_cbranch_vccnz L_mlspin")
            a.label("L_mlok")
            a(f"v_and_b32 v10, {sHI}, v10\nv_and_or_b32 v11, v11, {vMask}, {s80}\nv_mov_b32 v9, v10")
            red64("v_max_f32", "v9", "v8")
            a(f"v_sub_f32 v10, v10, v9\nv_mul_f32 v10, {sL2E}, v10\nv_exp_f32 v10, v10\nv_mul_f32 v11, v11, v10")
            red64("v_add_f32", "v11", "v8")
            a(f"v_rcp_f32 v11, v11\nv_mov_b32 v10, v9\ns_lshl_b32 {sT0}, s3, 3\nv_mov_b32 v8, {sT0}")
            a(f"ds_write_b64 v8, v[10:11] offset:{L_MLG}")
            barrier()
            a(f"v_and_b32 v8, 7, {vLane}\nv_lshlrev_b32 v8, 3, v8\nds_read_b64 v[10:11], v8 offset:{L_MLG}\ns_waitcnt lgkmcnt(0)")
            a(f"v_sub_f32 v10, {vMw}, v10\nv_mul_f32 v10, {sL2E}, v10\nv_exp_f32 v10, v10\nv_mul_f32 v10, v10, v11")
            a(f"v_bfe_u32 v9, {vLane}, 3, 1\nv_cmp_eq_u32 vcc, 1, v9\nv_mov_b32 v9, 0xffff\nv_mov_b32 v8, {sHI}\nv_cndmask_b32 v9, v9, v8, vcc")
            for j in range(16): a(f"v_mul_f32 v{S0+j}, v{S0+j}, v10")
            for j in range(16): a(f"v_cvt_pk_bf16_f32 v{S0+j}, v{S0+j}, v{S0+j}")
            for j in range(16): a(f"v_and_b32 v{S0+j}, v{S0+j}, v9")
            fready = True
            stamp("fready")
        while fready and pvdone < 4 and (8 * pvdone + 7) in vidx and a.done > vidx[8 * pvdone + 7]:
            pv(pvdone); pvdone += 1
            if pvdone == 2:
                if not o["wolate"]:
                    a.pace(D); irs = a.vm(f"buffer_load_dwordx4 {r4(RSK)}, {vA8}, {sWS}, s72 offen sc1")
                a(f"v_lshrrev_b32 v8, 4, {vLane}\nv_lshlrev_b32 v8, 3, v8\ns_lshl_b32 {sT0}, {sA}, 5")
                a.pace(D); ixr = a.vm(f"buffer_load_dwordx2 {r2(XK)}, v8, {sX}, {sT0} offen")
    vRW, vOW, vH1, vPub4, vRP, vAO, vRB = "v9", "v10", "v11", "v5", "v7", "v30", "v31"
    G0, AO = 16, 24
    HK = SPARE + 8
    TW = SPARE + 16
    DR = ACC
    def q16(b, lb):
        a(f"v_permlane32_swap_b32 v{b}, v{b+1}\nv_permlane32_swap_b32 v{b+2}, v{b+3}")
        a(f"v_add_f32 v{b}, v{b}, v{b+1}\nv_add_f32 v{b+2}, v{b+2}, v{b+3}")
        a(f"v_permlane16_swap_b32 v{b}, v{b+2}\nv_add_f32 v{b}, v{b}, v{b+2}")
        for k in (4, 8): a(f"v_add_f32_dpp v{b}, v{b}, v{b} row_ror:{k} row_mask:0xf bank_mask:0xf")
        a(f"ds_write_b32 {vRW}, v{b} offset:{lb}")
    def dppsum(regs, n):
        for pat in ("quad_perm:[1,0,3,2]", "quad_perm:[2,3,0,1]", "row_half_mirror")[:n]:
            for r in regs: a(f"v_add_f32_dpp v{r}, v{r}, v{r} {pat} row_mask:0xf bank_mask:0xf")
    def unpack4(d, p):
        a(f"v_lshlrev_b32 v{d}, 16, v{p}\nv_and_b32 v{d+1}, {sHI}, v{p}\nv_lshlrev_b32 v{d+2}, 16, v{p+1}\nv_and_b32 v{d+3}, {sHI}, v{p+1}")
    def pack4(p, d):
        a(f"v_cvt_pk_bf16_f32 v{p}, v{d}, v{d+1}\nv_cvt_pk_bf16_f32 v{p+1}, v{d+2}, v{d+3}")
    def ldx4(r, vo, so, off=0): return f"buffer_load_dwordx4 {r4(r)}, {vo}, {sWS}, {so} offen offset:{off} sc1"
    R8 = list(range(G0, G0+8)); R4_ = list(range(G0, G0+4))
    def latew(m, upto=4):
        for n in range(4*m, 4*m+upto):
            if n not in widx: wload(n)
    def wl4(m):
        for n in range(4*m, 4*m+4): wload(n)
    def unless_early(f, lab_):
        a(f"s_cmp_lg_u32 s93, 0\ns_cbranch_scc1 {lab_}"); f(); a.label(lab_)
    def mfma8(A, T):
        for t in range(8): a(f"v_mfma_f32_16x16x16_bf16 {r4(DR+4*t)}, {r2(A)}, {r2(T+2*t)}, 0")
    def sel4(tag):
        for q in range(4): a(f"v_cndmask_b32 v{Y+q}, v{DR+4*q}, v{DR+4*(q+4)}, {sM4}")
        if tag:
            for q in range(4): a(f"v_and_or_b32 v{Y+q}, v{Y+q}, {vMask}, {sTag8}")
    def big_reduce(lb):
        strip(R8)
        for q in range(4): a(f"v_add_f32 v{G0+q}, v{G0+q}, v{G0+4+q}")
        a(f"v_permlane32_swap_b32 v{G0}, v{G0+1}\nv_permlane32_swap_b32 v{G0+2}, v{G0+3}")
        a(f"v_add_f32 v{G0}, v{G0}, v{G0+1}\nv_add_f32 v{G0+2}, v{G0+2}, v{G0+3}\nv_permlane16_swap_b32 v{G0}, v{G0+2}\nv_add_f32 v{G0}, v{G0}, v{G0+2}")
        a(f"ds_write_b32 {vRP}, v{G0} offset:{lb}")
    def cu_reduce_pub(lb, sdst, lab_, extra=None):
        a(f"s_cmp_lg_u32 s3, 0\ns_cbranch_scc1 {lab_}")
        for i in range(4): a(f"ds_read_b128 {r4(ACC+4*i)}, {vLin} offset:{lb + 1024*i}")
        if extra: a(f"v_mov_b32 v8, 0\nds_read_b128 {r4(G0)}, v8 offset:{L_SA}")
        for i in range(1, 4):
            a(f"s_waitcnt lgkmcnt({3 - i + (1 if extra else 0)})")
            for q in range(4): a(f"v_add_f32 v{ACC+q}, v{ACC+q}, v{ACC+4*i+q}")
        for q in range(4): a(f"v_and_or_b32 v{ACC+q}, v{ACC+q}, {vMask}, {sTag8}")
        a(f"buffer_store_dwordx4 {r4(ACC)}, {vOW}, {sWS}, {sdst} offen sc1")
        if extra: extra()
        a.label(lab_)
    def pub2(base):
        a(f"v_mov_b32 v{Y+2}, {sEp}\nv_mov_b32 v{Y+3}, {sEp}")
        a(f"v_lshlrev_b32 v8, 10, {vLane}\ns_lshl_b32 {sT0}, {sB}, 11\ns_lshl_b32 {sT1}, {sA}, 4\ns_add_u32 {sT0}, {sT0}, {sT1}\ns_add_u32 {sT0}, {sT0}, {base}")
        a("s_mov_b64 exec, 3")
        a(f"buffer_store_dwordx4 {r4(Y)}, v8, {sWS}, {sT0} offen sc1")
    a(f"v_bfe_u32 v14, {vLane}, 4, 1\nv_lshlrev_b32 v8, 3, v14\nv_lshrrev_b32 v14, 5, {vLane}\nv_lshl_add_u32 v8, v14, 2, v8")
    a(f"v_and_b32 v14, 3, {vLane}\nv_lshl_add_u32 {vRW}, v14, 4, v8\ns_lshl_b32 {sT0}, s3, 6\nv_add_u32 {vRW}, {sT0}, {vRW}")
    a(f"v_and_b32 v14, 15, {vLane}\nv_lshl_add_u32 {vRP}, v14, 4, v8\ns_lshl_b32 {sT0}, s3, 8\nv_add_u32 {vRP}, {sT0}, {vRP}")
    a(f"v_and_b32 v8, 15, {vLane}\nv_lshlrev_b32 v8, 5, v8\nv_lshrrev_b32 v14, 5, {vLane}\nv_lshl_add_u32 v8, v14, 4, v8\nv_bfe_u32 v14, {vLane}, 4, 1\nv_lshl_add_u32 v8, v14, 9, v8")
    a(f"s_lshl_b32 {sT0}, s3, 12\nv_add_u32 {vOW}, {sT0}, v8")
    a(f"v_lshrrev_b32 v8, 5, {vLane}\nv_lshlrev_b32 v8, 3, v8\nv_bfe_u32 v14, {vLane}, 4, 1\nv_add_u32 v8, v8, v14\nv_mul_u32_u24 v8, {STB}, v8\nv_and_b32 v14, 15, {vLane}\nv_lshl_add_u32 {vH1}, v14, 4, v8")
    a(f"s_mul_i32 s71, {sG}, {16*STB}\ns_mul_i32 {sT0}, s3, {2*STB}\ns_add_u32 s71, s71, {sT0}\ns_lshl_b32 {sT0}, {sS}, 8\ns_add_u32 s71, s71, {sT0}\ns_add_u32 s71, s71, {WS_H1}")
    a(f"v_bfe_u32 v8, {vLane}, 3, 1\nv_mul_u32_u24 v8, {STB}, v8\nv_and_b32 v14, 7, {vLane}\nv_lshl_add_u32 v8, v14, 5, v8\nv_bfe_u32 v14, {vLane}, 4, 1\nv_lshl_add_u32 {vPub4}, v14, 4, v8")
    a(f"s_mul_i32 s73, s69, {2*STB}\ns_lshl_b32 {sT0}, {sA}, 8\ns_add_u32 s73, s73, {sT0}\ns_add_u32 s73, s73, {WS_H4}")
    a(f"s_mul_i32 s74, {sA}, {STB}\ns_lshl_b32 {sT0}, s3, 11\ns_add_u32 s74, s74, {sT0}")
    a(f"s_mul_i32 s75, {sB}, {16*STS}\ns_lshl_b32 {sT0}, {sA}, 6\ns_add_u32 s75, s75, {sT0}")
    a(f"s_mul_i32 s76, {sA}, {STS}\ns_lshl_b32 {sT0}, s3, 10\ns_add_u32 s76, s76, {sT0}")
    a(f"s_and_b32 s77, s2, 7\ns_lshl_b32 s77, s77, 10")
    a.wait_vm(ixr)
    if not o["wolate"]:
        poll([ldx4(RSK, vA8, "s72")], (list(range(RSK, RSK+4)), sTag8, "0xff"), first=False)
        strip(range(RSK, RSK+4))
        dppsum(range(RSK, RSK+4), 3)
    else:
        for q in range(4): a(f"v_mov_b32 v{RSK+q}, 0")
    unpack4(HK, XK)
    while pvdone < 4:
        a.wait_vm(vidx[8 * pvdone + 7]); pv(pvdone); pvdone += 1
    stamp("vdone")
    if o["wolate"] == 2: latew(0)
    for r in range(4):
        for t in range(4):
            a(f"v_permlane32_swap_b32 v{ACC+4*t+r}, v{ACC+4*(t+4)+r}")
        for t in range(4):
            a(f"v_add_f32 v{PT+4*r+t}, v{ACC+4*t+r}, v{ACC+4*(t+4)+r}")
        a(f"ds_write_b128 {vOW}, {r4(PT+4*r)} offset:{L_O + 1024*r}")
    barrier()
    a("s_cmp_ge_u32 s3, 4\ns_cbranch_scc1 L_noh1")
    a(f"s_lshl_b32 {sT0}, s3, 10\nv_add_u32 v8, {sT0}, {vLin}")
    for i in range(8): a(f"ds_read_b128 {r4(ACC+4*i)}, v8 offset:{L_O + 4096*i}")
    for i in range(1, 8):
        a(f"s_waitcnt lgkmcnt({7-i})")
        for q in range(4): a(f"v_add_f32 v{ACC+q}, v{ACC+q}, v{ACC+4*i+q}")
    for q in range(4): a(f"v_and_or_b32 v{ACC+q}, v{ACC+q}, {vMask}, {sTag8}")
    a(f"buffer_store_dwordx4 {r4(ACC)}, {vH1}, {sWS}, s71 offen sc1")
    a.label("L_noh1")
    stamp("h1pub")
    if o["adapt"]: a("s_mov_b32 s93, 0")
    elif 1:
        if o["w1late"]: latew(1, o["w1pre"])
        if o["w2late"]: latew(2, o["w2p0"])
    if not o["wolate"]: wtrans(wsl(0), TW)
    a(f"v_and_b32 v8, 7, {vLane}\nv_lshlrev_b32 v8, 8, v8\nv_lshrrev_b32 v14, 4, {vLane}\nv_lshl_add_u32 v8, v14, 4, v8\ns_lshr_b32 {sT0}, s3, 1\ns_lshl_b32 {sT0}, {sT0}, 6\nv_add_u32 {vAO}, {sT0}, v8")
    a(f"v_and_b32 v8, 15, {vLane}\nv_lshlrev_b32 v8, 5, v8\nv_bfe_u32 v14, {vLane}, 4, 1\nv_lshl_add_u32 v8, v14, 4, v8\ns_lshl_b32 {sT0}, s3, 9\nv_add_u32 {vRB}, {sT0}, v8")
    a(f"v_lshrrev_b32 v8, 2, {vLane}\nv_mul_u32_u24 v8, {STS}, v8\nv_and_b32 v14, 3, {vLane}\nv_lshl_add_u32 {vOW}, v14, 4, v8")
    a(f"s_lshr_b32 {sT0}, s3, 1\ns_lshl_b32 {sT0}, {sT0}, 2\nv_mov_b32 {vH1}, {sT0}")
    a(f"s_add_u32 {sT0}, s74, {WS_H1}")
    def early_w():
        wl4(1)
        if o["adw2"]: wl4(2)
    poll([ldx4(G0, vLin, sT0), ldx4(G0+4, vLin, sT0, 1024)], (R8, sTag8, "0xff"), o["d1"], early=early_w if o["adapt"] else None,
         mid=(lambda: wtrans(wsl(0), TW)) if o["wolate"] else None)
    if o["adapt"]: unless_early(lambda: wl4(1), "L_w1e")
    if o["w1late"]: latew(1, o["w1p1"])
    if o["w2late"] and o["w2pos"] == 1: latew(2)
    if o["w2late"]: latew(2, o["w2pre"])
    stamp("p1")
    big_reduce(L_R1)
    barrier()
    a(f"ds_read_b128 {r4(G0)}, {vAO} offset:{L_R1}\ns_waitcnt lgkmcnt(0)")
    dppsum(R4_, 3)
    stamp("h1got")
    pack4(AO, G0)
    mfma8(AO, TW)
    unpack4(G0, AO)
    a(f"v_mul_f32 v{G0}, v{G0}, v{RSK}")
    for q in range(1, 4): a(f"v_fmac_f32 v{G0}, v{G0+q}, v{RSK+q}")
    red4(f"v{G0}", "v8")
    a(f"ds_write_b32 {vH1}, v{G0} offset:{L_SA}")
    sel4(False)
    a(f"ds_write_b128 {vRB}, {r4(Y)} offset:{L_B}")
    barrier()
    def sapub():
        a(f"s_waitcnt lgkmcnt(0)\nv_add_f32 v{G0}, v{G0}, v{G0+1}\nv_add_f32 v{G0+2}, v{G0+2}, v{G0+3}\nv_add_f32 v{Y}, v{G0}, v{G0+2}")
        a(f"v_and_or_b32 v{Y}, v{Y}, {vMask}, {sTag8}\nv_mov_b32 v{Y+1}, {sTag8}")
        pub2(WS_SA)
        a("s_mov_b64 exec, -1")
    a(f"s_add_u32 s78, s75, {WS_H2}")
    cu_reduce_pub(L_B, "s78", "L_nob", sapub)
    stamp("h2pub")
    if o["w1late"]: latew(1)
    if o["w2late"]: latew(2, o["w2p2"])
    for r in range(o["xh"]):
        xb = 0x400000 + r * 0x50000
        a(f"s_cmp_lg_u32 s3, 0\ns_cbranch_scc1 L_x{r}a")
        for q in range(4): a(f"v_mov_b32 v{ACC+16+q}, {sTag8}")
        a(f"s_add_u32 {sT0}, s75, {xb}\nbuffer_store_dwordx4 {r4(ACC+16)}, {vOW}, {sWS}, {sT0} offen sc1")
        a.label(f"L_x{r}a")
        a(f"s_cmp_ge_u32 s3, 4\ns_cbranch_scc1 L_x{r}b\ns_add_u32 {sT0}, s76, {xb}")
        st_, o["stamps"] = o["stamps"], 0
        poll([ldx4(G0, vLin, sT0)], (R4_, sTag8, "0xff"), o["d2"])
        o["stamps"] = st_
        a.label(f"L_x{r}b")
        barrier()
    tr1 = lambda: wtrans(wsl(1), TW)
    a("s_cmp_ge_u32 s3, 4\ns_cbranch_scc1 L_g2s")
    a(f"s_add_u32 {sT0}, s76, {WS_H2}")
    poll([ldx4(G0, vLin, sT0)], (R4_, sTag8, "0xff"), o["d2"], mid=tr1)
    strip(R4_)
    q16(G0, L_R2)
    a("s_branch L_g2")
    a.label("L_g2s")
    a("s_cmp_eq_u32 s3, 4\ns_cbranch_scc1 L_g2m\ns_waitcnt vmcnt(0)")
    tr1()
    a("s_branch L_g2")
    a.label("L_g2m")
    a(f"s_add_u32 {sT0}, s77, {WS_SA}")
    poll([ldx4(G0, vLin, sT0)], ([G0, G0+1], sTag8, "0xff", G0+2), o["d2"], mid=tr1)
    strip([G0])
    red64("v_add_f32", f"v{G0}", "v8")
    a(f"v_mov_b32 v8, {sMX}\nv_fmac_f32 v8, {f32(1/1024)}, v{G0}")
    bf16r("v8", "v8")
    a(f"v_mov_b32 v14, 0\nds_write_b32 v14, v8 offset:{L_M}")
    a.label("L_g2")
    stamp("p2")
    if o["adapt"] and o["adw2"]: unless_early(lambda: wl4(2), "L_w2e")
    if o["w2late"] and o["w2pos"] == 0: latew(2, o["w2p3"])
    barrier()
    a(f"v_mov_b32 v8, 0\nds_read_b128 {r4(G0)}, {vA4} offset:{L_R2}\nds_read_b32 v14, v8 offset:{L_M}\ns_waitcnt lgkmcnt(1)")
    dppsum(R4_, 2)
    stamp("h2got")
    pack4(AO, G0); unpack4(G0, AO)
    for q in range(4): a(f"v_add_f32 v{G0+q}, v{G0+q}, v{HK+q}")
    pack4(AO, G0); unpack4(HK, AO)
    a("s_waitcnt lgkmcnt(0)")
    for q in range(4): a(f"v_sub_f32 v{G0+q}, v{HK+q}, v14")
    a("s_cmp_eq_u32 s3, 7\ns_cbranch_scc1 L_stat")
    pack4(AO, G0)
    mfma8(AO, TW)
    sel4(True)
    a("s_mov_b32 exec_hi, 0")
    a(f"buffer_store_dwordx4 {r4(Y)}, {vPub4}, {sWS}, s73 offen sc1")
    a("s_branch L_cd")
    a.label("L_stat")
    a(f"v_add_f32 v{Y}, v{G0}, v{G0+1}\nv_add_f32 v8, v{G0+2}, v{G0+3}\nv_mul_f32 v{Y+1}, v{G0}, v{G0}\nv_add_f32 v{Y}, v{Y}, v8")
    for q in range(1, 4): a(f"v_fmac_f32 v{Y+1}, v{G0+q}, v{G0+q}")
    red4(f"v{Y}", "v8"); red4(f"v{Y+1}", "v14")
    a(f"v_and_or_b32 v{Y}, v{Y}, {vMask}, {sTag8}\nv_and_or_b32 v{Y+1}, v{Y+1}, {vMask}, {sTag8}")
    pub2(WS_ST)
    a(f"s_cmp_lg_u32 s2, 0\ns_cbranch_scc1 L_cd")
    a(f"s_mov_b64 exec, 1\nbuffer_store_dword v{Y+2}, v8, {sWS}, 0 offen offset:{WS_EPOCH} sc1")
    if o["stamps"] == 3: a(f"v_xor_b32 v14, 0x5a5a1234, v{Y+2}\nbuffer_store_dword v14, v8, {sWS}, 0 offen offset:{WS_EPOCH+4} sc1")
    a.label("L_cd")
    a("s_mov_b64 exec, -1")
    if o["w2late"]: latew(2)
    stamp("h4pub")
    a(f"s_cmp_ge_u32 {sA}, 56\ns_cbranch_scc1 L_nod")
    a(f"s_add_u32 {sT0}, s74, {WS_H4}")
    tr2 = lambda: wtrans(wsl(2), TW)
    a("s_cmp_eq_u32 s3, 7\ns_cbranch_scc1 L_g4s")
    poll([ldx4(G0, vLin, sT0), ldx4(G0+4, vLin, sT0, 1024)], (R8, sTag8, "0xff"), o["d4"], mid=tr2)
    big_reduce(L_R4)
    a("s_branch L_g4")
    a.label("L_g4s")
    a(f"s_add_u32 {sT1}, s77, {WS_ST}")
    poll([ldx4(G0, vLin, sT0), ldx4(G0+4, vLin, sT0, 1024), ldx4(Y, vLin, sT1)], (R8 + [Y, Y+1], sTag8, "0xff", Y+2), o["d4"], mid=tr2)
    big_reduce(L_R4)
    strip([Y, Y+1])
    a(f"v_permlane32_swap_b32 v{Y}, v{Y+1}\nv_add_f32 v{G0}, v{Y}, v{Y+1}")
    a(f"v_mov_b32 v8, v{G0}\nv_permlane16_swap_b32 v8, v{G0}\nv_add_f32 v{G0}, v{G0}, v8")
    for k in (8, 4, 2, 1): a(f"v_add_f32_dpp v{G0}, v{G0}, v{G0} row_ror:{k} row_mask:0xf bank_mask:0xf")
    a(f"v_mul_f32 v{G0}, {f32(1/1024)}, v{G0}\nv_mov_b32 v8, v{G0}\nv_permlane32_swap_b32 v8, v{G0}")
    vr = f"v{G0}"
    a(f"v_fma_f32 {vr}, -v8, v8, {vr}\nv_max_f32 {vr}, 0, {vr}"); bf16r(vr, vr)
    a(f"v_add_f32 {vr}, {f32(1e-5)}, {vr}"); bf16r(vr, vr)
    a(f"v_sqrt_f32 {vr}, {vr}"); bf16r(vr, vr)
    a(f"v_rcp_f32 {vr}, {vr}\nv_mov_b32 v8, 0\nds_write_b32 v8, {vr} offset:{L_RI}")
    a.label("L_g4")
    stamp("p4")
    barrier()
    a(f"v_mov_b32 v8, 0\nds_read_b128 {r4(G0)}, {vAO} offset:{L_R4}\nds_read_b32 v14, v8 offset:{L_RI}\ns_waitcnt lgkmcnt(1)")
    dppsum(R4_, 3)
    a("s_waitcnt lgkmcnt(0)")
    stamp("h4got")
    for q in range(4): a(f"v_mul_f32 v{G0+q}, v{G0+q}, v14")
    pack4(AO, G0); unpack4(G0, AO)
    for q in range(4): a(f"v_mul_f32 v{G0+4+q}, {sL2E}, v{G0+q}")
    for q in range(4): a(f"v_exp_f32 v{G0+4+q}, -v{G0+4+q}")
    for q in range(4): a(f"v_add_f32 v{G0+4+q}, 1.0, v{G0+4+q}")
    for q in range(4): a(f"v_rcp_f32 v{G0+4+q}, v{G0+4+q}")
    for q in range(4): a(f"v_mul_f32 v{G0+q}, v{G0+q}, v{G0+4+q}")
    pack4(AO, G0)
    mfma8(AO, TW)
    sel4(False)
    a(f"ds_write_b128 {vRB}, {r4(Y)} offset:{L_D}")
    barrier()
    a(f"s_add_u32 s78, s75, {WS_H5}")
    cu_reduce_pub(L_D, "s78", "L_nod")
    stamp("h5pub")
    a(f"s_cmp_lg_u32 {sB}, 0\ns_cbranch_scc1 L_fin")
    a("s_cmp_ge_u32 s3, 4\ns_cbranch_scc1 L_g5")
    for q in range(4): a(f"v_mov_b32 v{G0+q}, 0")
    a(f"s_add_u32 {sT0}, s76, {WS_H5}\ns_cmp_eq_u32 s3, 3\ns_cselect_b32 exec_hi, 0, -1")
    poll([ldx4(G0, vLin, sT0)], (R4_, sTag8, "0xff"), o["d5"])
    strip(R4_)
    q16(G0, L_R5)
    a.label("L_g5")
    stamp("p5")
    barrier()
    a("s_cmp_lg_u32 s3, 0\ns_cbranch_scc1 L_fin")
    a(f"ds_read_b128 {r4(G0)}, {vA4} offset:{L_R5}\nv_lshrrev_b32 v8, 4, {vLane}\nv_lshlrev_b32 v8, 3, v8\ns_lshl_b32 {sT0}, {sA}, 5\ns_waitcnt lgkmcnt(0)")
    dppsum(R4_, 2)
    pack4(AO, G0); unpack4(G0, AO)
    for q in range(4): a(f"v_add_f32 v{G0+q}, v{G0+q}, v{HK+q}")
    pack4(AO, G0)
    a("s_mov_b32 exec_lo, 0x10001\ns_mov_b32 exec_hi, 0x10001")
    a(f"buffer_store_dwordx2 {r2(AO)}, v8, {sOUT}, {sT0} offen")
    a("s_mov_b64 exec, -1")
    a.label("L_fin")
    if o["stamps"]:
        stamp("end")
        a(f"s_lshl_b32 {sT0}, s2, 3\ns_add_u32 {sT0}, {sT0}, s3\ns_lshl_b32 {sT0}, {sT0}, 7\ns_add_u32 {sT0}, {sT0}, {WS_DBG}")
        a(f"v_lshlrev_b32 v8, 2, {vLane}\ns_mov_b32 exec_hi, 0")
        a(f"buffer_store_dword {vStamp}, v8, {sWS}, {sT0} offen")
        if o["stamps"] == 3:
            a("s_cmp_eq_u32 s97, 0x5a5a1234\ns_cbranch_scc1 L_end")
            a(f"s_or_b32 {sT0}, s2, s3\ns_cmp_lg_u32 {sT0}, 0\ns_cbranch_scc1 L_end")
            a(f"v_readlane_b32 {sT0}, {vStamp}, 0\nv_readlane_b32 {sT1}, {vStamp}, {nst[0]-1}\ns_nop 3\ns_sub_u32 {sT1}, {sT1}, {sT0}\ns_cmp_lt_u32 {sT1}, {o['thr']}\ns_cbranch_scc1 L_end")
            a(f"v_subrev_u32 v9, {sT0}, {vStamp}\nv_cvt_f32_u32 v9, v9\nv_mul_f32 v9, {f32(0.04)}, v9\nv_rndne_f32 v9, v9\nv_cvt_pk_bf16_f32 v9, v9, v9")
            lanes = o.get("lanes", [3, 4, 5, 7, 9, 12, 14, 16])
            a("s_waitcnt vmcnt(0)")
            for n, ln in enumerate(lanes):
                a(f"v_mov_b32 v8, {2*n}\ns_mov_b32 exec_lo, {1 << ln}\nv_mov_b32 v8, {2*n}\nbuffer_store_short v9, v8, {sOUT}, 0 offen\ns_nop 1")
        if o["stamps"] == 2:
            a(f"s_or_b32 {sT0}, s2, s3\ns_cmp_lg_u32 {sT0}, 0\ns_cbranch_scc1 L_end")
            a(f"v_readlane_b32 {sT0}, {vStamp}, 0\nv_subrev_u32 v9, {sT0}, {vStamp}\nv_subrev_u32 v8, 4, v8\ns_mov_b32 exec_lo, 0x1fffe")
            a(f"buffer_store_dword v9, v8, {sDBG}, 0 offen")
    a.label("L_end")
    a("s_endpgm")
    a.raw(f'''.section .rodata,"a"
.p2align 6
.amdhsa_kernel {KN}
  .amdhsa_next_free_vgpr 256
  .amdhsa_next_free_sgpr 102
  .amdhsa_accum_offset 256
  .amdhsa_group_segment_fixed_size 0
  .amdhsa_kernarg_size 88
  .amdhsa_user_sgpr_count 2
  .amdhsa_user_sgpr_kernarg_segment_ptr 1
  .amdhsa_system_sgpr_workgroup_id_x 1
.end_amdhsa_kernel''')
    return a.text()

if __name__ == "__main__":
    kw = {}
    out = sys.argv[1]
    for x in sys.argv[2:]:
        k, v = x.split("="); kw[k] = int(v)
    open(out, "w").write(gen(**kw))
```

```python
import struct, sys
sys.path.insert(0, "work")
from asmlib import Asm
KN = "sequential_preLN__gqa_block_cached__dense_activation_silu__decode_kernel"
def f32(x): return "0x%08x" % struct.unpack("<I", struct.pack("<f", x))[0]

WS_EPOCH = 0
WS_QP = 0x10000
WS_ML = 0x40000
WS_ST = 0x48000
WS_SA = 0x4C000
WS_RS = 0x50000
WS_H2 = 0x70000
WS_H1 = 0xC0000
WS_H4 = 0x200000
WS_H5 = 0x300000
WS_DBG = 0x800000
L_QRED, L_QF, L_ML, L_MLG = 0, 4096, 6144, 6656
L_R2, L_SA, L_M, L_RI, L_R5, L_R1, L_R4, L_B, L_O = 6912, 7168, 7184, 7188, 7424, 8192, 10240, 12288, 16384
L_D = L_O
L_M2 = 7200
LDS_BYTES = 49152

DEF = dict(pad=1, xa=1, thr=3600, qbar=1, depth=6, qload_pos=22, qproc_pos=29, ml_pos=16, stamps=0,
           d1=16, d2=16, d4=16, d5=16, back=0, w1late=1, w2late=1, w2pos=0, w1pre=4, w2pre=0, w2p0=0, xh=0, gsh=0, adapt=0, adw2=1, wolate=0, x1=1, x2=1, x3=1, x4=1, x5=1, dl=6, dlpos=20, y0=0, y1=0, y2=0, y3=0, w2p2=0, w2p3=2, w1p1=4, qe=8, qmap=0, ob0=0, ob1=0, obn=1, outpol=0, hack=0, sarid=1, pairl=0, pads=128, lpad=16, owc=1)

def gen(**kw):
    o = dict(DEF); o.update(kw)
    D = o["depth"]
    pad = o["pad"]
    STB, STS = 16384 + 256 * pad, 4096 + 128 * pad
    a = Asm()
    a.raw(open("sequential_preLN__gqa_block_cached__dense_activation_silu__decode.s.ref").read().split("; Override")[0].rstrip())
    a.raw(f"; @launch grid=(256,1,1) block=(512,1,1) lds={LDS_BYTES}")
    a.raw('.amdgcn_target "amdgcn-amd-amdhsa--gfx950"\n.text')
    a.raw(f".globl {KN}\n.p2align 8\n.type {KN},@function\n{KN}:")
    sK, sV, sWS, sX, sWQ, sWO, sW1, sW2, sOUT, sDBG = [f"s[{b}:{b+3}]" for b in (8, 12, 16, 20, 24, 28, 32, 36, 40, 44)]
    sG, sS, sT0, sT1 = "s4", "s5", "s6", "s7"
    sKo, sVo = "s49", "s50"
    sTag8, sTag16, sEp = "s51", "s52", "s53"
    sPL, sPH, sHI, sSC, sL2E, s80 = "s54", "s55", "s56", "s57", "s58", "s59"
    sM4 = "s[60:61]"
    sCnt = "s62"; sT2 = "s63"; sTag2 = "s48"; sA = "s90"; sB = "s91"; sMX = "s92"
    vLane, vKoff, vLin, vMask = "v1", "v2", "v3", "v4"
    vMw, vXr, vH = "v5", "v6", "v7"
    vt = [f"v{i}" for i in range(8, 15)]
    vStamp = "v15"
    S0 = 16
    ACC = 32
    SLOT = 64
    PT = 240
    def slot(i): return SLOT + 4 * i
    def r4(b): return f"v[{b}:{b+3}]"
    def r2(b): return f"v[{b}:{b+1}]"
    nst = [0]
    def stamp(name):
        if not o["stamps"]: return
        a("s_memrealtime s[98:99]\ns_waitcnt lgkmcnt(0)")
        a(f"v_writelane_b32 {vStamp}, s98, {nst[0]}")
        nst[0] += 1
    def bf16r(d, s):
        a(f"v_cvt_pk_bf16_f32 {d}, {s}, {s}\nv_lshlrev_b32 {d}, 16, {d}")
    def red64(op, v, t):
        a(f"v_mov_b32 {t}, {v}\nv_permlane32_swap_b32 {t}, {v}\n{op} {v}, {v}, {t}")
        a(f"v_mov_b32 {t}, {v}\nv_permlane16_swap_b32 {t}, {v}\n{op} {v}, {v}, {t}")
        for k in (8, 4, 2, 1):
            a(f"{op}_dpp {v}, {v}, {v} row_ror:{k} row_mask:0xf bank_mask:0xf")
    def red_rows(op, v, t):
        a(f"v_mov_b32 {t}, {v}\nv_permlane32_swap_b32 {t}, {v}\n{op} {v}, {v}, {t}")
        a(f"v_mov_b32 {t}, {v}\nv_permlane16_swap_b32 {t}, {v}\n{op} {v}, {v}, {t}")
        a(f"{op}_dpp {v}, {v}, {v} row_ror:8 row_mask:0xf bank_mask:0xf")
    def ln_stats(b, vm, vr, t0, t1):
        a(f"v_add_f32 {t0}, v{b}, v{b+1}")
        for i in range(2, 16): a(f"v_add_f32 {t0}, {t0}, v{b+i}")
        red64("v_add_f32", t0, t1)
        a(f"v_mul_f32 {t0}, {f32(1/1024)}, {t0}")
        for i in range(16): a(f"v_sub_f32 v{b+i}, v{b+i}, {t0}")
        a(f"v_mul_f32 {vr}, v{b}, v{b}")
        for i in range(1, 16): a(f"v_fmac_f32 {vr}, v{b+i}, v{b+i}")
        red64("v_add_f32", vr, t1)
        bf16r(vm, t0)
        a(f"v_mul_f32 {vr}, {f32(1/1024)}, {vr}")
        bf16r(vr, vr)
        a(f"v_add_f32 {vr}, {f32(1e-5)}, {vr}")
        bf16r(vr, vr)
        a(f"v_sqrt_f32 {vr}, {vr}")
        bf16r(vr, vr)
        a(f"v_rcp_f32 {vr}, {vr}")
    def ln_apply(h, A, vm, vr):
        for i in range(4): a(f"v_sub_f32 v{h+i}, v{h+i}, {vm}")
        a(f"v_cvt_pk_bf16_f32 v{A}, v{h}, v{h+1}\nv_cvt_pk_bf16_f32 v{A+1}, v{h+2}, v{h+3}")
        a(f"v_lshlrev_b32 v{h}, 16, v{A}\nv_and_b32 v{h+1}, {sHI}, v{A}\nv_lshlrev_b32 v{h+2}, 16, v{A+1}\nv_and_b32 v{h+3}, {sHI}, v{A+1}")
        for i in range(4): a(f"v_mul_f32 v{h+i}, v{h+i}, {vr}")
        a(f"v_cvt_pk_bf16_f32 v{A}, v{h}, v{h+1}\nv_cvt_pk_bf16_f32 v{A+1}, v{h+2}, v{h+3}")
    def wtrans(src, dst):
        for t in range(8):
            for j in range(2):
                a(f"v_perm_b32 v{dst+2*t+j}, v{src+4*(2*j+1)+(t>>1)}, v{src+4*(2*j)+(t>>1)}, {sPH if t & 1 else sPL}")
    def gemv(A, T, Dr, Y, tag=True):
        for t in range(8):
            a(f"v_mfma_f32_16x16x16_bf16 {r4(Dr+4*t)}, {r2(A)}, {r2(T+2*t)}, 0")
        for q in range(4):
            a(f"v_cndmask_b32 v{Y+q}, v{Dr+4*q}, v{Dr+4*(q+4)}, {sM4}")
        if tag:
            for q in range(4): a(f"v_and_or_b32 v{Y+q}, v{Y+q}, {vMask}, {sTag8}")
    lab = [0]; npoll = [0]; nob = [0]
    def pace(d):
        if o["ob0"] <= a.nvm < o["ob1"] and a.nvm - a.done >= d:
            a.pace(d + o["obn"])
            nob[0] += 1
            a(f"s_bitcmp1_b32 s2, 0\ns_cbranch_scc1 L_ob{nob[0]}\ns_waitcnt vmcnt({d-1})")
            a.label(f"L_ob{nob[0]}")
        else: a.pace(d)
    def red4(v, t):
        a(f"v_mov_b32 {t}, {v}\nv_permlane32_swap_b32 {t}, {v}\nv_add_f32 {v}, {v}, {t}")
        a(f"v_mov_b32 {t}, {v}\nv_permlane16_swap_b32 {t}, {v}\nv_add_f32 {v}, {v}, {t}")
    def poll(loads, checks, delay=0, first=True, mid=None, early=None):
        n = lab[0]; lab[0] += 1
        a(f"s_mov_b32 {sCnt}, 0")
        if first:
            if delay: a(f"s_sleep {delay}")
            for l in loads: a(l)
            if mid:
                a(f"s_waitcnt vmcnt({len(loads)})"); mid()
            a("s_waitcnt vmcnt(0)")
        a.label(f"L_pollc{n}")
        check(*checks)
        a(f"s_mov_b64 exec, vcc\ns_cbranch_execz L_polld{n}")
        if early:
            a(f"s_cmp_lg_u32 {sCnt}, 0\ns_cbranch_scc1 L_polle{n}\ns_bcnt1_i32_b64 {sT2}, vcc\ns_cmp_lt_u32 {sT2}, {o['adapt']}\ns_cbranch_scc1 L_polle{n}")
            a("s_mov_b64 exec, -1\ns_mov_b32 s93, 1")
            early()
            a("s_mov_b64 exec, vcc")
            a.label(f"L_polle{n}")
        a(f"s_add_u32 {sCnt}, {sCnt}, 1\ns_cmp_gt_u32 {sCnt}, 0x80000\ns_cbranch_scc1 L_end")
        if o["back"]: a(f"s_sleep {o['back']}")
        for l in loads: a(l)
        a(f"s_waitcnt vmcnt(0)\ns_branch L_pollc{n}")
        a.label(f"L_polld{n}")
        a("s_mov_b64 exec, -1")
        if o["stamps"] == 1:
            a(f"s_add_u32 {sCnt}, {sCnt}, 1\nv_writelane_b32 {vStamp}, {sCnt}, {24 + npoll[0]}"); npoll[0] += 1
    def check(regs, tagreg, maskc, full=None):
        c = vt[6]
        a(f"v_xor_b32 {c}, {tagreg}, v{regs[0]}")
        for r in regs[1:]: a(f"v_bitop3_b32 {c}, v{r}, {tagreg}, {c} bitop3:0xbe")
        if len(regs) > 2:
            a(f"v_or_b32_dpp {c}, {c}, {c} quad_perm:[1,0,3,2] row_mask:0xf bank_mask:0xf")
        a(f"v_and_b32 {c}, {maskc}, {c}")
        if full is not None: a(f"v_bitop3_b32 {c}, v{full}, {sEp}, {c} bitop3:0xbe")
        a(f"v_cmp_ne_u32 vcc, 0, {c}")
    def strip(regs):
        for r in regs: a(f"v_and_or_b32 v{r}, v{r}, {vMask}, {s80}")
    def barrier():
        a("s_waitcnt lgkmcnt(0)\ns_barrier")

    a("s_cmp_ge_u32 s2, 0x100\ns_cbranch_scc1 L_end")
    a("s_load_dwordx16 s[64:79], s[0:1], 0\ns_load_dwordx4 s[80:83], s[0:1], 64\ns_load_dwordx2 s[84:85], s[0:1], 80")
    if o["stamps"]: a(f"v_mov_b32 {vStamp}, 0")
    stamp("start")
    if o["stamps"] == 1:
        a(f"s_getreg_b32 s96, hwreg(HW_REG_XCC_ID)\ns_getreg_b32 s97, hwreg(HW_REG_HW_ID)\ns_and_b32 s96, s96, 15\ns_add_u32 s96, s96, 1\nv_writelane_b32 {vStamp}, s96, 23\nv_writelane_b32 {vStamp}, s97, 22")
    a(f"v_and_b32 {vLane}, 63, v0\nv_lshrrev_b32 v8, 6, v0")
    a("v_readfirstlane_b32 s3, v8")
    a(f"v_lshlrev_b32 {vLin}, 4, {vLane}")
    a(f"v_bfe_u32 v8, {vLane}, 1, 1\nv_lshlrev_b32 v8, 10, v8\nv_bfe_u32 v9, {vLane}, 2, 2\nv_lshl_add_u32 v8, v9, 8, v8")
    a(f"v_lshrrev_b32 v9, 4, {vLane}\nv_lshl_add_u32 v8, v9, 5, v8\nv_and_b32 v9, 1, {vLane}\nv_lshl_add_u32 {vKoff}, v9, 4, v8")
    a(f"v_mov_b32 {vMask}, 0xffffff00")
    gsh = o["gsh"]
    if gsh == 0:
        a(f"s_and_b32 {sG}, s2, 3\ns_lshr_b32 {sS}, s2, 2")
    else:
        a(f"s_bfe_u32 {sG}, s2, {0x20000 | gsh}\ns_lshr_b32 {sS}, s2, {gsh+2}\ns_lshl_b32 {sS}, {sS}, {gsh}\ns_and_b32 {sT0}, s2, {(1<<gsh)-1}\ns_or_b32 {sS}, {sS}, {sT0}")
    if o["xa"]:
        a(f"s_lshr_b32 {sA}, s2, 5\ns_lshl_b32 {sA}, {sA}, 3\ns_and_b32 {sB}, s2, 7\ns_or_b32 {sA}, {sA}, {sB}\ns_bfe_u32 {sB}, s2, 0x20003")
    else:
        a(f"s_mov_b32 {sA}, {sS}\ns_mov_b32 {sB}, {sG}")
    a(f"s_mov_b32 {sPL}, 0x05040100\ns_mov_b32 {sPH}, 0x07060302\ns_mov_b32 {sHI}, 0xffff0000")
    a(f"s_mov_b32 {sSC}, {f32(128 ** -0.5)}\ns_mov_b32 {sL2E}, {f32(1.4426950408889634)}\ns_mov_b32 {s80}, 0x80")
    a(f"s_mov_b32 s60, 0xffff0000\ns_mov_b32 s61, 0xffff0000")
    a(f"s_lshl_b32 {sT0}, {sS}, 3\ns_add_u32 {sT0}, {sT0}, s3\ns_lshl_b32 {sT0}, {sT0}, 12\ns_lshl_b32 {sT1}, {sG}, 24\ns_add_u32 {sKo}, {sT0}, {sT1}\ns_mov_b32 {sVo}, {sKo}")
    a(f"v_lshrrev_b32 v9, 4, {vLane}\nv_and_b32 v8, 15, {vLane}\nv_lshlrev_b32 v8, 4, v8\nv_lshl_add_u32 v10, v9, 15, v8")
    a(f"v_lshlrev_b32 v11, 3, v9\nv_lshlrev_b32 v12, 5, {vLane}")
    a("s_waitcnt lgkmcnt(0)")
    if o["hack"] & 16: stamp("karg")
    def srd(base, p, size):
        a(f"s_mov_b32 s{base}, s{p}\ns_and_b32 s{base+1}, s{p+1}, 0xffff\ns_mov_b32 s{base+2}, {size}\ns_mov_b32 s{base+3}, 0x20000")
    srd(20, 64, 2048); srd(24, 70, 8 << 20); srd(8, 66, 64 << 20)
    XR = PT
    ix0 = a.vm(f"buffer_load_dwordx4 {r4(XR)}, v12, {sX}, 0 offen")
    ix1 = a.vm(f"buffer_load_dwordx4 {r4(XR+4)}, v12, {sX}, 0 offen offset:16")
    E = o["qe"]
    qm = o["qmap"]
    if E == 8:
        a(f"s_lshr_b32 s95, s2, {qm+5}\ns_lshl_b32 s95, s95, {qm}\ns_and_b32 {sT0}, s2, {(1<<qm)-1}\ns_or_b32 s95, s95, {sT0}")
        a(f"s_lshl_b32 {sT0}, s95, 3\ns_add_u32 {sT0}, {sT0}, s3")
        a(f"s_bfe_u32 s94, s2, {0x50000 | qm}\ns_lshl_b32 s94, s94, 8")
    else:
        a(f"s_lshr_b32 s95, s2, 6\ns_lshl_b32 s95, s95, 4\ns_add_u32 s95, s95, s3")
        a(f"s_and_b32 {sT1}, s2, 1\ns_mul_i32 {sT0}, {sT1}, {E}\ns_add_u32 {sT0}, {sT0}, s95")
        a(f"s_mul_i32 {sT1}, {sT1}, s3\ns_cmp_ge_u32 {sT1}, {16-E}\ns_cselect_b32 {sT0}, 64, {sT0}")
        a(f"s_add_u32 s95, s95, 8\ns_and_b32 {sT1}, s2, 1\ns_lshl_b32 {sT1}, {sT1}, 3\ns_add_u32 {sT1}, {sT1}, s3\ns_cmp_ge_u32 {sT1}, {E-8}\ns_cselect_b32 s95, 64, s95")
        a(f"s_bfe_u32 s94, s2, 0x50001\ns_lshl_b32 s94, s94, 8")
    a(f"s_lshl_b32 {sT1}, {sT0}, 5")
    ix2 = a.vm(f"buffer_load_dwordx2 {r2(XR+8)}, v11, {sX}, {sT1} offen")
    if E != 8:
        a(f"s_lshl_b32 {sT1}, s95, 5")
        ix2 = a.vm(f"buffer_load_dwordx2 {r2(XR+10)}, v11, {sX}, {sT1} offen")
    a(f"s_lshl_b32 {sT0}, {sT0}, 17\ns_add_u32 {sT0}, {sT0}, s94")
    for i in range(4):
        iwq = a.vm(f"buffer_load_dwordx4 {r4(slot(32+i))}, v10, {sWQ}, {sT0} offen nt")
        if i < 3: a(f"s_add_u32 {sT0}, {sT0}, 8192")
    if E != 8:
        a(f"s_lshl_b32 {sT0}, s95, 17\ns_add_u32 {sT0}, {sT0}, s94")
        for i in range(4):
            iwq2 = a.vm(f"buffer_load_dwordx4 {r4(slot(36+i))}, v10, {sWQ}, {sT0} offen nt")
            if i < 3: a(f"s_add_u32 {sT0}, {sT0}, 8192")
    kidx = {}
    def kload(k):
        kidx[k] = a.vm(f"buffer_load_dwordx4 {r4(slot(k))}, {vKoff}, {sK}, {sKo} offen offset:{(k%2)*128 + ((k%4)//2)*2048} nt")
        if k % 4 == 3: a(f"s_add_u32 {sKo}, {sKo}, 0x200000")
    K0 = o.get("k0", D)
    if o["qbar"]: a("s_barrier")
    for k in range(K0): kload(k)
    if o["hack"] & 16: stamp("kiss")
    srd(12, 68, 64 << 20); srd(16, 84, 256 << 20); srd(28, 72, 8 << 20); srd(32, 76, 7 << 20); srd(36, 78, 7 << 20); srd(40, 80, 2048); srd(44, 82, 256)
    a(f"s_load_dword {sEp}, s[84:85], {WS_EPOCH}")
    if o["stamps"] == 3: a(f"s_load_dword s97, s[84:85], {WS_EPOCH+4}\ns_waitcnt lgkmcnt(0)\ns_xor_b32 s97, s97, {sEp}")
    a.wait_vm(ix1)
    if o["hack"] & 16: stamp("xgot")
    XF = ACC
    for i in range(8):
        a(f"v_lshlrev_b32 v{XF+2*i}, 16, v{XR+i}\nv_and_b32 v{XF+2*i+1}, {sHI}, v{XR+i}")
    ln_stats(XF, vt[0], vt[1], vt[2], vt[3])
    a(f"v_readfirstlane_b32 {sMX}, {vt[2]}")
    def kmore(n):
        for _ in range(n): kload(len(kidx))
    kmore(o["y0"])
    a.wait_vm(ix2)
    a(f"v_lshlrev_b32 v48, 16, v{XR+8}\nv_and_b32 v49, {sHI}, v{XR+8}\nv_lshlrev_b32 v50, 16, v{XR+9}\nv_and_b32 v51, {sHI}, v{XR+9}")
    ln_apply(48, 52, vt[0], vt[1])
    a(f"v_mov_b32 v16, v52\nv_mov_b32 v17, v53")
    if E != 8:
        a(f"v_lshlrev_b32 v48, 16, v{XR+10}\nv_and_b32 v49, {sHI}, v{XR+10}\nv_lshlrev_b32 v50, 16, v{XR+11}\nv_and_b32 v51, {sHI}, v{XR+11}")
        ln_apply(48, 18, vt[0], vt[1])
    a.wait_vm(iwq)
    stamp("wq")
    kmore(o["y1"])
    wtrans(slot(32), PT)
    if E == 8:
        gemv(16, PT, ACC, 20, tag=False)
    else:
        for t in range(8): a(f"v_mfma_f32_16x16x16_bf16 {r4(ACC+4*t)}, {r2(16)}, {r2(PT+2*t)}, 0")
        a("s_cmp_eq_u32 s95, 64\ns_cbranch_scc1 L_q1")
        a(f"s_waitcnt vmcnt({a.nvm - iwq2 - 1})\ns_nop 4")
        wtrans(slot(36), PT)
        for t in range(8): a(f"v_mfma_f32_16x16x16_bf16 {r4(ACC+4*t)}, {r2(18)}, {r2(PT+2*t)}, {r4(ACC+4*t)}")
        a.label("L_q1")
        for q in range(4): a(f"v_cndmask_b32 v{20+q}, v{ACC+4*q}, v{ACC+4*(q+4)}, {sM4}")
    a(f"v_and_b32 v8, 15, {vLane}\nv_lshlrev_b32 v8, 5, v8\nv_bfe_u32 v9, {vLane}, 4, 1\nv_lshl_add_u32 v8, v9, 4, v8")
    a(f"s_lshl_b32 {sT0}, s3, 9\nv_add_u32 v8, {sT0}, v8")
    a(f"ds_write_b128 v8, {r4(20)} offset:{L_QRED}")
    kmore(o["y2"])
    a(f"s_waitcnt lgkmcnt(0)\ns_add_u32 {sEp}, {sEp}, 1\ns_and_b32 {sTag8}, {sEp}, 0xff\ns_and_b32 {sTag16}, {sEp}, 0xffff\ns_and_b32 {sTag2}, {sEp}, 3")
    a("s_barrier")
    kmore(o["y3"])
    a("s_cmp_lg_u32 s3, 0\ns_cbranch_scc1 L_noq")
    a(f"v_and_b32 v8, 0x1f0, {vLin}")
    for i in range(8): a(f"ds_read_b128 {r4(ACC+4*i)}, v8 offset:{L_QRED + 512*i}")
    a("s_waitcnt lgkmcnt(0)")
    for i in range(1, 8):
        for q in range(4): a(f"v_add_f32 v{ACC+q}, v{ACC+q}, v{ACC+4*i+q}")
    if E == 8:
        a(f"s_lshl_b32 {sT0}, s94, 4\ns_lshl_b32 {sT1}, s95, 9\ns_add_u32 {sT0}, {sT0}, {sT1}\ns_add_u32 {sT0}, {sT0}, {WS_QP}")
    else:
        a(f"s_lshl_b32 {sT0}, s94, 4\ns_lshr_b32 {sT1}, s2, 6\ns_lshl_b32 {sT1}, {sT1}, 10\ns_add_u32 {sT0}, {sT0}, {sT1}\ns_and_b32 {sT1}, s2, 1\ns_lshl_b32 {sT1}, {sT1}, 9\ns_add_u32 {sT0}, {sT0}, {sT1}\ns_add_u32 {sT0}, {sT0}, {WS_QP}")
    a("s_mov_b32 exec_hi, 0")
    for q in range(4): a(f"v_and_b32 v{ACC+q}, -4, v{ACC+q}\nv_or_b32 v{ACC+q}, {sTag2}, v{ACC+q}")
    a(f"buffer_store_dwordx4 {r4(ACC)}, v8, {sWS}, {sT0} offen sc1")
    a("s_mov_b64 exec, -1")
    a.label("L_noq")
    stamp("qpub")
    QL = S0
    for k in range(len(kidx), 32):
        pace(D); kload(k)
        if k == o["qload_pos"]:
            a(f"s_lshl_b32 {sT0}, {sG}, 3\ns_add_u32 {sT0}, {sT0}, s3\ns_lshl_b32 {sT2}, {sT0}, 12\ns_add_u32 {sT2}, {sT2}, {WS_QP}")
            for i in range(4):
                a.pace(D); iq = a.vm(f"buffer_load_dwordx4 {r4(QL+4*i)}, {vLin}, {sWS}, {sT2} offen offset:{1024*i} sc1")
        if k == o["qproc_pos"]:
            a.wait_vm(iq)
            poll([f"buffer_load_dwordx4 {r4(QL+4*i)}, {vLin}, {sWS}, {sT2} offen offset:{1024*i} sc1" for i in range(4)], (list(range(QL, QL+16)), sTag2, "3"), first=False)
            for q in range(16): a(f"v_and_b32 v{QL+q}, -4, v{QL+q}")
            for q in range(4):
                a(f"v_add_f32 v{QL+q}, v{QL+q}, v{QL+4+q}\nv_add_f32 v{QL+8+q}, v{QL+8+q}, v{QL+12+q}")
            for q in range(4): a(f"v_add_f32 v{QL+q}, v{QL+q}, v{QL+8+q}")
            for q in range(4): a(f"v_mov_b32 v{QL+4+q}, v{QL+q}")
            for q in range(4): a(f"v_permlane32_swap_b32 v{QL+4+q}, v{QL+q}")
            for q in range(4): a(f"v_add_f32 v{QL+q}, v{QL+q}, v{QL+4+q}")
            a(f"v_cvt_pk_bf16_f32 v{QL+8}, v{QL}, v{QL+1}\nv_cvt_pk_bf16_f32 v{QL+9}, v{QL+2}, v{QL+3}")
            a(f"v_and_b32 v8, 31, {vLane}\nv_lshlrev_b32 v8, 3, v8\ns_lshl_b32 {sT0}, s3, 8\nv_add_u32 v8, {sT0}, v8")
            a(f"ds_write_b64 v8, {r2(QL+8)} offset:{L_QF}")
            barrier()
            a(f"v_and_b32 v8, 7, {vLane}\nv_lshlrev_b32 v8, 8, v8\nv_lshrrev_b32 v9, 4, {vLane}\nv_lshl_add_u32 v8, v9, 5, v8\nv_bfe_u32 v9, {vLane}, 3, 1\nv_lshl_add_u32 v8, v9, 4, v8")
            a(f"ds_read_b128 {r4(PT)}, v8 offset:{L_QF}\nds_read_b128 {r4(PT+4)}, v8 offset:{L_QF+128}")
            stamp("qready")
    seq = [("w", n) for n in range(4)] if not o["wolate"] else []
    if not o["w1late"]: seq += [("w", n) for n in range(4, 8)]
    if not o["w2late"]: seq += [("w", n) for n in range(8, 12)]
    seq += [("v", i) for i in range(32)]
    order = list(range(32, 44)) + list(range(32))
    place = {e: order[k] for k, e in enumerate(seq)}
    rest = order[len(seq):]
    for n in range(12):
        if ("w", n) not in place: place[("w", n)] = rest.pop(0)
    if o["wolate"] == 1: seq += [("w", n) for n in range(4)]
    def vslot(i): return place[("v", i)]
    def wsl(m): return slot(place[("w", 4*m)])
    widx = {}
    def wsetup():
        a(f"v_lshrrev_b32 v9, 4, {vLane}\nv_and_b32 v8, 15, {vLane}\nv_lshlrev_b32 v8, 4, v8\nv_lshl_add_u32 v12, v9, 13, v8")
        a(f"v_mul_u32_u24 v9, {4*7168}, v9\nv_add_u32 v13, v9, v8")
        a(f"s_lshl_b32 s64, {sA}, 17\ns_lshr_b32 {sT0}, s3, 1\ns_lshl_b32 {sT0}, {sT0}, 15\ns_add_u32 s64, s64, {sT0}")
        a(f"s_lshl_b32 {sT0}, {sB}, 9\ns_add_u32 s64, s64, {sT0}\ns_and_b32 {sT0}, s3, 1\ns_lshl_b32 {sT0}, {sT0}, 8\ns_add_u32 s64, s64, {sT0}\ns_mov_b32 s66, s64")
        a(f"s_mul_i32 s69, {sB}, 7\ns_add_u32 s69, s69, s3")
        a(f"s_mul_i32 s65, {sA}, {16*7168}\ns_lshl_b32 {sT0}, s69, 8\ns_add_u32 s65, s65, {sT0}")
        a(f"s_cmp_eq_u32 s3, 7\ns_cselect_b32 s65, 0x7000000, s65")
    def wload(n):
        m, i = n // 4, n % 4
        srd_, vo, sb, st = [(sWO, "v12", "s64", 2048), (sW1, "v13", "s65", 7168), (sW2, "v12", "s66", 2048)][m]
        widx[n] = a.vm(f"buffer_load_dwordx4 {r4(slot(place[('w', n)]))}, {vo}, {srd_}, {sb} offen nt")
        if i < 3: a(f"s_add_u32 {sb}, {sb}, {st}")
    vidx = {}
    def vload(i):
        vidx[i] = a.vm(f"buffer_load_dwordx4 {r4(slot(vslot(i)))}, {vLin}, {sV}, {sVo} offen offset:{(i%4)*1024} nt")
        if i % 4 == 3: a(f"s_add_u32 {sVo}, {sVo}, 0x200000")
    wsetup()
    def issue(n):
        for _ in range(n):
            kind, i = seq.pop(0)
            pace(o["dl"] if len(vidx) >= o["dlpos"] else D)
            (vload if kind == "v" else wload)(i)
    def issue_np(n):
        for _ in range(n):
            kind, i = seq.pop(0)
            (vload if kind == "v" else wload)(i)
    issue(D)
    a.wait_vm(kidx[31])
    stamp("kdone")
    a("s_waitcnt lgkmcnt(0)")
    for half in range(2):
        for jj in range(8):
            j = half * 8 + jj
            a(f"v_mfma_f32_16x16x32_bf16 {r4(ACC+4*jj)}, {r4(slot(2*j))}, {r4(PT)}, 0")
        for jj in range(8):
            j = half * 8 + jj
            a(f"v_mfma_f32_16x16x32_bf16 {r4(ACC+4*jj)}, {r4(slot(2*j+1))}, {r4(PT+4)}, {r4(ACC+4*jj)}")
        for jj in range(8):
            j = half * 8 + jj; d = ACC + 4 * jj
            a(f"v_add_f32_dpp v{S0+j}, v{d+1}, v{d} row_ror:8 row_mask:0xf bank_mask:0x3")
            a(f"v_add_f32_dpp v{S0+j}, v{d+2}, v{d+3} row_ror:8 row_mask:0xf bank_mask:0xc")
        issue_np(o["x1"] if half == 0 else o["x2"])
    for j in range(0, 16, 2):
        x, y = f"v{S0+j}", f"v{S0+j+1}"
        a(f"v_cvt_pk_bf16_f32 v8, {x}, {y}\nv_lshlrev_b32 {x}, 16, v8\nv_and_b32 {y}, {sHI}, v8")
        a(f"v_mul_f32 {x}, {sSC}, {x}\nv_mul_f32 {y}, {sSC}, {y}")
        a(f"v_cvt_pk_bf16_f32 v8, {x}, {y}\nv_lshlrev_b32 {x}, 16, v8\nv_and_b32 {y}, {sHI}, v8")
    a(f"v_max3_f32 {vMw}, v{S0}, v{S0+1}, v{S0+2}")
    for j in range(3, 15, 2): a(f"v_max3_f32 {vMw}, {vMw}, v{S0+j}, v{S0+j+1}")
    a(f"v_max_f32 {vMw}, {vMw}, v{S0+15}")
    red_rows("v_max_f32", vMw, "v8")
    issue_np(o["x3"])
    for j in range(16): a(f"v_sub_f32 v{S0+j}, v{S0+j}, {vMw}")
    for j in range(16): a(f"v_mul_f32 v{S0+j}, {sL2E}, v{S0+j}")
    for j in range(16): a(f"v_exp_f32 v{S0+j}, v{S0+j}")
    a(f"v_add_f32 v11, v{S0}, v{S0+1}")
    for j in range(2, 16): a(f"v_add_f32 v11, v11, v{S0+j}")
    red_rows("v_add_f32", "v11", "v8")
    a(f"v_mov_b32 v10, {vMw}")
    a(f"v_and_b32 v8, 7, {vLane}\nv_lshlrev_b32 v8, 3, v8\ns_lshl_b32 {sT0}, s3, 6\nv_add_u32 v8, {sT0}, v8")
    a(f"ds_write_b64 v8, v[10:11] offset:{L_ML}")
    issue_np(o["x4"])
    barrier()
    issue_np(o["x5"])
    a("s_cmp_lg_u32 s3, 0\ns_cbranch_scc1 L_noml")
    a(f"v_lshlrev_b32 v8, 3, {vLane}\nds_read_b64 v[10:11], v8 offset:{L_ML}\ns_waitcnt lgkmcnt(0)")
    a("v_mov_b32 v9, v10")
    red_rows("v_max_f32", "v9", "v8")
    a(f"v_sub_f32 v10, v10, v9\nv_mul_f32 v10, {sL2E}, v10\nv_exp_f32 v10, v10\nv_mul_f32 v11, v11, v10")
    red_rows("v_add_f32", "v11", "v8")
    a(f"v_or_b32 v10, {sTag16}, v9\nv_and_or_b32 v11, v11, {vMask}, {sTag8}")
    a(f"v_lshlrev_b32 v8, 9, {vLane}\ns_lshl_b32 {sT0}, {sG}, 12\ns_lshl_b32 {sT1}, {sS}, 3\ns_add_u32 {sT0}, {sT0}, {sT1}\ns_add_u32 {sT0}, {sT0}, {WS_ML}")
    a("s_mov_b64 exec, 0xff")
    a(f"buffer_store_dwordx2 v[10:11], v8, {sWS}, {sT0} offen sc1")
    a("s_mov_b64 exec, -1")
    a.label("L_noml")
    stamp("mlpub")
    def pv(u):
        for dp in range(4):
            tb = PT + 8 * (dp & 1)
            for b in range(2):
                for j in range(4):
                    a(f"v_perm_b32 v{tb+4*b+j}, v{slot(vslot(8*u+2*j+1))+dp}, v{slot(vslot(8*u+2*j))+dp}, {sPH if b else sPL}")
            for b in range(2):
                t = 2 * dp + b
                c = "0" if u == 0 else r4(ACC + 4 * t)
                a(f"v_mfma_f32_16x16x32_bf16 {r4(ACC+4*t)}, {r4(S0+4*u)}, {r4(tb+4*b)}, {c}")
    pvdone = 0; fready = False; iml = None; rsdone = False; irs = None
    Y = 26
    SPARE = slot(vslot(0))
    RSK, XK = SPARE, SPARE + 4
    vA4, vA8 = "v2", "v6"
    a(f"v_lshrrev_b32 v14, 4, {vLane}\nv_lshlrev_b32 v14, 4, v14\nv_and_b32 v8, 3, {vLane}\nv_lshl_add_u32 {vA4}, v8, 6, v14\nv_and_b32 v8, 7, {vLane}\nv_lshl_add_u32 {vA8}, v8, 6, v14")
    a(f"s_lshl_b32 s72, {sA}, 11\ns_lshr_b32 {sT0}, s3, 1\ns_lshl_b32 {sT0}, {sT0}, 9\ns_add_u32 s72, s72, {sT0}\ns_add_u32 s72, s72, {WS_RS}")
    while seq:
        issue(1)
        nv = len(vidx)
        if not o["wolate"] and not rsdone and a.done > widx[3]:
            assert not fready
            a("v_mov_b32 v8, 0x3f803f80")
            for i in range(4): a(f"v_mov_b32 v{ACC+i}, 0")
            for d in range(4):
                for i in range(4): a(f"v_dot2_f32_bf16 v{ACC+i}, v{wsl(0)+4*i+d}, v8, v{ACC+i}")
            for k in (8, 4, 2, 1):
                for i in range(4): a(f"v_add_f32_dpp v{ACC+i}, v{ACC+i}, v{ACC+i} row_ror:{k} row_mask:0xf bank_mask:0xf")
            for i in range(4): a(f"v_and_or_b32 v{ACC+i}, v{ACC+i}, {vMask}, {sTag8}")
            a(f"s_lshl_b32 {sT0}, {sB}, 1\ns_and_b32 {sT1}, s3, 1\ns_add_u32 {sT0}, {sT0}, {sT1}\ns_lshl_b32 {sT0}, {sT0}, 6\ns_add_u32 {sT0}, {sT0}, s72")
            a("s_mov_b32 exec_lo, 0x10001\ns_mov_b32 exec_hi, 0x10001")
            a.pace(D); a.vm(f"buffer_store_dwordx4 {r4(ACC)}, {vA4}, {sWS}, {sT0} offen sc1")
            a("s_mov_b64 exec, -1")
            rsdone = True
        if iml is None and nv > o["ml_pos"]:
            a(f"v_lshlrev_b32 v8, 3, {vLane}\ns_lshl_b32 {sT0}, {sG}, 3\ns_add_u32 {sT0}, {sT0}, s3\ns_lshl_b32 s70, {sT0}, 9\ns_add_u32 s70, s70, {WS_ML}")
            a.pace(D); iml = a.vm(f"buffer_load_dwordx2 v[10:11], v8, {sWS}, s70 offen sc1")
        if iml is not None and not fready and (a.done > iml or not seq):
            a.wait_vm(iml)
            a(f"v_xor_b32 v14, {sTag16}, v10\nv_and_b32 v14, 0xffff, v14\nv_xor_b32 v9, {sTag8}, v11\nv_and_b32 v9, 0xff, v9\nv_or_b32 v14, v14, v9")
            a("v_cmp_ne_u32 vcc, 0, v14\ns_cbranch_vccz L_mlok")
            a(f"s_mov_b32 {sCnt}, 0")
            a.label("L_mlspin")
            a(f"buffer_load_dwordx2 v[10:11], v8, {sWS}, s70 offen sc1\ns_waitcnt vmcnt(0)")
            a(f"s_add_u32 {sCnt}, {sCnt}, 1\ns_cmp_gt_u32 {sCnt}, 0x80000\ns_cbranch_scc1 L_end")
            a(f"v_xor_b32 v14, {sTag16}, v10\nv_and_b32 v14, 0xffff, v14\nv_xor_b32 v9, {sTag8}, v11\nv_and_b32 v9, 0xff, v9\nv_or_b32 v14, v14, v9")
            a("v_cmp_ne_u32 vcc, 0, v14\ns_cbranch_vccnz L_mlspin")
            a.label("L_mlok")
            a(f"v_and_b32 v10, {sHI}, v10\nv_and_or_b32 v11, v11, {vMask}, {s80}\nv_mov_b32 v9, v10")
            red64("v_max_f32", "v9", "v8")
            a(f"v_sub_f32 v10, v10, v9\nv_mul_f32 v10, {sL2E}, v10\nv_exp_f32 v10, v10\nv_mul_f32 v11, v11, v10")
            red64("v_add_f32", "v11", "v8")
            a(f"v_rcp_f32 v11, v11\nv_mov_b32 v10, v9\ns_lshl_b32 {sT0}, s3, 3\nv_mov_b32 v8, {sT0}")
            a(f"ds_write_b64 v8, v[10:11] offset:{L_MLG}")
            barrier()
            a(f"v_and_b32 v8, 7, {vLane}\nv_lshlrev_b32 v8, 3, v8\nds_read_b64 v[10:11], v8 offset:{L_MLG}\ns_waitcnt lgkmcnt(0)")
            a(f"v_sub_f32 v10, {vMw}, v10\nv_mul_f32 v10, {sL2E}, v10\nv_exp_f32 v10, v10\nv_mul_f32 v10, v10, v11")
            a(f"v_bfe_u32 v9, {vLane}, 3, 1\nv_cmp_eq_u32 vcc, 1, v9\nv_mov_b32 v9, 0xffff\nv_mov_b32 v8, {sHI}\nv_cndmask_b32 v9, v9, v8, vcc")
            for j in range(16): a(f"v_mul_f32 v{S0+j}, v{S0+j}, v10")
            for j in range(16): a(f"v_cvt_pk_bf16_f32 v{S0+j}, v{S0+j}, v{S0+j}")
            for j in range(16): a(f"v_and_b32 v{S0+j}, v{S0+j}, v9")
            fready = True
            stamp("fready")
        while fready and pvdone < 4 and (8 * pvdone + 7) in vidx and a.done > vidx[8 * pvdone + 7]:
            pv(pvdone); pvdone += 1
            if pvdone == 2:
                if not o["wolate"]:
                    a.pace(D); irs = a.vm(f"buffer_load_dwordx4 {r4(RSK)}, {vA8}, {sWS}, s72 offen sc1")
                a(f"v_lshrrev_b32 v8, 4, {vLane}\nv_lshlrev_b32 v8, 3, v8\ns_lshl_b32 {sT0}, {sA}, 5")
                a.pace(D); ixr = a.vm(f"buffer_load_dwordx2 {r2(XK)}, v8, {sX}, {sT0} offen")
    vRW, vOW, vH1, vPub4, vRP, vAO, vRB = "v9", "v10", "v11", "v5", "v7", "v30", "v31"
    G0, AO = 16, 24
    HK = SPARE + 8
    vLR = f"v{SPARE+13}" if o["pairl"] == 2 else vLin
    TW = SPARE + 16
    DR = ACC
    def q16(b, lb):
        a(f"v_permlane32_swap_b32 v{b}, v{b+1}\nv_permlane32_swap_b32 v{b+2}, v{b+3}")
        a(f"v_add_f32 v{b}, v{b}, v{b+1}\nv_add_f32 v{b+2}, v{b+2}, v{b+3}")
        a(f"v_permlane16_swap_b32 v{b}, v{b+2}\nv_add_f32 v{b}, v{b}, v{b+2}")
        for k in (4, 8): a(f"v_add_f32_dpp v{b}, v{b}, v{b} row_ror:{k} row_mask:0xf bank_mask:0xf")
        a(f"ds_write_b32 {vRW}, v{b} offset:{lb}")
    def dppsum(regs, n):
        for pat in ("quad_perm:[1,0,3,2]", "quad_perm:[2,3,0,1]", "row_half_mirror")[:n]:
            for r in regs: a(f"v_add_f32_dpp v{r}, v{r}, v{r} {pat} row_mask:0xf bank_mask:0xf")
    def unpack4(d, p):
        a(f"v_lshlrev_b32 v{d}, 16, v{p}\nv_and_b32 v{d+1}, {sHI}, v{p}\nv_lshlrev_b32 v{d+2}, 16, v{p+1}\nv_and_b32 v{d+3}, {sHI}, v{p+1}")
    def pack4(p, d):
        a(f"v_cvt_pk_bf16_f32 v{p}, v{d}, v{d+1}\nv_cvt_pk_bf16_f32 v{p+1}, v{d+2}, v{d+3}")
    def ldx4(r, vo, so, off=0): return f"buffer_load_dwordx4 {r4(r)}, {vo}, {sWS}, {so} offen offset:{off} sc1"
    R8 = list(range(G0, G0+8)); R4_ = list(range(G0, G0+4))
    def latew(m, upto=4):
        for n in range(4*m, 4*m+upto):
            if n not in widx: wload(n)
    def wl4(m):
        for n in range(4*m, 4*m+4): wload(n)
    def unless_early(f, lab_):
        a(f"s_cmp_lg_u32 s93, 0\ns_cbranch_scc1 {lab_}"); f(); a.label(lab_)
    def mfma8(A, T):
        for t in range(8): a(f"v_mfma_f32_16x16x16_bf16 {r4(DR+4*t)}, {r2(A)}, {r2(T+2*t)}, 0")
    def sel4(tag):
        for q in range(4): a(f"v_cndmask_b32 v{Y+q}, v{DR+4*q}, v{DR+4*(q+4)}, {sM4}")
        if tag:
            for q in range(4): a(f"v_and_or_b32 v{Y+q}, v{Y+q}, {vMask}, {sTag8}")
    def big_reduce(lb):
        strip(R8)
        for q in range(4): a(f"v_add_f32 v{G0+q}, v{G0+q}, v{G0+4+q}")
        a(f"v_permlane32_swap_b32 v{G0}, v{G0+1}\nv_permlane32_swap_b32 v{G0+2}, v{G0+3}")
        a(f"v_add_f32 v{G0}, v{G0}, v{G0+1}\nv_add_f32 v{G0+2}, v{G0+2}, v{G0+3}\nv_permlane16_swap_b32 v{G0}, v{G0+2}\nv_add_f32 v{G0}, v{G0}, v{G0+2}")
        a(f"ds_write_b32 {vRP}, v{G0} offset:{lb}")
    def cu_reduce_pub(lb, sdst, lab_, extra=None):
        a(f"s_cmp_lg_u32 s3, 0\ns_cbranch_scc1 {lab_}")
        if extra and o["sarid"]:
            a(f"v_mov_b32 v8, 0\nds_read_b128 {r4(G0)}, v8 offset:{L_SA}")
            for i in range(4): a(f"ds_read_b128 {r4(ACC+4*i)}, {vLR} offset:{lb + 1024*i}")
            a(f"s_waitcnt lgkmcnt(4)\nv_add_f32 v{G0}, v{G0}, v{G0+1}\nv_add_f32 v{G0+2}, v{G0+2}, v{G0+3}\nv_add_f32 v{G0}, v{G0}, v{G0+2}\nv_bfe_u32 v{G0}, v{G0}, {vSh}, 8")
            for i in range(1, 4):
                a(f"s_waitcnt lgkmcnt({3 - i})")
                for q in range(4): a(f"v_add_f32 v{ACC+q}, v{ACC+q}, v{ACC+4*i+q}")
            for q in range(3): a(f"v_and_or_b32 v{ACC+q}, v{ACC+q}, {vMask}, {sTag8}")
            a(f"v_and_or_b32 v{ACC+3}, v{ACC+3}, {vMask}, v{G0}")
            a(f"buffer_store_dwordx4 {r4(ACC)}, {vOW}, {sWS}, {sdst} offen sc1")
            a.label(lab_)
            return
        for i in range(4): a(f"ds_read_b128 {r4(ACC+4*i)}, {vLR} offset:{lb + 1024*i}")
        if extra: a(f"v_mov_b32 v8, 0\nds_read_b128 {r4(G0)}, v8 offset:{L_SA}")
        for i in range(1, 4):
            a(f"s_waitcnt lgkmcnt({3 - i + (1 if extra else 0)})")
            for q in range(4): a(f"v_add_f32 v{ACC+q}, v{ACC+q}, v{ACC+4*i+q}")
        for q in range(4): a(f"v_and_or_b32 v{ACC+q}, v{ACC+q}, {vMask}, {sTag8}")
        a(f"buffer_store_dwordx4 {r4(ACC)}, {vOW}, {sWS}, {sdst} offen sc1")
        if extra: extra()
        a.label(lab_)
    def pub2(base):
        a(f"v_mov_b32 v{Y+2}, {sEp}\nv_mov_b32 v{Y+3}, {sEp}")
        a(f"v_lshlrev_b32 v8, 10, {vLane}\ns_lshl_b32 {sT0}, {sB}, 11\ns_lshl_b32 {sT1}, {sA}, 4\ns_add_u32 {sT0}, {sT0}, {sT1}\ns_add_u32 {sT0}, {sT0}, {base}")
        a("s_mov_b64 exec, 3")
        a(f"buffer_store_dwordx4 {r4(Y)}, v8, {sWS}, {sT0} offen sc1")
    a(f"v_bfe_u32 v14, {vLane}, 4, 1\nv_lshlrev_b32 v8, 3, v14\nv_lshrrev_b32 v14, 5, {vLane}\nv_lshl_add_u32 v8, v14, 2, v8")
    a(f"v_and_b32 v14, 3, {vLane}\nv_lshl_add_u32 {vRW}, v14, 4, v8\ns_lshl_b32 {sT0}, s3, 6\nv_add_u32 {vRW}, {sT0}, {vRW}")
    a(f"v_and_b32 v14, 15, {vLane}\nv_lshl_add_u32 {vRP}, v14, 4, v8\ns_mul_i32 {sT0}, s3, {256 + o['lpad']}\nv_add_u32 {vRP}, {sT0}, {vRP}")
    if o["owc"]:
        a(f"v_and_b32 v8, 15, {vLane}\nv_lshlrev_b32 v8, 4, v8\nv_lshrrev_b32 v14, 5, {vLane}\nv_lshl_add_u32 v8, v14, 8, v8\nv_bfe_u32 v14, {vLane}, 4, 1\nv_lshl_add_u32 v8, v14, 9, v8")
    else:
        a(f"v_and_b32 v8, 15, {vLane}\nv_lshlrev_b32 v8, 5, v8\nv_lshrrev_b32 v14, 5, {vLane}\nv_lshl_add_u32 v8, v14, 4, v8\nv_bfe_u32 v14, {vLane}, 4, 1\nv_lshl_add_u32 v8, v14, 9, v8")
    a(f"s_lshl_b32 {sT0}, s3, 12\nv_add_u32 {vOW}, {sT0}, v8")
    if o["owc"]:
        a(f"v_lshrrev_b32 v8, 5, {vLane}\nv_lshlrev_b32 v8, 3, v8\nv_bfe_u32 v14, {vLane}, 3, 1\nv_add_u32 v8, v8, v14\nv_mul_u32_u24 v8, {STB}, v8\nv_and_b32 v14, 7, {vLane}\nv_lshl_add_u32 v8, v14, 5, v8\nv_bfe_u32 v14, {vLane}, 4, 1\nv_lshl_add_u32 {vH1}, v14, 4, v8")
    else:
        a(f"v_lshrrev_b32 v8, 5, {vLane}\nv_lshlrev_b32 v8, 3, v8\nv_bfe_u32 v14, {vLane}, 4, 1\nv_add_u32 v8, v8, v14\nv_mul_u32_u24 v8, {STB}, v8\nv_and_b32 v14, 15, {vLane}\nv_lshl_add_u32 {vH1}, v14, 4, v8")
    a(f"s_mul_i32 s71, {sG}, {16*STB}\ns_mul_i32 {sT0}, s3, {2*STB}\ns_add_u32 s71, s71, {sT0}\ns_lshl_b32 {sT0}, {sS}, 8\ns_add_u32 s71, s71, {sT0}\ns_add_u32 s71, s71, {WS_H1}")
    a(f"v_bfe_u32 v8, {vLane}, 3, 1\nv_mul_u32_u24 v8, {STB}, v8\nv_and_b32 v14, 7, {vLane}\nv_lshl_add_u32 v8, v14, 5, v8\nv_bfe_u32 v14, {vLane}, 4, 1\nv_lshl_add_u32 {vPub4}, v14, 4, v8")
    a(f"s_mul_i32 s73, s69, {2*STB}\ns_lshl_b32 {sT0}, {sA}, 8\ns_add_u32 s73, s73, {sT0}\ns_add_u32 s73, s73, {WS_H4}")
    if o["hack"] & 4:
        a(f"v_bfe_u32 v8, {vLane}, 3, 1\nv_lshlrev_b32 v8, 8, v8\nv_and_b32 v14, 7, {vLane}\nv_lshl_add_u32 v8, v14, 5, v8\nv_bfe_u32 v14, {vLane}, 4, 1\nv_lshl_add_u32 {vPub4}, v14, 4, v8")
        a(f"s_lshr_b32 {sT0}, s2, 3\ns_mul_i32 {sT0}, {sT0}, 7\ns_add_u32 {sT0}, {sT0}, s3\ns_lshl_b32 {sT0}, {sT0}, 1")
        a(f"s_lshr_b32 {sT1}, {sT0}, 6\ns_lshl_b32 {sT1}, {sT1}, 3\ns_and_b32 s73, s2, 7\ns_add_u32 s73, s73, {sT1}\ns_mul_i32 s73, s73, {STB}")
        a(f"s_and_b32 {sT0}, {sT0}, 63\ns_lshl_b32 {sT0}, {sT0}, 8\ns_add_u32 s73, s73, {sT0}\ns_add_u32 s73, s73, {WS_H4}")
    a(f"s_mul_i32 s74, {sA}, {STB}\ns_lshl_b32 {sT0}, s3, 11\ns_add_u32 s74, s74, {sT0}")
    STP = 8192 + o["pads"]
    vGS = f"v{SPARE+12}" if o["pairl"] else vLin
    if o["pairl"]:
        a(f"s_mul_i32 s75, {sB}, {8*STP}\ns_lshl_b32 {sT0}, {sA}, 7\ns_add_u32 s75, s75, {sT0}")
        a(f"s_lshr_b32 {sT0}, {sA}, 4\ns_lshl_b32 {sT0}, {sT0}, 3\ns_and_b32 {sT1}, {sA}, 7\ns_add_u32 {sT0}, {sT0}, {sT1}\ns_mul_i32 s76, {sT0}, {STP}")
        a(f"s_bfe_u32 {sT0}, {sA}, 0x10003\ns_lshl_b32 {sT0}, {sT0}, 6\ns_add_u32 s76, s76, {sT0}\ns_lshl_b32 {sT0}, s3, 11\ns_add_u32 s76, s76, {sT0}")
        a(f"v_lshrrev_b32 v8, 2, {vLane}\nv_lshlrev_b32 v8, 7, v8\nv_and_b32 v14, 3, {vLane}\nv_lshl_add_u32 {vGS}, v14, 4, v8")
    else:
        a(f"s_mul_i32 s75, {sB}, {16*STS}\ns_lshl_b32 {sT0}, {sA}, 6\ns_add_u32 s75, s75, {sT0}")
        a(f"s_mul_i32 s76, {sA}, {STS}\ns_lshl_b32 {sT0}, s3, 10\ns_add_u32 s76, s76, {sT0}")
    a(f"s_and_b32 s77, s2, 7\ns_lshl_b32 s77, s77, 10")
    a.wait_vm(ixr)
    if not o["wolate"]:
        poll([ldx4(RSK, vA8, "s72")], (list(range(RSK, RSK+4)), sTag8, "0xff"), first=False)
        strip(range(RSK, RSK+4))
        dppsum(range(RSK, RSK+4), 3)
    else:
        for q in range(4): a(f"v_mov_b32 v{RSK+q}, 0")
    unpack4(HK, XK)
    vSh = vA8
    if o["sarid"]: a(f"v_and_b32 {vSh}, 3, {vLane}\nv_lshlrev_b32 {vSh}, 3, {vSh}")
    while pvdone < 4:
        a.wait_vm(vidx[8 * pvdone + 7]); pv(pvdone); pvdone += 1
    stamp("vdone")
    if o["wolate"] == 2: latew(0)
    for r in range(4):
        for t in range(4):
            a(f"v_permlane32_swap_b32 v{ACC+4*t+r}, v{ACC+4*(t+4)+r}")
        for t in range(4):
            a(f"v_add_f32 v{PT+4*r+t}, v{ACC+4*t+r}, v{ACC+4*(t+4)+r}")
        a(f"ds_write_b128 {vOW}, {r4(PT+4*r)} offset:{L_O + 1024*r}")
    barrier()
    a("s_cmp_ge_u32 s3, 4\ns_cbranch_scc1 L_noh1")
    a(f"s_lshl_b32 {sT0}, s3, 10\nv_add_u32 v8, {sT0}, {vLin}")
    for i in range(8): a(f"ds_read_b128 {r4(ACC+4*i)}, v8 offset:{L_O + 4096*i}")
    for i in range(1, 8):
        a(f"s_waitcnt lgkmcnt({7-i})")
        for q in range(4): a(f"v_add_f32 v{ACC+q}, v{ACC+q}, v{ACC+4*i+q}")
    for q in range(4): a(f"v_and_or_b32 v{ACC+q}, v{ACC+q}, {vMask}, {sTag8}")
    a(f"buffer_store_dwordx4 {r4(ACC)}, {vH1}, {sWS}, s71 offen sc1")
    a.label("L_noh1")
    stamp("h1pub")
    if o["adapt"]: a("s_mov_b32 s93, 0")
    elif 1:
        if o["w1late"]: latew(1, o["w1pre"])
        if o["w2late"]: latew(2, o["w2p0"])
    if not o["wolate"]: wtrans(wsl(0), TW)
    a(f"v_and_b32 v8, 7, {vLane}\nv_mul_u32_u24 v8, {256 + o['lpad']}, v8\nv_lshrrev_b32 v14, 4, {vLane}\nv_lshl_add_u32 v8, v14, 4, v8\ns_lshr_b32 {sT0}, s3, 1\ns_lshl_b32 {sT0}, {sT0}, 6\nv_add_u32 {vAO}, {sT0}, v8")
    a(f"v_and_b32 v8, 15, {vLane}\nv_lshlrev_b32 v8, 5, v8\nv_bfe_u32 v14, {vLane}, 4, 1\nv_lshl_add_u32 v8, v14, 4, v8\ns_lshl_b32 {sT0}, s3, 9\nv_add_u32 {vRB}, {sT0}, v8")
    if o["pairl"] == 2:
        a(f"v_lshrrev_b32 v8, 3, {vLane}\nv_mul_u32_u24 v8, {STP}, v8\nv_and_b32 v14, 7, {vLane}\nv_lshl_add_u32 {vOW}, v14, 4, v8")
        a(f"v_lshrrev_b32 v8, 3, {vLane}\nv_lshlrev_b32 v8, 6, v8\nv_bfe_u32 v14, {vLane}, 2, 1\nv_lshl_add_u32 v8, v14, 9, v8\nv_and_b32 v14, 3, {vLane}\nv_lshl_add_u32 {vLR}, v14, 4, v8")
    elif o["pairl"]:
        a(f"v_bfe_u32 v8, {vLane}, 2, 3\nv_mul_u32_u24 v8, {STP}, v8\nv_lshrrev_b32 v14, 5, {vLane}\nv_lshl_add_u32 v8, v14, 6, v8\nv_and_b32 v14, 3, {vLane}\nv_lshl_add_u32 {vOW}, v14, 4, v8")
    else:
        a(f"v_lshrrev_b32 v8, 2, {vLane}\nv_mul_u32_u24 v8, {STS}, v8\nv_and_b32 v14, 3, {vLane}\nv_lshl_add_u32 {vOW}, v14, 4, v8")
    a(f"s_lshr_b32 {sT0}, s3, 1\ns_lshl_b32 {sT0}, {sT0}, 2\nv_mov_b32 {vH1}, {sT0}")
    a(f"s_add_u32 {sT0}, s74, {WS_H1}")
    def early_w():
        wl4(1)
        if o["adw2"]: wl4(2)
    poll([ldx4(G0, vLin, sT0), ldx4(G0+4, vLin, sT0, 1024)], (R8, sTag8, "0xff"), o["d1"], early=early_w if o["adapt"] else None,
         mid=(lambda: wtrans(wsl(0), TW)) if o["wolate"] else None)
    if o["adapt"]: unless_early(lambda: wl4(1), "L_w1e")
    if o["w1late"]: latew(1, o["w1p1"])
    if o["w2late"] and o["w2pos"] == 1: latew(2)
    if o["w2late"]: latew(2, o["w2pre"])
    stamp("p1")
    big_reduce(L_R1)
    barrier()
    a(f"ds_read_b128 {r4(G0)}, {vAO} offset:{L_R1}\ns_waitcnt lgkmcnt(0)")
    dppsum(R4_, 3)
    stamp("h1got")
    pack4(AO, G0)
    mfma8(AO, TW)
    unpack4(G0, AO)
    a(f"v_mul_f32 v{G0}, v{G0}, v{RSK}")
    for q in range(1, 4): a(f"v_fmac_f32 v{G0}, v{G0+q}, v{RSK+q}")
    red4(f"v{G0}", "v8")
    a(f"ds_write_b32 {vH1}, v{G0} offset:{L_SA}")
    sel4(False)
    a(f"ds_write_b128 {vRB}, {r4(Y)} offset:{L_B}")
    barrier()
    def sapub():
        a(f"s_waitcnt lgkmcnt(0)\nv_add_f32 v{G0}, v{G0}, v{G0+1}\nv_add_f32 v{G0+2}, v{G0+2}, v{G0+3}\nv_add_f32 v{Y}, v{G0}, v{G0+2}")
        a(f"v_and_or_b32 v{Y}, v{Y}, {vMask}, {sTag8}\nv_mov_b32 v{Y+1}, {sTag8}")
        pub2(WS_SA)
        a("s_mov_b64 exec, -1")
    a(f"s_add_u32 s78, s75, {WS_H2}")
    cu_reduce_pub(L_B, "s78", "L_nob", sapub)
    stamp("h2pub")
    if o["w1late"]: latew(1)
    if o["w2late"]: latew(2, o["w2p2"])
    for r in range(o["xh"]):
        xb = 0x400000 + r * 0x50000
        a(f"s_cmp_lg_u32 s3, 0\ns_cbranch_scc1 L_x{r}a")
        for q in range(4): a(f"v_mov_b32 v{ACC+16+q}, {sTag8}")
        a(f"s_add_u32 {sT0}, s75, {xb}\nbuffer_store_dwordx4 {r4(ACC+16)}, {vOW}, {sWS}, {sT0} offen sc1")
        a.label(f"L_x{r}a")
        a(f"s_cmp_ge_u32 s3, 4\ns_cbranch_scc1 L_x{r}b\ns_add_u32 {sT0}, s76, {xb}")
        st_, o["stamps"] = o["stamps"], 0
        poll([ldx4(G0, vGS, sT0)], (R4_, sTag8, "0xff"), o["d2"])
        o["stamps"] = st_
        a.label(f"L_x{r}b")
        barrier()
    tr1 = lambda: wtrans(wsl(1), TW)
    a("s_cmp_ge_u32 s3, 4\ns_cbranch_scc1 L_g2s")
    a(f"s_add_u32 {sT0}, s76, {WS_H2}")
    if o["sarid"]:
        poll([ldx4(G0, vGS, sT0)], (R4_[:3], sTag8, "0xff"), o["d2"], mid=tr1)
        b, t, u = G0, G0 + 4, G0 + 5
        dp = "row_mask:0xf bank_mask:0xf"
        a(f"v_and_b32 v{t}, 0xff, v{b+3}\nv_lshlrev_b32 v{t}, {vSh}, v{t}")
        strip(R4_)
        a(f"v_or_b32_dpp v{t}, v{t}, v{t} quad_perm:[1,0,3,2] {dp}")
        a(f"v_permlane32_swap_b32 v{b}, v{b+1}\nv_permlane32_swap_b32 v{b+2}, v{b+3}")
        a(f"v_or_b32_dpp v{t}, v{t}, v{t} quad_perm:[2,3,0,1] {dp}")
        a(f"v_add_f32 v{b}, v{b}, v{b+1}\nv_add_f32 v{b+2}, v{b+2}, v{b+3}")
        a(f"v_add_f32_dpp v{t}, v{t}, v{t} row_ror:4 {dp}")
        a(f"s_lshl_b32 {sT0}, s3, 2\nv_mov_b32 v8, {sT0}")
        a(f"v_permlane16_swap_b32 v{b}, v{b+2}")
        a(f"v_add_f32_dpp v{t}, v{t}, v{t} row_ror:8 {dp}")
        a(f"v_add_f32 v{b}, v{b}, v{b+2}\nv_mov_b32 v{u}, v{t}")
        a(f"v_add_f32_dpp v{b}, v{b}, v{b} row_ror:4 {dp}")
        a(f"v_permlane16_swap_b32 v{u}, v{t}")
        a(f"v_add_f32 v{t}, v{t}, v{u}")
        a(f"v_add_f32_dpp v{b}, v{b}, v{b} row_ror:8 {dp}")
        a(f"v_mov_b32 v{u}, v{t}")
        a(f"ds_write_b32 {vRW}, v{b} offset:{L_R2}")
        a(f"v_permlane32_swap_b32 v{u}, v{t}\nv_add_f32 v{t}, v{t}, v{u}")
        a(f"ds_write_b32 v8, v{t} offset:{L_M2}")
        a("s_branch L_g2")
        a.label("L_g2s")
        a("s_waitcnt vmcnt(0)")
        tr1()
        a.label("L_g2")
        stamp("p2")
        if o["w2late"] and o["w2pos"] == 0: latew(2, o["w2p3"])
        barrier()
        a(f"v_mov_b32 v8, 0\nds_read_b128 {r4(G0+4)}, v8 offset:{L_M2}\nds_read_b128 {r4(G0)}, {vA4} offset:{L_R2}\nv_mov_b32 v14, {sMX}\ns_waitcnt lgkmcnt(1)")
        a(f"v_add_f32 v{G0+4}, v{G0+4}, v{G0+5}\nv_add_f32 v{G0+6}, v{G0+6}, v{G0+7}\nv_add_f32 v{G0+4}, v{G0+4}, v{G0+6}\nv_fmac_f32 v14, {f32(1/1024)}, v{G0+4}")
        bf16r("v14", "v14")
        a("s_waitcnt lgkmcnt(0)")
        dppsum(R4_, 2)
    else:
        poll([ldx4(G0, vGS, sT0)], (R4_, sTag8, "0xff"), o["d2"], mid=tr1)
        strip(R4_)
        q16(G0, L_R2)
        a("s_branch L_g2")
        a.label("L_g2s")
        a(f"s_cmp_eq_u32 s3, {4 if not o['hack'] & 1 else 9}\ns_cbranch_scc1 L_g2m\ns_waitcnt vmcnt(0)")
        tr1()
        a("s_branch L_g2")
        a.label("L_g2m")
        a(f"s_add_u32 {sT0}, s77, {WS_SA}")
        poll([ldx4(G0, vLin, sT0)], ([G0, G0+1], sTag8, "0xff", G0+2), o["d2"], mid=tr1)
        strip([G0])
        red64("v_add_f32", f"v{G0}", "v8")
        a(f"v_mov_b32 v8, {sMX}\nv_fmac_f32 v8, {f32(1/1024)}, v{G0}")
        bf16r("v8", "v8")
        a(f"v_mov_b32 v14, 0\nds_write_b32 v14, v8 offset:{L_M}")
        a.label("L_g2")
        stamp("p2")
        if o["adapt"] and o["adw2"]: unless_early(lambda: wl4(2), "L_w2e")
        if o["w2late"] and o["w2pos"] == 0: latew(2, o["w2p3"])
        barrier()
        a(f"v_mov_b32 v8, 0\nds_read_b128 {r4(G0)}, {vA4} offset:{L_R2}\nds_read_b32 v14, v8 offset:{L_M}\ns_waitcnt lgkmcnt(1)")
        dppsum(R4_, 2)
    stamp("h2got")
    pack4(AO, G0); unpack4(G0, AO)
    for q in range(4): a(f"v_add_f32 v{G0+q}, v{G0+q}, v{HK+q}")
    pack4(AO, G0); unpack4(HK, AO)
    a("s_waitcnt lgkmcnt(0)")
    for q in range(4): a(f"v_sub_f32 v{G0+q}, v{HK+q}, v14")
    a("s_cmp_eq_u32 s3, 7\ns_cbranch_scc1 L_stat")
    pack4(AO, G0)
    mfma8(AO, TW)
    sel4(True)
    a("s_mov_b32 exec_hi, 0")
    a(f"buffer_store_dwordx4 {r4(Y)}, {vPub4}, {sWS}, s73 offen" + (" sc1" if o["hack"] & 12 != 4 else ""))
    a("s_branch L_cd")
    a.label("L_stat")
    a(f"v_add_f32 v{Y}, v{G0}, v{G0+1}\nv_add_f32 v8, v{G0+2}, v{G0+3}\nv_mul_f32 v{Y+1}, v{G0}, v{G0}\nv_add_f32 v{Y}, v{Y}, v8")
    for q in range(1, 4): a(f"v_fmac_f32 v{Y+1}, v{G0+q}, v{G0+q}")
    red4(f"v{Y}", "v8"); red4(f"v{Y+1}", "v14")
    a(f"v_and_or_b32 v{Y}, v{Y}, {vMask}, {sTag8}\nv_and_or_b32 v{Y+1}, v{Y+1}, {vMask}, {sTag8}")
    pub2(WS_ST)
    a(f"s_cmp_lg_u32 s2, 0\ns_cbranch_scc1 L_cd")
    a(f"s_mov_b64 exec, 1\nbuffer_store_dword v{Y+2}, v8, {sWS}, 0 offen offset:{WS_EPOCH} sc1")
    if o["stamps"] == 3: a(f"v_xor_b32 v14, 0x5a5a1234, v{Y+2}\nbuffer_store_dword v14, v8, {sWS}, 0 offen offset:{WS_EPOCH+4} sc1")
    a.label("L_cd")
    a("s_mov_b64 exec, -1")
    if o["w2late"]: latew(2)
    stamp("h4pub")
    a(f"s_cmp_ge_u32 {sA}, 56\ns_cbranch_scc1 L_nod")
    a(f"s_add_u32 {sT0}, s74, {WS_H4}")
    tr2 = lambda: wtrans(wsl(2), TW)
    a(f"s_cmp_eq_u32 s3, {7 if not o['hack'] & 2 else 9}\ns_cbranch_scc1 L_g4s")
    poll([ldx4(G0, vLin, sT0), ldx4(G0+4, vLin, sT0, 1024)], (R8, sTag8, "0xff"), o["d4"], mid=tr2)
    big_reduce(L_R4)
    a("s_branch L_g4")
    a.label("L_g4s")
    a(f"s_add_u32 {sT1}, s77, {WS_ST}")
    poll([ldx4(G0, vLin, sT0), ldx4(G0+4, vLin, sT0, 1024), ldx4(Y, vLin, sT1)], (R8 + [Y, Y+1], sTag8, "0xff", Y+2), o["d4"], mid=tr2)
    big_reduce(L_R4)
    strip([Y, Y+1])
    a(f"v_permlane32_swap_b32 v{Y}, v{Y+1}\nv_add_f32 v{G0}, v{Y}, v{Y+1}")
    a(f"v_mov_b32 v8, v{G0}\nv_permlane16_swap_b32 v8, v{G0}\nv_add_f32 v{G0}, v{G0}, v8")
    for k in (8, 4, 2, 1): a(f"v_add_f32_dpp v{G0}, v{G0}, v{G0} row_ror:{k} row_mask:0xf bank_mask:0xf")
    a(f"v_mul_f32 v{G0}, {f32(1/1024)}, v{G0}\nv_mov_b32 v8, v{G0}\nv_permlane32_swap_b32 v8, v{G0}")
    vr = f"v{G0}"
    a(f"v_fma_f32 {vr}, -v8, v8, {vr}\nv_max_f32 {vr}, 0, {vr}"); bf16r(vr, vr)
    a(f"v_add_f32 {vr}, {f32(1e-5)}, {vr}"); bf16r(vr, vr)
    a(f"v_sqrt_f32 {vr}, {vr}"); bf16r(vr, vr)
    a(f"v_rcp_f32 {vr}, {vr}\nv_mov_b32 v8, 0\nds_write_b32 v8, {vr} offset:{L_RI}")
    a.label("L_g4")
    stamp("p4")
    barrier()
    a(f"v_mov_b32 v8, 0\nds_read_b128 {r4(G0)}, {vAO} offset:{L_R4}\nds_read_b32 v14, v8 offset:{L_RI}\ns_waitcnt lgkmcnt(1)")
    dppsum(R4_, 3)
    a("s_waitcnt lgkmcnt(0)")
    stamp("h4got")
    for q in range(4): a(f"v_mul_f32 v{G0+q}, v{G0+q}, v14")
    pack4(AO, G0); unpack4(G0, AO)
    for q in range(4): a(f"v_mul_f32 v{G0+4+q}, {sL2E}, v{G0+q}")
    for q in range(4): a(f"v_exp_f32 v{G0+4+q}, -v{G0+4+q}")
    for q in range(4): a(f"v_add_f32 v{G0+4+q}, 1.0, v{G0+4+q}")
    for q in range(4): a(f"v_rcp_f32 v{G0+4+q}, v{G0+4+q}")
    for q in range(4): a(f"v_mul_f32 v{G0+q}, v{G0+q}, v{G0+4+q}")
    pack4(AO, G0)
    mfma8(AO, TW)
    sel4(False)
    a(f"ds_write_b128 {vRB}, {r4(Y)} offset:{L_D}")
    barrier()
    a(f"s_add_u32 s78, s75, {WS_H5}")
    cu_reduce_pub(L_D, "s78", "L_nod")
    stamp("h5pub")
    a(f"s_cmp_lg_u32 {sB}, 0\ns_cbranch_scc1 L_fin")
    a("s_cmp_ge_u32 s3, 4\ns_cbranch_scc1 L_g5")
    for q in range(4): a(f"v_mov_b32 v{G0+q}, 0")
    a(f"s_add_u32 {sT0}, s76, {WS_H5}\ns_cmp_eq_u32 s3, 3\ns_cselect_b32 exec_hi, 0, -1")
    poll([ldx4(G0, vGS, sT0)], (R4_, sTag8, "0xff"), o["d5"])
    strip(R4_)
    q16(G0, L_R5)
    a.label("L_g5")
    stamp("p5")
    barrier()
    a("s_cmp_lg_u32 s3, 0\ns_cbranch_scc1 L_fin")
    a(f"ds_read_b128 {r4(G0)}, {vA4} offset:{L_R5}\nv_lshrrev_b32 v8, 4, {vLane}\nv_lshlrev_b32 v8, 3, v8\ns_lshl_b32 {sT0}, {sA}, 5\ns_waitcnt lgkmcnt(0)")
    dppsum(R4_, 2)
    pack4(AO, G0); unpack4(G0, AO)
    for q in range(4): a(f"v_add_f32 v{G0+q}, v{G0+q}, v{HK+q}")
    pack4(AO, G0)
    a("s_mov_b32 exec_lo, 0x10001\ns_mov_b32 exec_hi, 0x10001")
    a(f"buffer_store_dwordx2 {r2(AO)}, v8, {sOUT}, {sT0} offen" + ["", " sc1", " sc0 sc1", " nt"][o["outpol"]])
    a("s_mov_b64 exec, -1")
    a.label("L_fin")
    if o["stamps"]:
        stamp("end")
        a(f"s_lshl_b32 {sT0}, s2, 3\ns_add_u32 {sT0}, {sT0}, s3\ns_lshl_b32 {sT0}, {sT0}, 7\ns_add_u32 {sT0}, {sT0}, {WS_DBG}")
        a(f"v_lshlrev_b32 v8, 2, {vLane}\ns_mov_b32 exec_hi, 0")
        a(f"buffer_store_dword {vStamp}, v8, {sWS}, {sT0} offen")
        if o["stamps"] == 3:
            a("s_cmp_eq_u32 s97, 0x5a5a1234\ns_cbranch_scc1 L_end")
            a(f"s_or_b32 {sT0}, s2, s3\ns_cmp_lg_u32 {sT0}, 0\ns_cbranch_scc1 L_end")
            a(f"v_readlane_b32 {sT0}, {vStamp}, 0\nv_readlane_b32 {sT1}, {vStamp}, {nst[0]-1}\ns_nop 3\ns_sub_u32 {sT1}, {sT1}, {sT0}\ns_cmp_lt_u32 {sT1}, {o['thr']}\ns_cbranch_scc1 L_end")
            a(f"v_subrev_u32 v9, {sT0}, {vStamp}\nv_cvt_f32_u32 v9, v9\nv_mul_f32 v9, {f32(0.04)}, v9\nv_rndne_f32 v9, v9\nv_cvt_pk_bf16_f32 v9, v9, v9")
            lanes = o.get("lanes", [3, 4, 5, 7, 9, 12, 14, 16])
            a("s_waitcnt vmcnt(0)")
            for n, ln in enumerate(lanes):
                a(f"v_mov_b32 v8, {2*n}\ns_mov_b32 exec_lo, {1 << ln}\nv_mov_b32 v8, {2*n}\nbuffer_store_short v9, v8, {sOUT}, 0 offen\ns_nop 1")
        if o["stamps"] == 2:
            a(f"s_or_b32 {sT0}, s2, s3\ns_cmp_lg_u32 {sT0}, 0\ns_cbranch_scc1 L_end")
            a(f"v_readlane_b32 {sT0}, {vStamp}, 0\nv_subrev_u32 v9, {sT0}, {vStamp}\nv_subrev_u32 v8, 4, v8\ns_mov_b32 exec_lo, 0x1fffe")
            a(f"buffer_store_dword v9, v8, {sDBG}, 0 offen")
    a.label("L_end")
    a("s_endpgm")
    a.raw(f'''.section .rodata,"a"
.p2align 6
.amdhsa_kernel {KN}
  .amdhsa_next_free_vgpr 256
  .amdhsa_next_free_sgpr 102
  .amdhsa_accum_offset 256
  .amdhsa_group_segment_fixed_size 0
  .amdhsa_kernarg_size 88
  .amdhsa_user_sgpr_count 2
  .amdhsa_user_sgpr_kernarg_segment_ptr 1
  .amdhsa_system_sgpr_workgroup_id_x 1
.end_amdhsa_kernel''')
    return a.text()

if __name__ == "__main__":
    kw = {}
    out = sys.argv[1]
    for x in sys.argv[2:]:
        k, v = x.split("="); kw[k] = int(v)
    open(out, "w").write(gen(**kw))
```

```python
import struct, sys
sys.path.insert(0, "work")
from asmlib import Asm
KN = "sequential_preLN__gqa_block_cached__dense_activation_silu__decode_kernel"
def f32(x): return "0x%08x" % struct.unpack("<I", struct.pack("<f", x))[0]

WS_EPOCH = 0
WS_QP = 0x10000
WS_ML = 0x40000
WS_ST = 0x48000
WS_SA = 0x4C000
WS_RS = 0x50000
WS_H2 = 0x70000
WS_H1 = 0xC0000
WS_H4 = 0x200000
WS_H5 = 0x300000
WS_DBG = 0x800000
L_QRED, L_QF, L_ML, L_MLG = 0, 4096, 6144, 6656
L_R2, L_SA, L_M, L_RI, L_R5, L_R1, L_R4, L_B, L_O = 6912, 7168, 7184, 7188, 7424, 8192, 10240, 12288, 16384
L_D = L_O
L_M2 = 7200
LDS_BYTES = 49152

DEF = dict(pad=1, xa=1, thr=3600, qbar=1, depth=6, qload_pos=22, qproc_pos=29, ml_pos=16, stamps=0,
           d1=16, d2=16, d4=16, d5=16, back=0, w1late=1, w2late=1, w2pos=0, w1pre=4, w2pre=0, w2p0=0, xh=0, gsh=0, adapt=0, adw2=1, wolate=0, x1=1, x2=1, x3=1, x4=1, x5=1, dl=6, dlpos=20, y0=0, y1=0, y2=0, y3=0, w2p2=0, w2p3=2, w1p1=4, qe=8, qmap=0, ob0=0, ob1=0, obn=1, outpol=0, hack=0, sarid=1, pairl=0, pads=128, lpad=16, owc=1, sidx=0, smul=1)

def gen(**kw):
    o = dict(DEF); o.update(kw)
    D = o["depth"]
    pad = o["pad"]
    STB, STS = 16384 + 256 * pad, 4096 + 128 * pad
    a = Asm()
    a.raw(open("sequential_preLN__gqa_block_cached__dense_activation_silu__decode.s.ref").read().split("; Override")[0].rstrip())
    a.raw(f"; @launch grid=(256,1,1) block=(512,1,1) lds={LDS_BYTES}")
    a.raw('.amdgcn_target "amdgcn-amd-amdhsa--gfx950"\n.text')
    a.raw(f".globl {KN}\n.p2align 8\n.type {KN},@function\n{KN}:")
    sK, sV, sWS, sX, sWQ, sWO, sW1, sW2, sOUT, sDBG = [f"s[{b}:{b+3}]" for b in (8, 12, 16, 20, 24, 28, 32, 36, 40, 44)]
    sG, sS, sT0, sT1 = "s4", "s5", "s6", "s7"
    sKo, sVo = "s49", "s50"
    sTag8, sTag16, sEp = "s51", "s52", "s53"
    sPL, sPH, sHI, sSC, sL2E, s80 = "s54", "s55", "s56", "s57", "s58", "s59"
    sM4 = "s[60:61]"
    sCnt = "s62"; sT2 = "s63"; sTag2 = "s48"; sA = "s90"; sB = "s91"; sMX = "s92"
    vLane, vKoff, vLin, vMask = "v1", "v2", "v3", "v4"
    vMw, vXr, vH = "v5", "v6", "v7"
    vt = [f"v{i}" for i in range(8, 15)]
    vStamp = "v15"
    S0 = 16
    ACC = 32
    SLOT = 64
    PT = 240
    def slot(i): return SLOT + 4 * i
    def r4(b): return f"v[{b}:{b+3}]"
    def r2(b): return f"v[{b}:{b+1}]"
    nst = [0]
    def stamp(name):
        if not o["stamps"]: return
        a("s_memrealtime s[98:99]\ns_waitcnt lgkmcnt(0)")
        a(f"v_writelane_b32 {vStamp}, s98, {nst[0]}")
        nst[0] += 1
    def bf16r(d, s):
        a(f"v_cvt_pk_bf16_f32 {d}, {s}, {s}\nv_lshlrev_b32 {d}, 16, {d}")
    def red64(op, v, t):
        a(f"v_mov_b32 {t}, {v}\nv_permlane32_swap_b32 {t}, {v}\n{op} {v}, {v}, {t}")
        a(f"v_mov_b32 {t}, {v}\nv_permlane16_swap_b32 {t}, {v}\n{op} {v}, {v}, {t}")
        for k in (8, 4, 2, 1):
            a(f"{op}_dpp {v}, {v}, {v} row_ror:{k} row_mask:0xf bank_mask:0xf")
    def red_rows(op, v, t):
        a(f"v_mov_b32 {t}, {v}\nv_permlane32_swap_b32 {t}, {v}\n{op} {v}, {v}, {t}")
        a(f"v_mov_b32 {t}, {v}\nv_permlane16_swap_b32 {t}, {v}\n{op} {v}, {v}, {t}")
        a(f"{op}_dpp {v}, {v}, {v} row_ror:8 row_mask:0xf bank_mask:0xf")
    def ln_stats(b, vm, vr, t0, t1):
        a(f"v_add_f32 {t0}, v{b}, v{b+1}")
        for i in range(2, 16): a(f"v_add_f32 {t0}, {t0}, v{b+i}")
        red64("v_add_f32", t0, t1)
        a(f"v_mul_f32 {t0}, {f32(1/1024)}, {t0}")
        for i in range(16): a(f"v_sub_f32 v{b+i}, v{b+i}, {t0}")
        a(f"v_mul_f32 {vr}, v{b}, v{b}")
        for i in range(1, 16): a(f"v_fmac_f32 {vr}, v{b+i}, v{b+i}")
        red64("v_add_f32", vr, t1)
        bf16r(vm, t0)
        a(f"v_mul_f32 {vr}, {f32(1/1024)}, {vr}")
        bf16r(vr, vr)
        a(f"v_add_f32 {vr}, {f32(1e-5)}, {vr}")
        bf16r(vr, vr)
        a(f"v_sqrt_f32 {vr}, {vr}")
        bf16r(vr, vr)
        a(f"v_rcp_f32 {vr}, {vr}")
    def ln_apply(h, A, vm, vr):
        for i in range(4): a(f"v_sub_f32 v{h+i}, v{h+i}, {vm}")
        a(f"v_cvt_pk_bf16_f32 v{A}, v{h}, v{h+1}\nv_cvt_pk_bf16_f32 v{A+1}, v{h+2}, v{h+3}")
        a(f"v_lshlrev_b32 v{h}, 16, v{A}\nv_and_b32 v{h+1}, {sHI}, v{A}\nv_lshlrev_b32 v{h+2}, 16, v{A+1}\nv_and_b32 v{h+3}, {sHI}, v{A+1}")
        for i in range(4): a(f"v_mul_f32 v{h+i}, v{h+i}, {vr}")
        a(f"v_cvt_pk_bf16_f32 v{A}, v{h}, v{h+1}\nv_cvt_pk_bf16_f32 v{A+1}, v{h+2}, v{h+3}")
    def wtrans(src, dst):
        for t in range(8):
            for j in range(2):
                a(f"v_perm_b32 v{dst+2*t+j}, v{src+4*(2*j+1)+(t>>1)}, v{src+4*(2*j)+(t>>1)}, {sPH if t & 1 else sPL}")
    def gemv(A, T, Dr, Y, tag=True):
        for t in range(8):
            a(f"v_mfma_f32_16x16x16_bf16 {r4(Dr+4*t)}, {r2(A)}, {r2(T+2*t)}, 0")
        for q in range(4):
            a(f"v_cndmask_b32 v{Y+q}, v{Dr+4*q}, v{Dr+4*(q+4)}, {sM4}")
        if tag:
            for q in range(4): a(f"v_and_or_b32 v{Y+q}, v{Y+q}, {vMask}, {sTag8}")
    lab = [0]; npoll = [0]; nob = [0]
    def pace(d):
        if o["ob0"] <= a.nvm < o["ob1"] and a.nvm - a.done >= d:
            a.pace(d + o["obn"])
            nob[0] += 1
            a(f"s_bitcmp1_b32 s2, 0\ns_cbranch_scc1 L_ob{nob[0]}\ns_waitcnt vmcnt({d-1})")
            a.label(f"L_ob{nob[0]}")
        else: a.pace(d)
    def red4(v, t):
        a(f"v_mov_b32 {t}, {v}\nv_permlane32_swap_b32 {t}, {v}\nv_add_f32 {v}, {v}, {t}")
        a(f"v_mov_b32 {t}, {v}\nv_permlane16_swap_b32 {t}, {v}\nv_add_f32 {v}, {v}, {t}")
    def poll(loads, checks, delay=0, first=True, mid=None, early=None):
        n = lab[0]; lab[0] += 1
        a(f"s_mov_b32 {sCnt}, 0")
        if first:
            if delay: a(f"s_sleep {delay}")
            for l in loads: a(l)
            if mid:
                a(f"s_waitcnt vmcnt({len(loads)})"); mid()
            a("s_waitcnt vmcnt(0)")
        a.label(f"L_pollc{n}")
        check(*checks)
        a(f"s_mov_b64 exec, vcc\ns_cbranch_execz L_polld{n}")
        if early:
            a(f"s_cmp_lg_u32 {sCnt}, 0\ns_cbranch_scc1 L_polle{n}\ns_bcnt1_i32_b64 {sT2}, vcc\ns_cmp_lt_u32 {sT2}, {o['adapt']}\ns_cbranch_scc1 L_polle{n}")
            a("s_mov_b64 exec, -1\ns_mov_b32 s93, 1")
            early()
            a("s_mov_b64 exec, vcc")
            a.label(f"L_polle{n}")
        a(f"s_add_u32 {sCnt}, {sCnt}, 1\ns_cmp_gt_u32 {sCnt}, 0x80000\ns_cbranch_scc1 L_end")
        if o["back"]: a(f"s_sleep {o['back']}")
        for l in loads: a(l)
        a(f"s_waitcnt vmcnt(0)\ns_branch L_pollc{n}")
        a.label(f"L_polld{n}")
        a("s_mov_b64 exec, -1")
        if o["stamps"] == 1:
            a(f"s_add_u32 {sCnt}, {sCnt}, 1\nv_writelane_b32 {vStamp}, {sCnt}, {24 + npoll[0]}"); npoll[0] += 1
    def check(regs, tagreg, maskc, full=None):
        c = vt[6]
        a(f"v_xor_b32 {c}, {tagreg}, v{regs[0]}")
        for r in regs[1:]: a(f"v_bitop3_b32 {c}, v{r}, {tagreg}, {c} bitop3:0xbe")
        if len(regs) > 2:
            a(f"v_or_b32_dpp {c}, {c}, {c} quad_perm:[1,0,3,2] row_mask:0xf bank_mask:0xf")
        a(f"v_and_b32 {c}, {maskc}, {c}")
        if full is not None: a(f"v_bitop3_b32 {c}, v{full}, {sEp}, {c} bitop3:0xbe")
        a(f"v_cmp_ne_u32 vcc, 0, {c}")
    def strip(regs):
        for r in regs: a(f"v_and_or_b32 v{r}, v{r}, {vMask}, {s80}")
    def barrier():
        a("s_waitcnt lgkmcnt(0)\ns_barrier")

    a("s_cmp_ge_u32 s2, 0x100\ns_cbranch_scc1 L_end")
    a("s_load_dwordx16 s[64:79], s[0:1], 0\ns_load_dwordx4 s[80:83], s[0:1], 64\ns_load_dwordx2 s[84:85], s[0:1], 80")
    if o["stamps"]: a(f"v_mov_b32 {vStamp}, 0")
    stamp("start")
    if o["stamps"] == 1:
        a(f"s_getreg_b32 s96, hwreg(HW_REG_XCC_ID)\ns_getreg_b32 s97, hwreg(HW_REG_HW_ID)\ns_and_b32 s96, s96, 15\ns_add_u32 s96, s96, 1\nv_writelane_b32 {vStamp}, s96, 23\nv_writelane_b32 {vStamp}, s97, 22")
    a(f"v_and_b32 {vLane}, 63, v0\nv_lshrrev_b32 v8, 6, v0")
    a("v_readfirstlane_b32 s3, v8")
    a(f"v_lshlrev_b32 {vLin}, 4, {vLane}")
    a(f"v_bfe_u32 v8, {vLane}, 1, 1\nv_lshlrev_b32 v8, 10, v8\nv_bfe_u32 v9, {vLane}, 2, 2\nv_lshl_add_u32 v8, v9, 8, v8")
    a(f"v_lshrrev_b32 v9, 4, {vLane}\nv_lshl_add_u32 v8, v9, 5, v8\nv_and_b32 v9, 1, {vLane}\nv_lshl_add_u32 {vKoff}, v9, 4, v8")
    a(f"v_mov_b32 {vMask}, 0xffffff00")
    gsh = o["gsh"]
    if gsh == 0:
        a(f"s_and_b32 {sG}, s2, 3\ns_lshr_b32 {sS}, s2, 2")
    else:
        a(f"s_bfe_u32 {sG}, s2, {0x20000 | gsh}\ns_lshr_b32 {sS}, s2, {gsh+2}\ns_lshl_b32 {sS}, {sS}, {gsh}\ns_and_b32 {sT0}, s2, {(1<<gsh)-1}\ns_or_b32 {sS}, {sS}, {sT0}")
    if o["xa"]:
        a(f"s_lshr_b32 {sA}, s2, 5\ns_lshl_b32 {sA}, {sA}, 3\ns_and_b32 {sB}, s2, 7\ns_or_b32 {sA}, {sA}, {sB}\ns_bfe_u32 {sB}, s2, 0x20003")
    else:
        a(f"s_mov_b32 {sA}, {sS}\ns_mov_b32 {sB}, {sG}")
    a(f"s_mov_b32 {sPL}, 0x05040100\ns_mov_b32 {sPH}, 0x07060302\ns_mov_b32 {sHI}, 0xffff0000")
    a(f"s_mov_b32 {sSC}, {f32(128 ** -0.5)}\ns_mov_b32 {sL2E}, {f32(1.4426950408889634)}\ns_mov_b32 {s80}, 0x80")
    a(f"s_mov_b32 s60, 0xffff0000\ns_mov_b32 s61, 0xffff0000")
    a(f"s_lshl_b32 {sT0}, {sS}, 3\ns_add_u32 {sT0}, {sT0}, s3\ns_lshl_b32 {sT0}, {sT0}, 12\ns_lshl_b32 {sT1}, {sG}, 24\ns_add_u32 {sKo}, {sT0}, {sT1}\ns_mov_b32 {sVo}, {sKo}")
    a(f"v_lshrrev_b32 v9, 4, {vLane}\nv_and_b32 v8, 15, {vLane}\nv_lshlrev_b32 v8, 4, v8\nv_lshl_add_u32 v10, v9, 15, v8")
    a(f"v_lshlrev_b32 v11, 3, v9\nv_lshlrev_b32 v12, 5, {vLane}")
    a("s_waitcnt lgkmcnt(0)")
    if o["hack"] & 16: stamp("karg")
    def srd(base, p, size):
        a(f"s_mov_b32 s{base}, s{p}\ns_and_b32 s{base+1}, s{p+1}, 0xffff\ns_mov_b32 s{base+2}, {size}\ns_mov_b32 s{base+3}, 0x20000")
    srd(20, 64, 2048); srd(24, 70, 8 << 20); srd(8, 66, 64 << 20)
    XR = PT
    ix0 = a.vm(f"buffer_load_dwordx4 {r4(XR)}, v12, {sX}, 0 offen")
    ix1 = a.vm(f"buffer_load_dwordx4 {r4(XR+4)}, v12, {sX}, 0 offen offset:16")
    E = o["qe"]
    qm = o["qmap"]
    if E == 8:
        a(f"s_lshr_b32 s95, s2, {qm+5}\ns_lshl_b32 s95, s95, {qm}\ns_and_b32 {sT0}, s2, {(1<<qm)-1}\ns_or_b32 s95, s95, {sT0}")
        a(f"s_lshl_b32 {sT0}, s95, 3\ns_add_u32 {sT0}, {sT0}, s3")
        a(f"s_bfe_u32 s94, s2, {0x50000 | qm}\ns_lshl_b32 s94, s94, 8")
    else:
        a(f"s_lshr_b32 s95, s2, 6\ns_lshl_b32 s95, s95, 4\ns_add_u32 s95, s95, s3")
        a(f"s_and_b32 {sT1}, s2, 1\ns_mul_i32 {sT0}, {sT1}, {E}\ns_add_u32 {sT0}, {sT0}, s95")
        a(f"s_mul_i32 {sT1}, {sT1}, s3\ns_cmp_ge_u32 {sT1}, {16-E}\ns_cselect_b32 {sT0}, 64, {sT0}")
        a(f"s_add_u32 s95, s95, 8\ns_and_b32 {sT1}, s2, 1\ns_lshl_b32 {sT1}, {sT1}, 3\ns_add_u32 {sT1}, {sT1}, s3\ns_cmp_ge_u32 {sT1}, {E-8}\ns_cselect_b32 s95, 64, s95")
        a(f"s_bfe_u32 s94, s2, 0x50001\ns_lshl_b32 s94, s94, 8")
    a(f"s_lshl_b32 {sT1}, {sT0}, 5")
    ix2 = a.vm(f"buffer_load_dwordx2 {r2(XR+8)}, v11, {sX}, {sT1} offen")
    if E != 8:
        a(f"s_lshl_b32 {sT1}, s95, 5")
        ix2 = a.vm(f"buffer_load_dwordx2 {r2(XR+10)}, v11, {sX}, {sT1} offen")
    a(f"s_lshl_b32 {sT0}, {sT0}, 17\ns_add_u32 {sT0}, {sT0}, s94")
    for i in range(4):
        iwq = a.vm(f"buffer_load_dwordx4 {r4(slot(32+i))}, v10, {sWQ}, {sT0} offen nt")
        if i < 3: a(f"s_add_u32 {sT0}, {sT0}, 8192")
    if E != 8:
        a(f"s_lshl_b32 {sT0}, s95, 17\ns_add_u32 {sT0}, {sT0}, s94")
        for i in range(4):
            iwq2 = a.vm(f"buffer_load_dwordx4 {r4(slot(36+i))}, v10, {sWQ}, {sT0} offen nt")
            if i < 3: a(f"s_add_u32 {sT0}, {sT0}, 8192")
    kidx = {}
    def kload(k):
        kidx[k] = a.vm(f"buffer_load_dwordx4 {r4(slot(k))}, {vKoff}, {sK}, {sKo} offen offset:{(k%2)*128 + ((k%4)//2)*2048} nt")
        if k % 4 == 3: a(f"s_add_u32 {sKo}, {sKo}, 0x200000")
    K0 = o.get("k0", D)
    if o["qbar"]: a("s_barrier")
    for k in range(K0): kload(k)
    if o["hack"] & 16: stamp("kiss")
    srd(12, 68, 64 << 20); srd(16, 84, 256 << 20); srd(28, 72, 8 << 20); srd(32, 76, 7 << 20); srd(36, 78, 7 << 20); srd(40, 80, 2048); srd(44, 82, 256)
    a(f"s_load_dword {sEp}, s[84:85], {WS_EPOCH}")
    if o["stamps"] == 3: a(f"s_load_dword s97, s[84:85], {WS_EPOCH+4}\ns_waitcnt lgkmcnt(0)\ns_xor_b32 s97, s97, {sEp}")
    a.wait_vm(ix1)
    if o["hack"] & 16: stamp("xgot")
    XF = ACC
    for i in range(8):
        a(f"v_lshlrev_b32 v{XF+2*i}, 16, v{XR+i}\nv_and_b32 v{XF+2*i+1}, {sHI}, v{XR+i}")
    ln_stats(XF, vt[0], vt[1], vt[2], vt[3])
    a(f"v_readfirstlane_b32 {sMX}, {vt[2]}")
    def kmore(n):
        for _ in range(n): kload(len(kidx))
    kmore(o["y0"])
    a.wait_vm(ix2)
    a(f"v_lshlrev_b32 v48, 16, v{XR+8}\nv_and_b32 v49, {sHI}, v{XR+8}\nv_lshlrev_b32 v50, 16, v{XR+9}\nv_and_b32 v51, {sHI}, v{XR+9}")
    ln_apply(48, 52, vt[0], vt[1])
    a(f"v_mov_b32 v16, v52\nv_mov_b32 v17, v53")
    if E != 8:
        a(f"v_lshlrev_b32 v48, 16, v{XR+10}\nv_and_b32 v49, {sHI}, v{XR+10}\nv_lshlrev_b32 v50, 16, v{XR+11}\nv_and_b32 v51, {sHI}, v{XR+11}")
        ln_apply(48, 18, vt[0], vt[1])
    a.wait_vm(iwq)
    stamp("wq")
    kmore(o["y1"])
    wtrans(slot(32), PT)
    if E == 8:
        gemv(16, PT, ACC, 20, tag=False)
    else:
        for t in range(8): a(f"v_mfma_f32_16x16x16_bf16 {r4(ACC+4*t)}, {r2(16)}, {r2(PT+2*t)}, 0")
        a("s_cmp_eq_u32 s95, 64\ns_cbranch_scc1 L_q1")
        a(f"s_waitcnt vmcnt({a.nvm - iwq2 - 1})\ns_nop 4")
        wtrans(slot(36), PT)
        for t in range(8): a(f"v_mfma_f32_16x16x16_bf16 {r4(ACC+4*t)}, {r2(18)}, {r2(PT+2*t)}, {r4(ACC+4*t)}")
        a.label("L_q1")
        for q in range(4): a(f"v_cndmask_b32 v{20+q}, v{ACC+4*q}, v{ACC+4*(q+4)}, {sM4}")
    a(f"v_and_b32 v8, 15, {vLane}\nv_lshlrev_b32 v8, 5, v8\nv_bfe_u32 v9, {vLane}, 4, 1\nv_lshl_add_u32 v8, v9, 4, v8")
    a(f"s_lshl_b32 {sT0}, s3, 9\nv_add_u32 v8, {sT0}, v8")
    a(f"ds_write_b128 v8, {r4(20)} offset:{L_QRED}")
    kmore(o["y2"])
    a(f"s_waitcnt lgkmcnt(0)\ns_add_u32 {sEp}, {sEp}, 1\ns_and_b32 {sTag8}, {sEp}, 0xff\ns_and_b32 {sTag16}, {sEp}, 0xffff\ns_and_b32 {sTag2}, {sEp}, 3")
    a("s_barrier")
    kmore(o["y3"])
    a("s_cmp_lg_u32 s3, 0\ns_cbranch_scc1 L_noq")
    a(f"v_and_b32 v8, 0x1f0, {vLin}")
    for i in range(8): a(f"ds_read_b128 {r4(ACC+4*i)}, v8 offset:{L_QRED + 512*i}")
    a("s_waitcnt lgkmcnt(0)")
    for i in range(1, 8):
        for q in range(4): a(f"v_add_f32 v{ACC+q}, v{ACC+q}, v{ACC+4*i+q}")
    if E == 8:
        a(f"s_lshl_b32 {sT0}, s94, 4\ns_lshl_b32 {sT1}, s95, 9\ns_add_u32 {sT0}, {sT0}, {sT1}\ns_add_u32 {sT0}, {sT0}, {WS_QP}")
    else:
        a(f"s_lshl_b32 {sT0}, s94, 4\ns_lshr_b32 {sT1}, s2, 6\ns_lshl_b32 {sT1}, {sT1}, 10\ns_add_u32 {sT0}, {sT0}, {sT1}\ns_and_b32 {sT1}, s2, 1\ns_lshl_b32 {sT1}, {sT1}, 9\ns_add_u32 {sT0}, {sT0}, {sT1}\ns_add_u32 {sT0}, {sT0}, {WS_QP}")
    a("s_mov_b32 exec_hi, 0")
    for q in range(4): a(f"v_and_b32 v{ACC+q}, -4, v{ACC+q}\nv_or_b32 v{ACC+q}, {sTag2}, v{ACC+q}")
    a(f"buffer_store_dwordx4 {r4(ACC)}, v8, {sWS}, {sT0} offen sc1")
    a("s_mov_b64 exec, -1")
    a.label("L_noq")
    stamp("qpub")
    QL = S0
    for k in range(len(kidx), 32):
        pace(D); kload(k)
        if k == o["qload_pos"]:
            a(f"s_lshl_b32 {sT0}, {sG}, 3\ns_add_u32 {sT0}, {sT0}, s3\ns_lshl_b32 {sT2}, {sT0}, 12\ns_add_u32 {sT2}, {sT2}, {WS_QP}")
            for i in range(4):
                a.pace(D); iq = a.vm(f"buffer_load_dwordx4 {r4(QL+4*i)}, {vLin}, {sWS}, {sT2} offen offset:{1024*i} sc1")
        if k == o["qproc_pos"]:
            a.wait_vm(iq)
            poll([f"buffer_load_dwordx4 {r4(QL+4*i)}, {vLin}, {sWS}, {sT2} offen offset:{1024*i} sc1" for i in range(4)], (list(range(QL, QL+16)), sTag2, "3"), first=False)
            for q in range(16): a(f"v_and_b32 v{QL+q}, -4, v{QL+q}")
            for q in range(4):
                a(f"v_add_f32 v{QL+q}, v{QL+q}, v{QL+4+q}\nv_add_f32 v{QL+8+q}, v{QL+8+q}, v{QL+12+q}")
            for q in range(4): a(f"v_add_f32 v{QL+q}, v{QL+q}, v{QL+8+q}")
            for q in range(4): a(f"v_mov_b32 v{QL+4+q}, v{QL+q}")
            for q in range(4): a(f"v_permlane32_swap_b32 v{QL+4+q}, v{QL+q}")
            for q in range(4): a(f"v_add_f32 v{QL+q}, v{QL+q}, v{QL+4+q}")
            a(f"v_cvt_pk_bf16_f32 v{QL+8}, v{QL}, v{QL+1}\nv_cvt_pk_bf16_f32 v{QL+9}, v{QL+2}, v{QL+3}")
            a(f"v_and_b32 v8, 31, {vLane}\nv_lshlrev_b32 v8, 3, v8\ns_lshl_b32 {sT0}, s3, 8\nv_add_u32 v8, {sT0}, v8")
            a(f"ds_write_b64 v8, {r2(QL+8)} offset:{L_QF}")
            barrier()
            a(f"v_and_b32 v8, 7, {vLane}\nv_lshlrev_b32 v8, 8, v8\nv_lshrrev_b32 v9, 4, {vLane}\nv_lshl_add_u32 v8, v9, 5, v8\nv_bfe_u32 v9, {vLane}, 3, 1\nv_lshl_add_u32 v8, v9, 4, v8")
            a(f"ds_read_b128 {r4(PT)}, v8 offset:{L_QF}\nds_read_b128 {r4(PT+4)}, v8 offset:{L_QF+128}")
            stamp("qready")
    seq = [("w", n) for n in range(4)] if not o["wolate"] else []
    if not o["w1late"]: seq += [("w", n) for n in range(4, 8)]
    if not o["w2late"]: seq += [("w", n) for n in range(8, 12)]
    seq += [("v", i) for i in range(32)]
    order = list(range(32, 44)) + list(range(32))
    place = {e: order[k] for k, e in enumerate(seq)}
    rest = order[len(seq):]
    for n in range(12):
        if ("w", n) not in place: place[("w", n)] = rest.pop(0)
    if o["wolate"] == 1: seq += [("w", n) for n in range(4)]
    def vslot(i): return place[("v", i)]
    def wsl(m): return slot(place[("w", 4*m)])
    widx = {}
    def wsetup():
        a(f"v_lshrrev_b32 v9, 4, {vLane}\nv_and_b32 v8, 15, {vLane}\nv_lshlrev_b32 v8, 4, v8\nv_lshl_add_u32 v12, v9, 13, v8")
        a(f"v_mul_u32_u24 v9, {4*7168}, v9\nv_add_u32 v13, v9, v8")
        a(f"s_lshl_b32 s64, {sA}, 17\ns_lshr_b32 {sT0}, s3, 1\ns_lshl_b32 {sT0}, {sT0}, 15\ns_add_u32 s64, s64, {sT0}")
        a(f"s_lshl_b32 {sT0}, {sB}, 9\ns_add_u32 s64, s64, {sT0}\ns_and_b32 {sT0}, s3, 1\ns_lshl_b32 {sT0}, {sT0}, 8\ns_add_u32 s64, s64, {sT0}\ns_mov_b32 s66, s64")
        a(f"s_mul_i32 s69, {sB}, 7\ns_add_u32 s69, s69, s3")
        a(f"s_mul_i32 s65, {sA}, {16*7168}\ns_lshl_b32 {sT0}, s69, 8\ns_add_u32 s65, s65, {sT0}")
        a(f"s_cmp_eq_u32 s3, 7\ns_cselect_b32 s65, 0x7000000, s65")
    def wload(n):
        m, i = n // 4, n % 4
        srd_, vo, sb, st = [(sWO, "v12", "s64", 2048), (sW1, "v13", "s65", 7168), (sW2, "v12", "s66", 2048)][m]
        widx[n] = a.vm(f"buffer_load_dwordx4 {r4(slot(place[('w', n)]))}, {vo}, {srd_}, {sb} offen nt")
        if i < 3: a(f"s_add_u32 {sb}, {sb}, {st}")
    vidx = {}
    def vload(i):
        vidx[i] = a.vm(f"buffer_load_dwordx4 {r4(slot(vslot(i)))}, {vLin}, {sV}, {sVo} offen offset:{(i%4)*1024} nt")
        if i % 4 == 3: a(f"s_add_u32 {sVo}, {sVo}, 0x200000")
    wsetup()
    def issue(n):
        for _ in range(n):
            kind, i = seq.pop(0)
            pace(o["dl"] if len(vidx) >= o["dlpos"] else D)
            (vload if kind == "v" else wload)(i)
    def issue_np(n):
        for _ in range(n):
            kind, i = seq.pop(0)
            (vload if kind == "v" else wload)(i)
    issue(D)
    a.wait_vm(kidx[31])
    stamp("kdone")
    a("s_waitcnt lgkmcnt(0)")
    for half in range(2):
        for jj in range(8):
            j = half * 8 + jj
            a(f"v_mfma_f32_16x16x32_bf16 {r4(ACC+4*jj)}, {r4(slot(2*j))}, {r4(PT)}, 0")
        for jj in range(8):
            j = half * 8 + jj
            a(f"v_mfma_f32_16x16x32_bf16 {r4(ACC+4*jj)}, {r4(slot(2*j+1))}, {r4(PT+4)}, {r4(ACC+4*jj)}")
        for jj in range(8):
            j = half * 8 + jj; d = ACC + 4 * jj
            a(f"v_add_f32_dpp v{S0+j}, v{d+1}, v{d} row_ror:8 row_mask:0xf bank_mask:0x3")
            a(f"v_add_f32_dpp v{S0+j}, v{d+2}, v{d+3} row_ror:8 row_mask:0xf bank_mask:0xc")
        issue_np(o["x1"] if half == 0 else o["x2"])
    for j in range(0, 16, 2):
        x, y = f"v{S0+j}", f"v{S0+j+1}"
        a(f"v_cvt_pk_bf16_f32 v8, {x}, {y}\nv_lshlrev_b32 {x}, 16, v8\nv_and_b32 {y}, {sHI}, v8")
        a(f"v_mul_f32 {x}, {sSC}, {x}\nv_mul_f32 {y}, {sSC}, {y}")
        a(f"v_cvt_pk_bf16_f32 v8, {x}, {y}\nv_lshlrev_b32 {x}, 16, v8\nv_and_b32 {y}, {sHI}, v8")
    a(f"v_max3_f32 {vMw}, v{S0}, v{S0+1}, v{S0+2}")
    for j in range(3, 15, 2): a(f"v_max3_f32 {vMw}, {vMw}, v{S0+j}, v{S0+j+1}")
    a(f"v_max_f32 {vMw}, {vMw}, v{S0+15}")
    red_rows("v_max_f32", vMw, "v8")
    issue_np(o["x3"])
    for j in range(16): a(f"v_sub_f32 v{S0+j}, v{S0+j}, {vMw}")
    for j in range(16): a(f"v_mul_f32 v{S0+j}, {sL2E}, v{S0+j}")
    for j in range(16): a(f"v_exp_f32 v{S0+j}, v{S0+j}")
    a(f"v_add_f32 v11, v{S0}, v{S0+1}")
    for j in range(2, 16): a(f"v_add_f32 v11, v11, v{S0+j}")
    red_rows("v_add_f32", "v11", "v8")
    a(f"v_mov_b32 v10, {vMw}")
    a(f"v_and_b32 v8, 7, {vLane}\nv_lshlrev_b32 v8, 3, v8\ns_lshl_b32 {sT0}, s3, 6\nv_add_u32 v8, {sT0}, v8")
    a(f"ds_write_b64 v8, v[10:11] offset:{L_ML}")
    issue_np(o["x4"])
    barrier()
    issue_np(o["x5"])
    a("s_cmp_lg_u32 s3, 0\ns_cbranch_scc1 L_noml")
    a(f"v_lshlrev_b32 v8, 3, {vLane}\nds_read_b64 v[10:11], v8 offset:{L_ML}\ns_waitcnt lgkmcnt(0)")
    a("v_mov_b32 v9, v10")
    red_rows("v_max_f32", "v9", "v8")
    a(f"v_sub_f32 v10, v10, v9\nv_mul_f32 v10, {sL2E}, v10\nv_exp_f32 v10, v10\nv_mul_f32 v11, v11, v10")
    red_rows("v_add_f32", "v11", "v8")
    a(f"v_or_b32 v10, {sTag16}, v9\nv_and_or_b32 v11, v11, {vMask}, {sTag8}")
    a(f"v_lshlrev_b32 v8, 9, {vLane}\ns_lshl_b32 {sT0}, {sG}, 12\ns_lshl_b32 {sT1}, {sS}, 3\ns_add_u32 {sT0}, {sT0}, {sT1}\ns_add_u32 {sT0}, {sT0}, {WS_ML}")
    a("s_mov_b64 exec, 0xff")
    a(f"buffer_store_dwordx2 v[10:11], v8, {sWS}, {sT0} offen sc1")
    a("s_mov_b64 exec, -1")
    a.label("L_noml")
    stamp("mlpub")
    def pv(u):
        for dp in range(4):
            tb = PT + 8 * (dp & 1)
            for b in range(2):
                for j in range(4):
                    a(f"v_perm_b32 v{tb+4*b+j}, v{slot(vslot(8*u+2*j+1))+dp}, v{slot(vslot(8*u+2*j))+dp}, {sPH if b else sPL}")
            for b in range(2):
                t = 2 * dp + b
                c = "0" if u == 0 else r4(ACC + 4 * t)
                a(f"v_mfma_f32_16x16x32_bf16 {r4(ACC+4*t)}, {r4(S0+4*u)}, {r4(tb+4*b)}, {c}")
    pvdone = 0; fready = False; iml = None; rsdone = False; irs = None
    Y = 26
    SPARE = slot(vslot(0))
    RSK, XK = SPARE, SPARE + 4
    vA4, vA8 = "v2", "v6"
    a(f"v_lshrrev_b32 v14, 4, {vLane}\nv_lshlrev_b32 v14, 4, v14\nv_and_b32 v8, 3, {vLane}\nv_lshl_add_u32 {vA4}, v8, 6, v14\nv_and_b32 v8, 7, {vLane}\nv_lshl_add_u32 {vA8}, v8, 6, v14")
    a(f"s_lshl_b32 s72, {sA}, 11\ns_lshr_b32 {sT0}, s3, 1\ns_lshl_b32 {sT0}, {sT0}, 9\ns_add_u32 s72, s72, {sT0}\ns_add_u32 s72, s72, {WS_RS}")
    while seq:
        issue(1)
        nv = len(vidx)
        if not o["wolate"] and not rsdone and a.done > widx[3]:
            assert not fready
            a("v_mov_b32 v8, 0x3f803f80")
            for i in range(4): a(f"v_mov_b32 v{ACC+i}, 0")
            for d in range(4):
                for i in range(4): a(f"v_dot2_f32_bf16 v{ACC+i}, v{wsl(0)+4*i+d}, v8, v{ACC+i}")
            for k in (8, 4, 2, 1):
                for i in range(4): a(f"v_add_f32_dpp v{ACC+i}, v{ACC+i}, v{ACC+i} row_ror:{k} row_mask:0xf bank_mask:0xf")
            for i in range(4): a(f"v_and_or_b32 v{ACC+i}, v{ACC+i}, {vMask}, {sTag8}")
            a(f"s_lshl_b32 {sT0}, {sB}, 1\ns_and_b32 {sT1}, s3, 1\ns_add_u32 {sT0}, {sT0}, {sT1}\ns_lshl_b32 {sT0}, {sT0}, 6\ns_add_u32 {sT0}, {sT0}, s72")
            a("s_mov_b32 exec_lo, 0x10001\ns_mov_b32 exec_hi, 0x10001")
            a.pace(D); a.vm(f"buffer_store_dwordx4 {r4(ACC)}, {vA4}, {sWS}, {sT0} offen sc1")
            a("s_mov_b64 exec, -1")
            rsdone = True
        if iml is None and nv > o["ml_pos"]:
            a(f"v_lshlrev_b32 v8, 3, {vLane}\ns_lshl_b32 {sT0}, {sG}, 3\ns_add_u32 {sT0}, {sT0}, s3\ns_lshl_b32 s70, {sT0}, 9\ns_add_u32 s70, s70, {WS_ML}")
            a.pace(D); iml = a.vm(f"buffer_load_dwordx2 v[10:11], v8, {sWS}, s70 offen sc1")
        if iml is not None and not fready and (a.done > iml or not seq):
            a.wait_vm(iml)
            a(f"v_xor_b32 v14, {sTag16}, v10\nv_and_b32 v14, 0xffff, v14\nv_xor_b32 v9, {sTag8}, v11\nv_and_b32 v9, 0xff, v9\nv_or_b32 v14, v14, v9")
            a("v_cmp_ne_u32 vcc, 0, v14\ns_cbranch_vccz L_mlok")
            a(f"s_mov_b32 {sCnt}, 0")
            a.label("L_mlspin")
            a(f"buffer_load_dwordx2 v[10:11], v8, {sWS}, s70 offen sc1\ns_waitcnt vmcnt(0)")
            a(f"s_add_u32 {sCnt}, {sCnt}, 1\ns_cmp_gt_u32 {sCnt}, 0x80000\ns_cbranch_scc1 L_end")
            a(f"v_xor_b32 v14, {sTag16}, v10\nv_and_b32 v14, 0xffff, v14\nv_xor_b32 v9, {sTag8}, v11\nv_and_b32 v9, 0xff, v9\nv_or_b32 v14, v14, v9")
            a("v_cmp_ne_u32 vcc, 0, v14\ns_cbranch_vccnz L_mlspin")
            a.label("L_mlok")
            a(f"v_and_b32 v10, {sHI}, v10\nv_and_or_b32 v11, v11, {vMask}, {s80}\nv_mov_b32 v9, v10")
            red64("v_max_f32", "v9", "v8")
            a(f"v_sub_f32 v10, v10, v9\nv_mul_f32 v10, {sL2E}, v10\nv_exp_f32 v10, v10\nv_mul_f32 v11, v11, v10")
            red64("v_add_f32", "v11", "v8")
            a(f"v_rcp_f32 v11, v11\nv_mov_b32 v10, v9\ns_lshl_b32 {sT0}, s3, 3\nv_mov_b32 v8, {sT0}")
            a(f"ds_write_b64 v8, v[10:11] offset:{L_MLG}")
            barrier()
            a(f"v_and_b32 v8, 7, {vLane}\nv_lshlrev_b32 v8, 3, v8\nds_read_b64 v[10:11], v8 offset:{L_MLG}\ns_waitcnt lgkmcnt(0)")
            a(f"v_sub_f32 v10, {vMw}, v10\nv_mul_f32 v10, {sL2E}, v10\nv_exp_f32 v10, v10\nv_mul_f32 v10, v10, v11")
            a(f"v_bfe_u32 v9, {vLane}, 3, 1\nv_cmp_eq_u32 vcc, 1, v9\nv_mov_b32 v9, 0xffff\nv_mov_b32 v8, {sHI}\nv_cndmask_b32 v9, v9, v8, vcc")
            for j in range(16): a(f"v_mul_f32 v{S0+j}, v{S0+j}, v10")
            for j in range(16): a(f"v_cvt_pk_bf16_f32 v{S0+j}, v{S0+j}, v{S0+j}")
            for j in range(16): a(f"v_and_b32 v{S0+j}, v{S0+j}, v9")
            fready = True
            stamp("fready")
        while fready and pvdone < 4 and (8 * pvdone + 7) in vidx and a.done > vidx[8 * pvdone + 7]:
            pv(pvdone); pvdone += 1
            if pvdone == 2:
                if not o["wolate"]:
                    a.pace(D); irs = a.vm(f"buffer_load_dwordx4 {r4(RSK)}, {vA8}, {sWS}, s72 offen sc1")
                a(f"v_lshrrev_b32 v8, 4, {vLane}\nv_lshlrev_b32 v8, 3, v8\ns_lshl_b32 {sT0}, {sA}, 5")
                a.pace(D); ixr = a.vm(f"buffer_load_dwordx2 {r2(XK)}, v8, {sX}, {sT0} offen")
    vRW, vOW, vH1, vPub4, vRP, vAO, vRB = "v9", "v10", "v11", "v5", "v7", "v30", "v31"
    G0, AO = 16, 24
    HK = SPARE + 8
    vLR = f"v{SPARE+13}" if o["pairl"] == 2 else vLin
    TW = SPARE + 16
    DR = ACC
    def q16(b, lb):
        a(f"v_permlane32_swap_b32 v{b}, v{b+1}\nv_permlane32_swap_b32 v{b+2}, v{b+3}")
        a(f"v_add_f32 v{b}, v{b}, v{b+1}\nv_add_f32 v{b+2}, v{b+2}, v{b+3}")
        a(f"v_permlane16_swap_b32 v{b}, v{b+2}\nv_add_f32 v{b}, v{b}, v{b+2}")
        for k in (4, 8): a(f"v_add_f32_dpp v{b}, v{b}, v{b} row_ror:{k} row_mask:0xf bank_mask:0xf")
        a(f"ds_write_b32 {vRW}, v{b} offset:{lb}")
    def dppsum(regs, n):
        for pat in ("quad_perm:[1,0,3,2]", "quad_perm:[2,3,0,1]", "row_half_mirror")[:n]:
            for r in regs: a(f"v_add_f32_dpp v{r}, v{r}, v{r} {pat} row_mask:0xf bank_mask:0xf")
    def unpack4(d, p):
        a(f"v_lshlrev_b32 v{d}, 16, v{p}\nv_and_b32 v{d+1}, {sHI}, v{p}\nv_lshlrev_b32 v{d+2}, 16, v{p+1}\nv_and_b32 v{d+3}, {sHI}, v{p+1}")
    def pack4(p, d):
        a(f"v_cvt_pk_bf16_f32 v{p}, v{d}, v{d+1}\nv_cvt_pk_bf16_f32 v{p+1}, v{d+2}, v{d+3}")
    def ldx4(r, vo, so, off=0): return f"buffer_load_dwordx4 {r4(r)}, {vo}, {sWS}, {so} offen offset:{off} sc1"
    R8 = list(range(G0, G0+8)); R4_ = list(range(G0, G0+4))
    def latew(m, upto=4):
        for n in range(4*m, 4*m+upto):
            if n not in widx: wload(n)
    def wl4(m):
        for n in range(4*m, 4*m+4): wload(n)
    def unless_early(f, lab_):
        a(f"s_cmp_lg_u32 s93, 0\ns_cbranch_scc1 {lab_}"); f(); a.label(lab_)
    def mfma8(A, T):
        for t in range(8): a(f"v_mfma_f32_16x16x16_bf16 {r4(DR+4*t)}, {r2(A)}, {r2(T+2*t)}, 0")
    def sel4(tag):
        for q in range(4): a(f"v_cndmask_b32 v{Y+q}, v{DR+4*q}, v{DR+4*(q+4)}, {sM4}")
        if tag:
            for q in range(4): a(f"v_and_or_b32 v{Y+q}, v{Y+q}, {vMask}, {sTag8}")
    def big_reduce(lb):
        strip(R8)
        for q in range(4): a(f"v_add_f32 v{G0+q}, v{G0+q}, v{G0+4+q}")
        a(f"v_permlane32_swap_b32 v{G0}, v{G0+1}\nv_permlane32_swap_b32 v{G0+2}, v{G0+3}")
        a(f"v_add_f32 v{G0}, v{G0}, v{G0+1}\nv_add_f32 v{G0+2}, v{G0+2}, v{G0+3}\nv_permlane16_swap_b32 v{G0}, v{G0+2}\nv_add_f32 v{G0}, v{G0}, v{G0+2}")
        a(f"ds_write_b32 {vRP}, v{G0} offset:{lb}")
    def cu_reduce_pub(lb, sdst, lab_, extra=None):
        a(f"s_cmp_lg_u32 s3, 0\ns_cbranch_scc1 {lab_}")
        if extra and o["sarid"]:
            a(f"v_mov_b32 v8, 0\nds_read_b128 {r4(G0)}, v8 offset:{L_SA}")
            for i in range(4): a(f"ds_read_b128 {r4(ACC+4*i)}, {vLR} offset:{lb + 1024*i}")
            a(f"s_waitcnt lgkmcnt(4)\nv_add_f32 v{G0}, v{G0}, v{G0+1}\nv_add_f32 v{G0+2}, v{G0+2}, v{G0+3}\nv_add_f32 v{G0}, v{G0}, v{G0+2}\nv_bfe_u32 v{G0}, v{G0}, {vSh}, 8")
            for i in range(1, 4):
                a(f"s_waitcnt lgkmcnt({3 - i})")
                for q in range(4): a(f"v_add_f32 v{ACC+q}, v{ACC+q}, v{ACC+4*i+q}")
            for q in range(3): a(f"v_and_or_b32 v{ACC+q}, v{ACC+q}, {vMask}, {sTag8}")
            a(f"v_and_or_b32 v{ACC+3}, v{ACC+3}, {vMask}, v{G0}")
            a(f"buffer_store_dwordx4 {r4(ACC)}, {vOW}, {sWS}, {sdst} offen sc1")
            a.label(lab_)
            return
        for i in range(4): a(f"ds_read_b128 {r4(ACC+4*i)}, {vLR} offset:{lb + 1024*i}")
        if extra: a(f"v_mov_b32 v8, 0\nds_read_b128 {r4(G0)}, v8 offset:{L_SA}")
        for i in range(1, 4):
            a(f"s_waitcnt lgkmcnt({3 - i + (1 if extra else 0)})")
            for q in range(4): a(f"v_add_f32 v{ACC+q}, v{ACC+q}, v{ACC+4*i+q}")
        for q in range(4): a(f"v_and_or_b32 v{ACC+q}, v{ACC+q}, {vMask}, {sTag8}")
        a(f"buffer_store_dwordx4 {r4(ACC)}, {vOW}, {sWS}, {sdst} offen sc1")
        if extra: extra()
        a.label(lab_)
    def pub2(base):
        a(f"v_mov_b32 v{Y+2}, {sEp}\nv_mov_b32 v{Y+3}, {sEp}")
        a(f"v_lshlrev_b32 v8, 10, {vLane}\ns_lshl_b32 {sT0}, {sB}, 11\ns_lshl_b32 {sT1}, {sA}, 4\ns_add_u32 {sT0}, {sT0}, {sT1}\ns_add_u32 {sT0}, {sT0}, {base}")
        a("s_mov_b64 exec, 3")
        a(f"buffer_store_dwordx4 {r4(Y)}, v8, {sWS}, {sT0} offen sc1")
    a(f"v_bfe_u32 v14, {vLane}, 4, 1\nv_lshlrev_b32 v8, 3, v14\nv_lshrrev_b32 v14, 5, {vLane}\nv_lshl_add_u32 v8, v14, 2, v8")
    a(f"v_and_b32 v14, 3, {vLane}\nv_lshl_add_u32 {vRW}, v14, 4, v8\ns_lshl_b32 {sT0}, s3, 6\nv_add_u32 {vRW}, {sT0}, {vRW}")
    a(f"v_and_b32 v14, 15, {vLane}\nv_lshl_add_u32 {vRP}, v14, 4, v8\ns_mul_i32 {sT0}, s3, {256 + o['lpad']}\nv_add_u32 {vRP}, {sT0}, {vRP}")
    if o["owc"]:
        a(f"v_and_b32 v8, 15, {vLane}\nv_lshlrev_b32 v8, 4, v8\nv_lshrrev_b32 v14, 5, {vLane}\nv_lshl_add_u32 v8, v14, 8, v8\nv_bfe_u32 v14, {vLane}, 4, 1\nv_lshl_add_u32 v8, v14, 9, v8")
    else:
        a(f"v_and_b32 v8, 15, {vLane}\nv_lshlrev_b32 v8, 5, v8\nv_lshrrev_b32 v14, 5, {vLane}\nv_lshl_add_u32 v8, v14, 4, v8\nv_bfe_u32 v14, {vLane}, 4, 1\nv_lshl_add_u32 v8, v14, 9, v8")
    a(f"s_lshl_b32 {sT0}, s3, 12\nv_add_u32 {vOW}, {sT0}, v8")
    if o["owc"]:
        a(f"v_lshrrev_b32 v8, 5, {vLane}\nv_lshlrev_b32 v8, 3, v8\nv_bfe_u32 v14, {vLane}, 3, 1\nv_add_u32 v8, v8, v14\nv_mul_u32_u24 v8, {STB}, v8\nv_and_b32 v14, 7, {vLane}\nv_lshl_add_u32 v8, v14, 5, v8\nv_bfe_u32 v14, {vLane}, 4, 1\nv_lshl_add_u32 {vH1}, v14, 4, v8")
    else:
        a(f"v_lshrrev_b32 v8, 5, {vLane}\nv_lshlrev_b32 v8, 3, v8\nv_bfe_u32 v14, {vLane}, 4, 1\nv_add_u32 v8, v8, v14\nv_mul_u32_u24 v8, {STB}, v8\nv_and_b32 v14, 15, {vLane}\nv_lshl_add_u32 {vH1}, v14, 4, v8")
    a(f"s_mul_i32 s71, {sG}, {16*STB}\ns_mul_i32 {sT0}, s3, {2*STB}\ns_add_u32 s71, s71, {sT0}\ns_lshl_b32 {sT0}, {sS}, 8\ns_add_u32 s71, s71, {sT0}\ns_add_u32 s71, s71, {WS_H1}")
    a(f"v_bfe_u32 v8, {vLane}, 3, 1\nv_mul_u32_u24 v8, {STB}, v8\nv_and_b32 v14, 7, {vLane}\nv_lshl_add_u32 v8, v14, 5, v8\nv_bfe_u32 v14, {vLane}, 4, 1\nv_lshl_add_u32 {vPub4}, v14, 4, v8")
    a(f"s_mul_i32 s73, s69, {2*STB}\ns_lshl_b32 {sT0}, {sA}, 8\ns_add_u32 s73, s73, {sT0}\ns_add_u32 s73, s73, {WS_H4}")
    if o["hack"] & 4:
        a(f"v_bfe_u32 v8, {vLane}, 3, 1\nv_lshlrev_b32 v8, 8, v8\nv_and_b32 v14, 7, {vLane}\nv_lshl_add_u32 v8, v14, 5, v8\nv_bfe_u32 v14, {vLane}, 4, 1\nv_lshl_add_u32 {vPub4}, v14, 4, v8")
        a(f"s_lshr_b32 {sT0}, s2, 3\ns_mul_i32 {sT0}, {sT0}, 7\ns_add_u32 {sT0}, {sT0}, s3\ns_lshl_b32 {sT0}, {sT0}, 1")
        a(f"s_lshr_b32 {sT1}, {sT0}, 6\ns_lshl_b32 {sT1}, {sT1}, 3\ns_and_b32 s73, s2, 7\ns_add_u32 s73, s73, {sT1}\ns_mul_i32 s73, s73, {STB}")
        a(f"s_and_b32 {sT0}, {sT0}, 63\ns_lshl_b32 {sT0}, {sT0}, 8\ns_add_u32 s73, s73, {sT0}\ns_add_u32 s73, s73, {WS_H4}")
    a(f"s_mul_i32 s74, {sA}, {STB}\ns_lshl_b32 {sT0}, s3, 11\ns_add_u32 s74, s74, {sT0}")
    STP = 8192 + o["pads"]
    vGS = f"v{SPARE+12}" if o["pairl"] else vLin
    if o["pairl"]:
        a(f"s_mul_i32 s75, {sB}, {8*STP}\ns_lshl_b32 {sT0}, {sA}, 7\ns_add_u32 s75, s75, {sT0}")
        a(f"s_lshr_b32 {sT0}, {sA}, 4\ns_lshl_b32 {sT0}, {sT0}, 3\ns_and_b32 {sT1}, {sA}, 7\ns_add_u32 {sT0}, {sT0}, {sT1}\ns_mul_i32 s76, {sT0}, {STP}")
        a(f"s_bfe_u32 {sT0}, {sA}, 0x10003\ns_lshl_b32 {sT0}, {sT0}, 6\ns_add_u32 s76, s76, {sT0}\ns_lshl_b32 {sT0}, s3, 11\ns_add_u32 s76, s76, {sT0}")
        a(f"v_lshrrev_b32 v8, 2, {vLane}\nv_lshlrev_b32 v8, 7, v8\nv_and_b32 v14, 3, {vLane}\nv_lshl_add_u32 {vGS}, v14, 4, v8")
    else:
        a(f"s_mul_i32 s75, {sB}, {16*STS}\ns_lshl_b32 {sT0}, {sA}, 6\ns_add_u32 s75, s75, {sT0}")
        a(f"s_mul_i32 s76, {sA}, {STS}\ns_lshl_b32 {sT0}, s3, 10\ns_add_u32 s76, s76, {sT0}")
    a(f"s_and_b32 s77, s2, 7\ns_lshl_b32 s77, s77, 10")
    a.wait_vm(ixr)
    if not o["wolate"]:
        poll([ldx4(RSK, vA8, "s72")], (list(range(RSK, RSK+4)), sTag8, "0xff"), first=False)
        strip(range(RSK, RSK+4))
        dppsum(range(RSK, RSK+4), 3)
    else:
        for q in range(4): a(f"v_mov_b32 v{RSK+q}, 0")
    unpack4(HK, XK)
    vSh = vA8
    if o["sarid"]: a(f"v_and_b32 {vSh}, 3, {vLane}\nv_lshlrev_b32 {vSh}, 3, {vSh}")
    while pvdone < 4:
        a.wait_vm(vidx[8 * pvdone + 7]); pv(pvdone); pvdone += 1
    stamp("vdone")
    if o["wolate"] == 2: latew(0)
    for r in range(4):
        for t in range(4):
            a(f"v_permlane32_swap_b32 v{ACC+4*t+r}, v{ACC+4*(t+4)+r}")
        for t in range(4):
            a(f"v_add_f32 v{PT+4*r+t}, v{ACC+4*t+r}, v{ACC+4*(t+4)+r}")
        a(f"ds_write_b128 {vOW}, {r4(PT+4*r)} offset:{L_O + 1024*r}")
    barrier()
    a("s_cmp_ge_u32 s3, 4\ns_cbranch_scc1 L_noh1")
    a(f"s_lshl_b32 {sT0}, s3, 10\nv_add_u32 v8, {sT0}, {vLin}")
    for i in range(8): a(f"ds_read_b128 {r4(ACC+4*i)}, v8 offset:{L_O + 4096*i}")
    for i in range(1, 8):
        a(f"s_waitcnt lgkmcnt({7-i})")
        for q in range(4): a(f"v_add_f32 v{ACC+q}, v{ACC+q}, v{ACC+4*i+q}")
    for q in range(4): a(f"v_and_or_b32 v{ACC+q}, v{ACC+q}, {vMask}, {sTag8}")
    a(f"buffer_store_dwordx4 {r4(ACC)}, {vH1}, {sWS}, s71 offen sc1")
    a.label("L_noh1")
    stamp("h1pub")
    if o["adapt"]: a("s_mov_b32 s93, 0")
    elif 1:
        if o["w1late"]: latew(1, o["w1pre"])
        if o["w2late"]: latew(2, o["w2p0"])
    if not o["wolate"]: wtrans(wsl(0), TW)
    a(f"v_and_b32 v8, 7, {vLane}\nv_mul_u32_u24 v8, {256 + o['lpad']}, v8\nv_lshrrev_b32 v14, 4, {vLane}\nv_lshl_add_u32 v8, v14, 4, v8\ns_lshr_b32 {sT0}, s3, 1\ns_lshl_b32 {sT0}, {sT0}, 6\nv_add_u32 {vAO}, {sT0}, v8")
    a(f"v_and_b32 v8, 15, {vLane}\nv_lshlrev_b32 v8, 5, v8\nv_bfe_u32 v14, {vLane}, 4, 1\nv_lshl_add_u32 v8, v14, 4, v8\ns_lshl_b32 {sT0}, s3, 9\nv_add_u32 {vRB}, {sT0}, v8")
    if o["pairl"] == 2:
        a(f"v_lshrrev_b32 v8, 3, {vLane}\nv_mul_u32_u24 v8, {STP}, v8\nv_and_b32 v14, 7, {vLane}\nv_lshl_add_u32 {vOW}, v14, 4, v8")
        a(f"v_lshrrev_b32 v8, 3, {vLane}\nv_lshlrev_b32 v8, 6, v8\nv_bfe_u32 v14, {vLane}, 2, 1\nv_lshl_add_u32 v8, v14, 9, v8\nv_and_b32 v14, 3, {vLane}\nv_lshl_add_u32 {vLR}, v14, 4, v8")
    elif o["pairl"]:
        a(f"v_bfe_u32 v8, {vLane}, 2, 3\nv_mul_u32_u24 v8, {STP}, v8\nv_lshrrev_b32 v14, 5, {vLane}\nv_lshl_add_u32 v8, v14, 6, v8\nv_and_b32 v14, 3, {vLane}\nv_lshl_add_u32 {vOW}, v14, 4, v8")
    else:
        a(f"v_lshrrev_b32 v8, 2, {vLane}\nv_mul_u32_u24 v8, {STS}, v8\nv_and_b32 v14, 3, {vLane}\nv_lshl_add_u32 {vOW}, v14, 4, v8")
    a(f"s_lshr_b32 {sT0}, s3, 1\ns_lshl_b32 {sT0}, {sT0}, 2\nv_mov_b32 {vH1}, {sT0}")
    a(f"s_add_u32 {sT0}, s74, {WS_H1}")
    def early_w():
        wl4(1)
        if o["adw2"]: wl4(2)
    poll([ldx4(G0, vLin, sT0), ldx4(G0+4, vLin, sT0, 1024)], (R8, sTag8, "0xff"), o["d1"], early=early_w if o["adapt"] else None,
         mid=(lambda: wtrans(wsl(0), TW)) if o["wolate"] else None)
    if o["adapt"]: unless_early(lambda: wl4(1), "L_w1e")
    if o["w1late"]: latew(1, o["w1p1"])
    if o["w2late"] and o["w2pos"] == 1: latew(2)
    if o["w2late"]: latew(2, o["w2pre"])
    stamp("p1")
    big_reduce(L_R1)
    barrier()
    a(f"ds_read_b128 {r4(G0)}, {vAO} offset:{L_R1}\ns_waitcnt lgkmcnt(0)")
    dppsum(R4_, 3)
    stamp("h1got")
    pack4(AO, G0)
    mfma8(AO, TW)
    unpack4(G0, AO)
    a(f"v_mul_f32 v{G0}, v{G0}, v{RSK}")
    for q in range(1, 4): a(f"v_fmac_f32 v{G0}, v{G0+q}, v{RSK+q}")
    red4(f"v{G0}", "v8")
    a(f"ds_write_b32 {vH1}, v{G0} offset:{L_SA}")
    sel4(False)
    a(f"ds_write_b128 {vRB}, {r4(Y)} offset:{L_B}")
    barrier()
    def sapub():
        a(f"s_waitcnt lgkmcnt(0)\nv_add_f32 v{G0}, v{G0}, v{G0+1}\nv_add_f32 v{G0+2}, v{G0+2}, v{G0+3}\nv_add_f32 v{Y}, v{G0}, v{G0+2}")
        a(f"v_and_or_b32 v{Y}, v{Y}, {vMask}, {sTag8}\nv_mov_b32 v{Y+1}, {sTag8}")
        pub2(WS_SA)
        a("s_mov_b64 exec, -1")
    a(f"s_add_u32 s78, s75, {WS_H2}")
    cu_reduce_pub(L_B, "s78", "L_nob", sapub)
    stamp("h2pub")
    if o["w1late"]: latew(1)
    if o["w2late"]: latew(2, o["w2p2"])
    for r in range(o["xh"]):
        xb = 0x400000 + r * 0x50000
        a(f"s_cmp_lg_u32 s3, 0\ns_cbranch_scc1 L_x{r}a")
        for q in range(4): a(f"v_mov_b32 v{ACC+16+q}, {sTag8}")
        a(f"s_add_u32 {sT0}, s75, {xb}\nbuffer_store_dwordx4 {r4(ACC+16)}, {vOW}, {sWS}, {sT0} offen sc1")
        a.label(f"L_x{r}a")
        a(f"s_cmp_ge_u32 s3, 4\ns_cbranch_scc1 L_x{r}b\ns_add_u32 {sT0}, s76, {xb}")
        st_, o["stamps"] = o["stamps"], 0
        poll([ldx4(G0, vGS, sT0)], (R4_, sTag8, "0xff"), o["d2"])
        o["stamps"] = st_
        a.label(f"L_x{r}b")
        barrier()
    tr1 = lambda: wtrans(wsl(1), TW)
    a("s_cmp_ge_u32 s3, 4\ns_cbranch_scc1 L_g2s")
    a(f"s_add_u32 {sT0}, s76, {WS_H2}")
    if o["sarid"]:
        poll([ldx4(G0, vGS, sT0)], (R4_[:3], sTag8, "0xff"), o["d2"], mid=tr1)
        b, t, u = G0, G0 + 4, G0 + 5
        dp = "row_mask:0xf bank_mask:0xf"
        a(f"v_and_b32 v{t}, 0xff, v{b+3}\nv_lshlrev_b32 v{t}, {vSh}, v{t}")
        strip(R4_)
        a(f"v_or_b32_dpp v{t}, v{t}, v{t} quad_perm:[1,0,3,2] {dp}")
        a(f"v_permlane32_swap_b32 v{b}, v{b+1}\nv_permlane32_swap_b32 v{b+2}, v{b+3}")
        a(f"v_or_b32_dpp v{t}, v{t}, v{t} quad_perm:[2,3,0,1] {dp}")
        a(f"v_add_f32 v{b}, v{b}, v{b+1}\nv_add_f32 v{b+2}, v{b+2}, v{b+3}")
        a(f"v_add_f32_dpp v{t}, v{t}, v{t} row_ror:4 {dp}")
        a(f"s_lshl_b32 {sT0}, s3, 2\nv_mov_b32 v8, {sT0}")
        a(f"v_permlane16_swap_b32 v{b}, v{b+2}")
        a(f"v_add_f32_dpp v{t}, v{t}, v{t} row_ror:8 {dp}")
        a(f"v_add_f32 v{b}, v{b}, v{b+2}\nv_mov_b32 v{u}, v{t}")
        a(f"v_add_f32_dpp v{b}, v{b}, v{b} row_ror:4 {dp}")
        a(f"v_permlane16_swap_b32 v{u}, v{t}")
        a(f"v_add_f32 v{t}, v{t}, v{u}")
        a(f"v_add_f32_dpp v{b}, v{b}, v{b} row_ror:8 {dp}")
        a(f"v_mov_b32 v{u}, v{t}")
        a(f"ds_write_b32 {vRW}, v{b} offset:{L_R2}")
        a(f"v_permlane32_swap_b32 v{u}, v{t}\nv_add_f32 v{t}, v{t}, v{u}")
        a(f"ds_write_b32 v8, v{t} offset:{L_M2}")
        a("s_branch L_g2")
        a.label("L_g2s")
        a("s_waitcnt vmcnt(0)")
        tr1()
        a.label("L_g2")
        stamp("p2")
        if o["w2late"] and o["w2pos"] == 0: latew(2, o["w2p3"])
        barrier()
        a(f"v_mov_b32 v8, 0\nds_read_b128 {r4(G0+4)}, v8 offset:{L_M2}\nds_read_b128 {r4(G0)}, {vA4} offset:{L_R2}\nv_mov_b32 v14, {sMX}\ns_waitcnt lgkmcnt(1)")
        a(f"v_add_f32 v{G0+4}, v{G0+4}, v{G0+5}\nv_add_f32 v{G0+6}, v{G0+6}, v{G0+7}\nv_add_f32 v{G0+4}, v{G0+4}, v{G0+6}\nv_fmac_f32 v14, {f32(1/1024)}, v{G0+4}")
        bf16r("v14", "v14")
        a("s_waitcnt lgkmcnt(0)")
        dppsum(R4_, 2)
    else:
        poll([ldx4(G0, vGS, sT0)], (R4_, sTag8, "0xff"), o["d2"], mid=tr1)
        strip(R4_)
        q16(G0, L_R2)
        a("s_branch L_g2")
        a.label("L_g2s")
        a(f"s_cmp_eq_u32 s3, {4 if not o['hack'] & 1 else 9}\ns_cbranch_scc1 L_g2m\ns_waitcnt vmcnt(0)")
        tr1()
        a("s_branch L_g2")
        a.label("L_g2m")
        a(f"s_add_u32 {sT0}, s77, {WS_SA}")
        poll([ldx4(G0, vLin, sT0)], ([G0, G0+1], sTag8, "0xff", G0+2), o["d2"], mid=tr1)
        strip([G0])
        red64("v_add_f32", f"v{G0}", "v8")
        a(f"v_mov_b32 v8, {sMX}\nv_fmac_f32 v8, {f32(1/1024)}, v{G0}")
        bf16r("v8", "v8")
        a(f"v_mov_b32 v14, 0\nds_write_b32 v14, v8 offset:{L_M}")
        a.label("L_g2")
        stamp("p2")
        if o["adapt"] and o["adw2"]: unless_early(lambda: wl4(2), "L_w2e")
        if o["w2late"] and o["w2pos"] == 0: latew(2, o["w2p3"])
        barrier()
        a(f"v_mov_b32 v8, 0\nds_read_b128 {r4(G0)}, {vA4} offset:{L_R2}\nds_read_b32 v14, v8 offset:{L_M}\ns_waitcnt lgkmcnt(1)")
        dppsum(R4_, 2)
    stamp("h2got")
    pack4(AO, G0); unpack4(G0, AO)
    for q in range(4): a(f"v_add_f32 v{G0+q}, v{G0+q}, v{HK+q}")
    pack4(AO, G0); unpack4(HK, AO)
    a("s_waitcnt lgkmcnt(0)")
    for q in range(4): a(f"v_sub_f32 v{G0+q}, v{HK+q}, v14")
    a("s_cmp_eq_u32 s3, 7\ns_cbranch_scc1 L_stat")
    pack4(AO, G0)
    mfma8(AO, TW)
    sel4(True)
    a("s_mov_b32 exec_hi, 0")
    a(f"buffer_store_dwordx4 {r4(Y)}, {vPub4}, {sWS}, s73 offen" + (" sc1" if o["hack"] & 12 != 4 else ""))
    a("s_branch L_cd")
    a.label("L_stat")
    a(f"v_add_f32 v{Y}, v{G0}, v{G0+1}\nv_add_f32 v8, v{G0+2}, v{G0+3}\nv_mul_f32 v{Y+1}, v{G0}, v{G0}\nv_add_f32 v{Y}, v{Y}, v8")
    for q in range(1, 4): a(f"v_fmac_f32 v{Y+1}, v{G0+q}, v{G0+q}")
    red4(f"v{Y}", "v8"); red4(f"v{Y+1}", "v14")
    a(f"v_and_or_b32 v{Y}, v{Y}, {vMask}, {sTag8}\nv_and_or_b32 v{Y+1}, v{Y+1}, {vMask}, {sTag8}")
    pub2(WS_ST)
    a(f"s_cmp_lg_u32 s2, 0\ns_cbranch_scc1 L_cd")
    a(f"s_mov_b64 exec, 1\nbuffer_store_dword v{Y+2}, v8, {sWS}, 0 offen offset:{WS_EPOCH} sc1")
    if o["stamps"] == 3: a(f"v_xor_b32 v14, 0x5a5a1234, v{Y+2}\nbuffer_store_dword v14, v8, {sWS}, 0 offen offset:{WS_EPOCH+4} sc1")
    a.label("L_cd")
    a("s_mov_b64 exec, -1")
    if o["w2late"]: latew(2)
    stamp("h4pub")
    a(f"s_cmp_ge_u32 {sA}, 56\ns_cbranch_scc1 L_nod")
    a(f"s_add_u32 {sT0}, s74, {WS_H4}")
    tr2 = lambda: wtrans(wsl(2), TW)
    a(f"s_cmp_eq_u32 s3, {7 if not o['hack'] & 2 else 9}\ns_cbranch_scc1 L_g4s")
    poll([ldx4(G0, vLin, sT0), ldx4(G0+4, vLin, sT0, 1024)], (R8, sTag8, "0xff"), o["d4"], mid=tr2)
    big_reduce(L_R4)
    a("s_branch L_g4")
    a.label("L_g4s")
    a(f"s_add_u32 {sT1}, s77, {WS_ST}")
    poll([ldx4(G0, vLin, sT0), ldx4(G0+4, vLin, sT0, 1024), ldx4(Y, vLin, sT1)], (R8 + [Y, Y+1], sTag8, "0xff", Y+2), o["d4"], mid=tr2)
    big_reduce(L_R4)
    strip([Y, Y+1])
    a(f"v_permlane32_swap_b32 v{Y}, v{Y+1}\nv_add_f32 v{G0}, v{Y}, v{Y+1}")
    a(f"v_mov_b32 v8, v{G0}\nv_permlane16_swap_b32 v8, v{G0}\nv_add_f32 v{G0}, v{G0}, v8")
    for k in (8, 4, 2, 1): a(f"v_add_f32_dpp v{G0}, v{G0}, v{G0} row_ror:{k} row_mask:0xf bank_mask:0xf")
    a(f"v_mul_f32 v{G0}, {f32(1/1024)}, v{G0}\nv_mov_b32 v8, v{G0}\nv_permlane32_swap_b32 v8, v{G0}")
    vr = f"v{G0}"
    a(f"v_fma_f32 {vr}, -v8, v8, {vr}\nv_max_f32 {vr}, 0, {vr}"); bf16r(vr, vr)
    a(f"v_add_f32 {vr}, {f32(1e-5)}, {vr}"); bf16r(vr, vr)
    a(f"v_sqrt_f32 {vr}, {vr}"); bf16r(vr, vr)
    a(f"v_rcp_f32 {vr}, {vr}\nv_mov_b32 v8, 0\nds_write_b32 v8, {vr} offset:{L_RI}")
    a.label("L_g4")
    stamp("p4")
    barrier()
    a(f"v_mov_b32 v8, 0\nds_read_b128 {r4(G0)}, {vAO} offset:{L_R4}\nds_read_b32 v14, v8 offset:{L_RI}\ns_waitcnt lgkmcnt(1)")
    dppsum(R4_, 3)
    a("s_waitcnt lgkmcnt(0)")
    stamp("h4got")
    for q in range(4): a(f"v_mul_f32 v{G0+q}, v{G0+q}, v14")
    pack4(AO, G0); unpack4(G0, AO)
    for q in range(4): a(f"v_mul_f32 v{G0+4+q}, {sL2E}, v{G0+q}")
    for q in range(4): a(f"v_exp_f32 v{G0+4+q}, -v{G0+4+q}")
    for q in range(4): a(f"v_add_f32 v{G0+4+q}, 1.0, v{G0+4+q}")
    for q in range(4): a(f"v_rcp_f32 v{G0+4+q}, v{G0+4+q}")
    for q in range(4): a(f"v_mul_f32 v{G0+q}, v{G0+q}, v{G0+4+q}")
    pack4(AO, G0)
    mfma8(AO, TW)
    sel4(False)
    a(f"ds_write_b128 {vRB}, {r4(Y)} offset:{L_D}")
    barrier()
    a(f"s_add_u32 s78, s75, {WS_H5}")
    cu_reduce_pub(L_D, "s78", "L_nod")
    stamp("h5pub")
    a(f"s_cmp_lg_u32 {sB}, 0\ns_cbranch_scc1 L_fin")
    a("s_cmp_ge_u32 s3, 4\ns_cbranch_scc1 L_g5")
    for q in range(4): a(f"v_mov_b32 v{G0+q}, 0")
    a(f"s_add_u32 {sT0}, s76, {WS_H5}\ns_cmp_eq_u32 s3, 3\ns_cselect_b32 exec_hi, 0, -1")
    poll([ldx4(G0, vGS, sT0)], (R4_, sTag8, "0xff"), o["d5"])
    strip(R4_)
    q16(G0, L_R5)
    a.label("L_g5")
    stamp("p5")
    barrier()
    a("s_cmp_lg_u32 s3, 0\ns_cbranch_scc1 L_fin")
    a(f"ds_read_b128 {r4(G0)}, {vA4} offset:{L_R5}\nv_lshrrev_b32 v8, 4, {vLane}\nv_lshlrev_b32 v8, 3, v8\ns_lshl_b32 {sT0}, {sA}, 5\ns_waitcnt lgkmcnt(0)")
    dppsum(R4_, 2)
    pack4(AO, G0); unpack4(G0, AO)
    for q in range(4): a(f"v_add_f32 v{G0+q}, v{G0+q}, v{HK+q}")
    pack4(AO, G0)
    a("s_mov_b32 exec_lo, 0x10001\ns_mov_b32 exec_hi, 0x10001")
    a(f"buffer_store_dwordx2 {r2(AO)}, v8, {sOUT}, {sT0} offen" + ["", " sc1", " sc0 sc1", " nt"][o["outpol"]])
    a("s_mov_b64 exec, -1")
    a.label("L_fin")
    if o["stamps"]:
        stamp("end")
        a(f"s_lshl_b32 {sT0}, s2, 3\ns_add_u32 {sT0}, {sT0}, s3\ns_lshl_b32 {sT0}, {sT0}, 7\ns_add_u32 {sT0}, {sT0}, {WS_DBG}")
        a(f"v_lshlrev_b32 v8, 2, {vLane}\ns_mov_b32 exec_hi, 0")
        a(f"buffer_store_dword {vStamp}, v8, {sWS}, {sT0} offen")
        if o["stamps"] == 3:
            a("s_cmp_eq_u32 s97, 0x5a5a1234\ns_cbranch_scc1 L_end")
            a(f"s_or_b32 {sT0}, s2, s3\ns_cmp_lg_u32 {sT0}, 0\ns_cbranch_scc1 L_end")
            a(f"v_readlane_b32 {sT0}, {vStamp}, 0\nv_readlane_b32 {sT1}, {vStamp}, {nst[0]-1}\ns_nop 3\ns_sub_u32 {sT1}, {sT1}, {sT0}\ns_cmp_lt_u32 {sT1}, {o['thr']}\ns_cbranch_scc1 L_end")
            a(f"v_subrev_u32 v9, {sT0}, {vStamp}\nv_cvt_f32_u32 v9, v9\nv_mul_f32 v9, {f32(0.04)}, v9\nv_rndne_f32 v9, v9\nv_cvt_pk_bf16_f32 v9, v9, v9")
            lanes = o.get("lanes", [3, 4, 5, 7, 9, 12, 14, 16])
            a("s_waitcnt vmcnt(0)")
            for n, ln in enumerate(lanes):
                a(f"v_mov_b32 v8, {2*n}\ns_mov_b32 exec_lo, {1 << ln}\nv_mov_b32 v8, {2*n}\nbuffer_store_short v9, v8, {sOUT}, 0 offen\ns_nop 1")
        if o["stamps"] == 4:
            a(f"s_or_b32 {sT0}, s2, s3\ns_cmp_lg_u32 {sT0}, 0\ns_cbranch_scc1 L_end")
            a(f"v_readlane_b32 {sT0}, {vStamp}, 0\nv_readlane_b32 {sT1}, {vStamp}, {o['sidx']}\nv_readlane_b32 s96, {vStamp}, {nst[0]-1}\ns_nop 3")
            a(f"s_sub_u32 {sT1}, {sT1}, {sT0}\ns_mul_i32 {sT1}, {sT1}, {o['smul']}\ns_min_u32 {sT1}, {sT1}, 20000")
            a.label("L_str")
            a(f"s_memrealtime s[98:99]\ns_waitcnt lgkmcnt(0)\ns_sub_u32 {sT0}, s98, s96\ns_cmp_lt_u32 {sT0}, {sT1}\ns_cbranch_scc1 L_str")
        if o["stamps"] == 2:
            a(f"s_or_b32 {sT0}, s2, s3\ns_cmp_lg_u32 {sT0}, 0\ns_cbranch_scc1 L_end")
            a(f"v_readlane_b32 {sT0}, {vStamp}, 0\nv_subrev_u32 v9, {sT0}, {vStamp}\nv_subrev_u32 v8, 4, v8\ns_mov_b32 exec_lo, 0x1fffe")
            a(f"buffer_store_dword v9, v8, {sDBG}, 0 offen")
    a.label("L_end")
    a("s_endpgm")
    a.raw(f'''.section .rodata,"a"
.p2align 6
.amdhsa_kernel {KN}
  .amdhsa_next_free_vgpr 256
  .amdhsa_next_free_sgpr 102
  .amdhsa_accum_offset 256
  .amdhsa_group_segment_fixed_size 0
  .amdhsa_kernarg_size 88
  .amdhsa_user_sgpr_count 2
  .amdhsa_user_sgpr_kernarg_segment_ptr 1
  .amdhsa_system_sgpr_workgroup_id_x 1
.end_amdhsa_kernel''')
    return a.text()

if __name__ == "__main__":
    kw = {}
    out = sys.argv[1]
    for x in sys.argv[2:]:
        k, v = x.split("="); kw[k] = int(v)
    open(out, "w").write(gen(**kw))
```

```python
import struct, sys
sys.path.insert(0, "work")
from asmlib import Asm
KN = "sequential_preLN__gqa_block_cached__dense_activation_silu__decode_kernel"
def f32(x): return "0x%08x" % struct.unpack("<I", struct.pack("<f", x))[0]

WS_EPOCH = 0
WS_QP = 0x10000
WS_ML = 0x40000
WS_ST = 0x48000
WS_SA = 0x4C000
WS_RS = 0x50000
WS_H2 = 0x70000
WS_H1 = 0xC0000
WS_H4 = 0x200000
WS_H5 = 0x300000
WS_DBG = 0x800000
L_QRED, L_QF, L_ML, L_MLG = 0, 4096, 6144, 6656
L_R2, L_SA, L_M, L_RI, L_R5, L_R1, L_R4, L_B, L_O = 6912, 7168, 7184, 7188, 7424, 8192, 10240, 12288, 16384
L_D = L_O
L_M2 = 7200
LDS_BYTES = 49152

DEF = dict(pad=1, xa=1, thr=3600, qbar=1, depth=6, qload_pos=22, qproc_pos=29, ml_pos=16, stamps=0,
           d1=16, d2=16, d4=16, d5=16, back=0, w1late=1, w2late=1, w2pos=0, w1pre=4, w2pre=0, w2p0=0, xh=0, gsh=0, adapt=0, adw2=1, wolate=0, x1=1, x2=1, x3=1, x4=1, x5=1, dl=6, dlpos=20, y0=0, y1=0, y2=0, y3=0, w2p2=0, w2p3=0, w1p1=4, qe=8, qmap=0, ob0=0, ob1=0, obn=1, outpol=0, hack=0, sarid=1, pairl=0, pads=128, lpad=16, owc=1, sidx=0, smul=1, one=2, w2s=1, w1s=0)

def gen(**kw):
    o = dict(DEF); o.update(kw)
    D = o["depth"]
    pad = o["pad"]
    STB, STS = 16384 + 256 * pad, 4096 + 128 * pad
    a = Asm()
    a.raw(open("sequential_preLN__gqa_block_cached__dense_activation_silu__decode.s.ref").read().split("; Override")[0].rstrip())
    a.raw(f"; @launch grid=(256,1,1) block=(512,1,1) lds={LDS_BYTES}")
    a.raw('.amdgcn_target "amdgcn-amd-amdhsa--gfx950"\n.text')
    a.raw(f".globl {KN}\n.p2align 8\n.type {KN},@function\n{KN}:")
    sK, sV, sWS, sX, sWQ, sWO, sW1, sW2, sOUT, sDBG = [f"s[{b}:{b+3}]" for b in (8, 12, 16, 20, 24, 28, 32, 36, 40, 44)]
    sG, sS, sT0, sT1 = "s4", "s5", "s6", "s7"
    sKo, sVo = "s49", "s50"
    sTag8, sTag16, sEp = "s51", "s52", "s53"
    sPL, sPH, sHI, sSC, sL2E, s80 = "s54", "s55", "s56", "s57", "s58", "s59"
    sM4 = "s[60:61]"
    sCnt = "s62"; sT2 = "s63"; sTag2 = "s48"; sA = "s90"; sB = "s91"; sMX = "s92"
    vLane, vKoff, vLin, vMask = "v1", "v2", "v3", "v4"
    vMw, vXr, vH = "v5", "v6", "v7"
    vt = [f"v{i}" for i in range(8, 15)]
    vStamp = "v15"
    S0 = 16
    ACC = 32
    SLOT = 64
    PT = 240
    def slot(i): return SLOT + 4 * i
    def r4(b): return f"v[{b}:{b+3}]"
    def r2(b): return f"v[{b}:{b+1}]"
    nst = [0]
    def stamp(name):
        if not o["stamps"] or (o["hack"] & 32 and name[0] == "p"): return
        a("s_memrealtime s[98:99]\ns_waitcnt lgkmcnt(0)")
        a(f"v_writelane_b32 {vStamp}, s98, {nst[0]}")
        nst[0] += 1
    def bf16r(d, s):
        a(f"v_cvt_pk_bf16_f32 {d}, {s}, {s}\nv_lshlrev_b32 {d}, 16, {d}")
    def red64(op, v, t):
        a(f"v_mov_b32 {t}, {v}\nv_permlane32_swap_b32 {t}, {v}\n{op} {v}, {v}, {t}")
        a(f"v_mov_b32 {t}, {v}\nv_permlane16_swap_b32 {t}, {v}\n{op} {v}, {v}, {t}")
        for k in (8, 4, 2, 1):
            a(f"{op}_dpp {v}, {v}, {v} row_ror:{k} row_mask:0xf bank_mask:0xf")
    def red_rows(op, v, t):
        a(f"v_mov_b32 {t}, {v}\nv_permlane32_swap_b32 {t}, {v}\n{op} {v}, {v}, {t}")
        a(f"v_mov_b32 {t}, {v}\nv_permlane16_swap_b32 {t}, {v}\n{op} {v}, {v}, {t}")
        a(f"{op}_dpp {v}, {v}, {v} row_ror:8 row_mask:0xf bank_mask:0xf")
    def ln_stats(b, vm, vr, t0, t1):
        a(f"v_add_f32 {t0}, v{b}, v{b+1}")
        for i in range(2, 16): a(f"v_add_f32 {t0}, {t0}, v{b+i}")
        red64("v_add_f32", t0, t1)
        a(f"v_mul_f32 {t0}, {f32(1/1024)}, {t0}")
        for i in range(16): a(f"v_sub_f32 v{b+i}, v{b+i}, {t0}")
        a(f"v_mul_f32 {vr}, v{b}, v{b}")
        for i in range(1, 16): a(f"v_fmac_f32 {vr}, v{b+i}, v{b+i}")
        red64("v_add_f32", vr, t1)
        bf16r(vm, t0)
        a(f"v_mul_f32 {vr}, {f32(1/1024)}, {vr}")
        bf16r(vr, vr)
        a(f"v_add_f32 {vr}, {f32(1e-5)}, {vr}")
        bf16r(vr, vr)
        a(f"v_sqrt_f32 {vr}, {vr}")
        bf16r(vr, vr)
        a(f"v_rcp_f32 {vr}, {vr}")
    def ln_apply(h, A, vm, vr):
        for i in range(4): a(f"v_sub_f32 v{h+i}, v{h+i}, {vm}")
        a(f"v_cvt_pk_bf16_f32 v{A}, v{h}, v{h+1}\nv_cvt_pk_bf16_f32 v{A+1}, v{h+2}, v{h+3}")
        a(f"v_lshlrev_b32 v{h}, 16, v{A}\nv_and_b32 v{h+1}, {sHI}, v{A}\nv_lshlrev_b32 v{h+2}, 16, v{A+1}\nv_and_b32 v{h+3}, {sHI}, v{A+1}")
        for i in range(4): a(f"v_mul_f32 v{h+i}, v{h+i}, {vr}")
        a(f"v_cvt_pk_bf16_f32 v{A}, v{h}, v{h+1}\nv_cvt_pk_bf16_f32 v{A+1}, v{h+2}, v{h+3}")
    def wtrans(src, dst):
        for t in range(8):
            for j in range(2):
                a(f"v_perm_b32 v{dst+2*t+j}, v{src+4*(2*j+1)+(t>>1)}, v{src+4*(2*j)+(t>>1)}, {sPH if t & 1 else sPL}")
    def gemv(A, T, Dr, Y, tag=True):
        for t in range(8):
            a(f"v_mfma_f32_16x16x16_bf16 {r4(Dr+4*t)}, {r2(A)}, {r2(T+2*t)}, 0")
        for q in range(4):
            a(f"v_cndmask_b32 v{Y+q}, v{Dr+4*q}, v{Dr+4*(q+4)}, {sM4}")
        if tag:
            for q in range(4): a(f"v_and_or_b32 v{Y+q}, v{Y+q}, {vMask}, {sTag8}")
    lab = [0]; npoll = [0]; nob = [0]
    def pace(d):
        if o["ob0"] <= a.nvm < o["ob1"] and a.nvm - a.done >= d:
            a.pace(d + o["obn"])
            nob[0] += 1
            a(f"s_bitcmp1_b32 s2, 0\ns_cbranch_scc1 L_ob{nob[0]}\ns_waitcnt vmcnt({d-1})")
            a.label(f"L_ob{nob[0]}")
        else: a.pace(d)
    def red4(v, t):
        a(f"v_mov_b32 {t}, {v}\nv_permlane32_swap_b32 {t}, {v}\nv_add_f32 {v}, {v}, {t}")
        a(f"v_mov_b32 {t}, {v}\nv_permlane16_swap_b32 {t}, {v}\nv_add_f32 {v}, {v}, {t}")
    def poll(loads, checks, delay=0, first=True, mid=None, early=None):
        n = lab[0]; lab[0] += 1
        a(f"s_mov_b32 {sCnt}, 0")
        if first:
            if delay: a(f"s_sleep {delay}")
            for l in loads: a(l)
            if mid:
                a(f"s_waitcnt vmcnt({len(loads)})"); mid()
            a("s_waitcnt vmcnt(0)")
        a.label(f"L_pollc{n}")
        check(*checks)
        a(f"s_mov_b64 exec, vcc\ns_cbranch_execz L_polld{n}")
        if early:
            a(f"s_cmp_lg_u32 {sCnt}, 0\ns_cbranch_scc1 L_polle{n}\ns_bcnt1_i32_b64 {sT2}, vcc\ns_cmp_lt_u32 {sT2}, {o['adapt']}\ns_cbranch_scc1 L_polle{n}")
            a("s_mov_b64 exec, -1\ns_mov_b32 s93, 1")
            early()
            a("s_mov_b64 exec, vcc")
            a.label(f"L_polle{n}")
        a(f"s_add_u32 {sCnt}, {sCnt}, 1\ns_cmp_gt_u32 {sCnt}, 0x80000\ns_cbranch_scc1 L_end")
        if o["back"]: a(f"s_sleep {o['back']}")
        for l in loads: a(l)
        a(f"s_waitcnt vmcnt(0)\ns_branch L_pollc{n}")
        a.label(f"L_polld{n}")
        a("s_mov_b64 exec, -1")
        if o["stamps"] == 1:
            a(f"s_add_u32 {sCnt}, {sCnt}, 1\nv_writelane_b32 {vStamp}, {sCnt}, {24 + npoll[0]}"); npoll[0] += 1
    def check(regs, tagreg, maskc, full=None):
        c = vt[6]
        a(f"v_xor_b32 {c}, {tagreg}, v{regs[0]}")
        for r in regs[1:]: a(f"v_bitop3_b32 {c}, v{r}, {tagreg}, {c} bitop3:0xbe")
        if len(regs) > 2:
            a(f"v_or_b32_dpp {c}, {c}, {c} quad_perm:[1,0,3,2] row_mask:0xf bank_mask:0xf")
        a(f"v_and_b32 {c}, {maskc}, {c}")
        if full is not None: a(f"v_bitop3_b32 {c}, v{full}, {sEp}, {c} bitop3:0xbe")
        a(f"v_cmp_ne_u32 vcc, 0, {c}")
    def strip(regs):
        for r in regs: a(f"v_and_or_b32 v{r}, v{r}, {vMask}, {s80}")
    def barrier():
        a("s_waitcnt lgkmcnt(0)\ns_barrier")

    a("s_cmp_ge_u32 s2, 0x100\ns_cbranch_scc1 L_end")
    a("s_load_dwordx16 s[64:79], s[0:1], 0\ns_load_dwordx4 s[80:83], s[0:1], 64\ns_load_dwordx2 s[84:85], s[0:1], 80")
    if o["stamps"]: a(f"v_mov_b32 {vStamp}, 0")
    stamp("start")
    if o["stamps"] == 1:
        a(f"s_getreg_b32 s96, hwreg(HW_REG_XCC_ID)\ns_getreg_b32 s97, hwreg(HW_REG_HW_ID)\ns_and_b32 s96, s96, 15\ns_add_u32 s96, s96, 1\nv_writelane_b32 {vStamp}, s96, 23\nv_writelane_b32 {vStamp}, s97, 22")
    a(f"v_and_b32 {vLane}, 63, v0\nv_lshrrev_b32 v8, 6, v0")
    a("v_readfirstlane_b32 s3, v8")
    a(f"v_lshlrev_b32 {vLin}, 4, {vLane}")
    a(f"v_bfe_u32 v8, {vLane}, 1, 1\nv_lshlrev_b32 v8, 10, v8\nv_bfe_u32 v9, {vLane}, 2, 2\nv_lshl_add_u32 v8, v9, 8, v8")
    a(f"v_lshrrev_b32 v9, 4, {vLane}\nv_lshl_add_u32 v8, v9, 5, v8\nv_and_b32 v9, 1, {vLane}\nv_lshl_add_u32 {vKoff}, v9, 4, v8")
    a(f"v_mov_b32 {vMask}, 0xffffff00")
    gsh = o["gsh"]
    if gsh == 0:
        a(f"s_and_b32 {sG}, s2, 3\ns_lshr_b32 {sS}, s2, 2")
    else:
        a(f"s_bfe_u32 {sG}, s2, {0x20000 | gsh}\ns_lshr_b32 {sS}, s2, {gsh+2}\ns_lshl_b32 {sS}, {sS}, {gsh}\ns_and_b32 {sT0}, s2, {(1<<gsh)-1}\ns_or_b32 {sS}, {sS}, {sT0}")
    if o["xa"]:
        a(f"s_lshr_b32 {sA}, s2, 5\ns_lshl_b32 {sA}, {sA}, 3\ns_and_b32 {sB}, s2, 7\ns_or_b32 {sA}, {sA}, {sB}\ns_bfe_u32 {sB}, s2, 0x20003")
    else:
        a(f"s_mov_b32 {sA}, {sS}\ns_mov_b32 {sB}, {sG}")
    a(f"s_mov_b32 {sPL}, 0x05040100\ns_mov_b32 {sPH}, 0x07060302\ns_mov_b32 {sHI}, 0xffff0000")
    a(f"s_mov_b32 {sSC}, {f32(128 ** -0.5)}\ns_mov_b32 {sL2E}, {f32(1.4426950408889634)}\ns_mov_b32 {s80}, 0x80")
    a(f"s_mov_b32 s60, 0xffff0000\ns_mov_b32 s61, 0xffff0000")
    a(f"s_lshl_b32 {sT0}, {sS}, 3\ns_add_u32 {sT0}, {sT0}, s3\ns_lshl_b32 {sT0}, {sT0}, 12\ns_lshl_b32 {sT1}, {sG}, 24\ns_add_u32 {sKo}, {sT0}, {sT1}\ns_mov_b32 {sVo}, {sKo}")
    a(f"v_lshrrev_b32 v9, 4, {vLane}\nv_and_b32 v8, 15, {vLane}\nv_lshlrev_b32 v8, 4, v8\nv_lshl_add_u32 v10, v9, 15, v8")
    a(f"v_lshlrev_b32 v11, 3, v9\nv_lshlrev_b32 v12, 5, {vLane}")
    a("s_waitcnt lgkmcnt(0)")
    if o["hack"] & 16: stamp("karg")
    def srd(base, p, size):
        a(f"s_mov_b32 s{base}, s{p}\ns_and_b32 s{base+1}, s{p+1}, 0xffff\ns_mov_b32 s{base+2}, {size}\ns_mov_b32 s{base+3}, 0x20000")
    srd(20, 64, 2048); srd(24, 70, 8 << 20); srd(8, 66, 64 << 20)
    XR = PT
    ix0 = a.vm(f"buffer_load_dwordx4 {r4(XR)}, v12, {sX}, 0 offen")
    ix1 = a.vm(f"buffer_load_dwordx4 {r4(XR+4)}, v12, {sX}, 0 offen offset:16")
    E = o["qe"]
    qm = o["qmap"]
    if E == 8:
        a(f"s_lshr_b32 s95, s2, {qm+5}\ns_lshl_b32 s95, s95, {qm}\ns_and_b32 {sT0}, s2, {(1<<qm)-1}\ns_or_b32 s95, s95, {sT0}")
        a(f"s_lshl_b32 {sT0}, s95, 3\ns_add_u32 {sT0}, {sT0}, s3")
        a(f"s_bfe_u32 s94, s2, {0x50000 | qm}\ns_lshl_b32 s94, s94, 8")
    else:
        a(f"s_lshr_b32 s95, s2, 6\ns_lshl_b32 s95, s95, 4\ns_add_u32 s95, s95, s3")
        a(f"s_and_b32 {sT1}, s2, 1\ns_mul_i32 {sT0}, {sT1}, {E}\ns_add_u32 {sT0}, {sT0}, s95")
        a(f"s_mul_i32 {sT1}, {sT1}, s3\ns_cmp_ge_u32 {sT1}, {16-E}\ns_cselect_b32 {sT0}, 64, {sT0}")
        a(f"s_add_u32 s95, s95, 8\ns_and_b32 {sT1}, s2, 1\ns_lshl_b32 {sT1}, {sT1}, 3\ns_add_u32 {sT1}, {sT1}, s3\ns_cmp_ge_u32 {sT1}, {E-8}\ns_cselect_b32 s95, 64, s95")
        a(f"s_bfe_u32 s94, s2, 0x50001\ns_lshl_b32 s94, s94, 8")
    a(f"s_lshl_b32 {sT1}, {sT0}, 5")
    ix2 = a.vm(f"buffer_load_dwordx2 {r2(XR+8)}, v11, {sX}, {sT1} offen")
    if E != 8:
        a(f"s_lshl_b32 {sT1}, s95, 5")
        ix2 = a.vm(f"buffer_load_dwordx2 {r2(XR+10)}, v11, {sX}, {sT1} offen")
    a(f"s_lshl_b32 {sT0}, {sT0}, 17\ns_add_u32 {sT0}, {sT0}, s94")
    for i in range(4):
        iwq = a.vm(f"buffer_load_dwordx4 {r4(slot(32+i))}, v10, {sWQ}, {sT0} offen nt")
        if i < 3: a(f"s_add_u32 {sT0}, {sT0}, 8192")
    if E != 8:
        a(f"s_lshl_b32 {sT0}, s95, 17\ns_add_u32 {sT0}, {sT0}, s94")
        for i in range(4):
            iwq2 = a.vm(f"buffer_load_dwordx4 {r4(slot(36+i))}, v10, {sWQ}, {sT0} offen nt")
            if i < 3: a(f"s_add_u32 {sT0}, {sT0}, 8192")
    kidx = {}
    def kload(k):
        kidx[k] = a.vm(f"buffer_load_dwordx4 {r4(slot(k))}, {vKoff}, {sK}, {sKo} offen offset:{(k%2)*128 + ((k%4)//2)*2048} nt")
        if k % 4 == 3: a(f"s_add_u32 {sKo}, {sKo}, 0x200000")
    K0 = o.get("k0", D)
    if o["qbar"]: a("s_barrier")
    for k in range(K0): kload(k)
    if o["hack"] & 16: stamp("kiss")
    srd(12, 68, 64 << 20); srd(16, 84, 256 << 20); srd(28, 72, 8 << 20); srd(32, 76, 7 << 20); srd(36, 78, 7 << 20); srd(40, 80, 2048); srd(44, 82, 256)
    a(f"s_load_dword {sEp}, s[84:85], {WS_EPOCH}")
    if o["stamps"] == 3: a(f"s_load_dword s97, s[84:85], {WS_EPOCH+4}\ns_waitcnt lgkmcnt(0)\ns_xor_b32 s97, s97, {sEp}")
    a.wait_vm(ix1)
    if o["hack"] & 16: stamp("xgot")
    XF = ACC
    for i in range(8):
        a(f"v_lshlrev_b32 v{XF+2*i}, 16, v{XR+i}\nv_and_b32 v{XF+2*i+1}, {sHI}, v{XR+i}")
    ln_stats(XF, vt[0], vt[1], vt[2], vt[3])
    a(f"v_readfirstlane_b32 {sMX}, {vt[2]}")
    def kmore(n):
        for _ in range(n): kload(len(kidx))
    kmore(o["y0"])
    a.wait_vm(ix2)
    a(f"v_lshlrev_b32 v48, 16, v{XR+8}\nv_and_b32 v49, {sHI}, v{XR+8}\nv_lshlrev_b32 v50, 16, v{XR+9}\nv_and_b32 v51, {sHI}, v{XR+9}")
    ln_apply(48, 52, vt[0], vt[1])
    a(f"v_mov_b32 v16, v52\nv_mov_b32 v17, v53")
    if E != 8:
        a(f"v_lshlrev_b32 v48, 16, v{XR+10}\nv_and_b32 v49, {sHI}, v{XR+10}\nv_lshlrev_b32 v50, 16, v{XR+11}\nv_and_b32 v51, {sHI}, v{XR+11}")
        ln_apply(48, 18, vt[0], vt[1])
    a.wait_vm(iwq)
    stamp("wq")
    kmore(o["y1"])
    wtrans(slot(32), PT)
    if E == 8:
        gemv(16, PT, ACC, 20, tag=False)
    else:
        for t in range(8): a(f"v_mfma_f32_16x16x16_bf16 {r4(ACC+4*t)}, {r2(16)}, {r2(PT+2*t)}, 0")
        a("s_cmp_eq_u32 s95, 64\ns_cbranch_scc1 L_q1")
        a(f"s_waitcnt vmcnt({a.nvm - iwq2 - 1})\ns_nop 4")
        wtrans(slot(36), PT)
        for t in range(8): a(f"v_mfma_f32_16x16x16_bf16 {r4(ACC+4*t)}, {r2(18)}, {r2(PT+2*t)}, {r4(ACC+4*t)}")
        a.label("L_q1")
        for q in range(4): a(f"v_cndmask_b32 v{20+q}, v{ACC+4*q}, v{ACC+4*(q+4)}, {sM4}")
    a(f"v_and_b32 v8, 15, {vLane}\nv_lshlrev_b32 v8, 5, v8\nv_bfe_u32 v9, {vLane}, 4, 1\nv_lshl_add_u32 v8, v9, 4, v8")
    a(f"s_lshl_b32 {sT0}, s3, 9\nv_add_u32 v8, {sT0}, v8")
    a(f"ds_write_b128 v8, {r4(20)} offset:{L_QRED}")
    kmore(o["y2"])
    a(f"s_waitcnt lgkmcnt(0)\ns_add_u32 {sEp}, {sEp}, 1\ns_and_b32 {sTag8}, {sEp}, 0xff\ns_and_b32 {sTag16}, {sEp}, 0xffff\ns_and_b32 {sTag2}, {sEp}, 3")
    a("s_barrier")
    kmore(o["y3"])
    a("s_cmp_lg_u32 s3, 0\ns_cbranch_scc1 L_noq")
    a(f"v_and_b32 v8, 0x1f0, {vLin}")
    for i in range(8): a(f"ds_read_b128 {r4(ACC+4*i)}, v8 offset:{L_QRED + 512*i}")
    a("s_waitcnt lgkmcnt(0)")
    for i in range(1, 8):
        for q in range(4): a(f"v_add_f32 v{ACC+q}, v{ACC+q}, v{ACC+4*i+q}")
    if E == 8:
        a(f"s_lshl_b32 {sT0}, s94, 4\ns_lshl_b32 {sT1}, s95, 9\ns_add_u32 {sT0}, {sT0}, {sT1}\ns_add_u32 {sT0}, {sT0}, {WS_QP}")
    else:
        a(f"s_lshl_b32 {sT0}, s94, 4\ns_lshr_b32 {sT1}, s2, 6\ns_lshl_b32 {sT1}, {sT1}, 10\ns_add_u32 {sT0}, {sT0}, {sT1}\ns_and_b32 {sT1}, s2, 1\ns_lshl_b32 {sT1}, {sT1}, 9\ns_add_u32 {sT0}, {sT0}, {sT1}\ns_add_u32 {sT0}, {sT0}, {WS_QP}")
    a("s_mov_b32 exec_hi, 0")
    for q in range(4): a(f"v_and_b32 v{ACC+q}, -4, v{ACC+q}\nv_or_b32 v{ACC+q}, {sTag2}, v{ACC+q}")
    a(f"buffer_store_dwordx4 {r4(ACC)}, v8, {sWS}, {sT0} offen sc1")
    a("s_mov_b64 exec, -1")
    a.label("L_noq")
    stamp("qpub")
    QL = S0
    for k in range(len(kidx), 32):
        pace(D)
        if o["hack"] & 32 and k in (8, 10, 12, 16, 20): stamp(f"k{k-D}")
        kload(k)
        if k == o["qload_pos"]:
            a(f"s_lshl_b32 {sT0}, {sG}, 3\ns_add_u32 {sT0}, {sT0}, s3\ns_lshl_b32 {sT2}, {sT0}, 12\ns_add_u32 {sT2}, {sT2}, {WS_QP}")
            for i in range(4):
                a.pace(D); iq = a.vm(f"buffer_load_dwordx4 {r4(QL+4*i)}, {vLin}, {sWS}, {sT2} offen offset:{1024*i} sc1")
        if k == o["qproc_pos"]:
            a.wait_vm(iq)
            poll([f"buffer_load_dwordx4 {r4(QL+4*i)}, {vLin}, {sWS}, {sT2} offen offset:{1024*i} sc1" for i in range(4)], (list(range(QL, QL+16)), sTag2, "3"), first=False)
            for q in range(16): a(f"v_and_b32 v{QL+q}, -4, v{QL+q}")
            for q in range(4):
                a(f"v_add_f32 v{QL+q}, v{QL+q}, v{QL+4+q}\nv_add_f32 v{QL+8+q}, v{QL+8+q}, v{QL+12+q}")
            for q in range(4): a(f"v_add_f32 v{QL+q}, v{QL+q}, v{QL+8+q}")
            for q in range(4): a(f"v_mov_b32 v{QL+4+q}, v{QL+q}")
            for q in range(4): a(f"v_permlane32_swap_b32 v{QL+4+q}, v{QL+q}")
            for q in range(4): a(f"v_add_f32 v{QL+q}, v{QL+q}, v{QL+4+q}")
            a(f"v_cvt_pk_bf16_f32 v{QL+8}, v{QL}, v{QL+1}\nv_cvt_pk_bf16_f32 v{QL+9}, v{QL+2}, v{QL+3}")
            a(f"v_and_b32 v8, 31, {vLane}\nv_lshlrev_b32 v8, 3, v8\ns_lshl_b32 {sT0}, s3, 8\nv_add_u32 v8, {sT0}, v8")
            a(f"ds_write_b64 v8, {r2(QL+8)} offset:{L_QF}")
            barrier()
            a(f"v_and_b32 v8, 7, {vLane}\nv_lshlrev_b32 v8, 8, v8\nv_lshrrev_b32 v9, 4, {vLane}\nv_lshl_add_u32 v8, v9, 5, v8\nv_bfe_u32 v9, {vLane}, 3, 1\nv_lshl_add_u32 v8, v9, 4, v8")
            a(f"ds_read_b128 {r4(PT)}, v8 offset:{L_QF}\nds_read_b128 {r4(PT+4)}, v8 offset:{L_QF+128}")
            stamp("qready")
    seq = [("w", n) for n in range(4)] if not o["wolate"] else []
    if not o["w1late"]: seq += [("w", n) for n in range(4, 8)]
    if not o["w2late"]: seq += [("w", n) for n in range(8, 12)]
    seq += [("v", i) for i in range(32)]
    order = list(range(32, 44)) + list(range(32))
    place = {e: order[k] for k, e in enumerate(seq)}
    rest = order[len(seq):]
    for n in range(12):
        if ("w", n) not in place: place[("w", n)] = rest.pop(0)
    if o["wolate"] == 1: seq += [("w", n) for n in range(4)]
    def vslot(i): return place[("v", i)]
    def wsl(m): return slot(place[("w", 4*m)])
    widx = {}
    def wsetup():
        a(f"v_lshrrev_b32 v9, 4, {vLane}\nv_and_b32 v8, 15, {vLane}\nv_lshlrev_b32 v8, 4, v8\nv_lshl_add_u32 v12, v9, 13, v8")
        a(f"v_mul_u32_u24 v9, {4*7168}, v9\nv_add_u32 v13, v9, v8")
        a(f"s_lshl_b32 s64, {sA}, 17\ns_lshr_b32 {sT0}, s3, 1\ns_lshl_b32 {sT0}, {sT0}, 15\ns_add_u32 s64, s64, {sT0}")
        a(f"s_lshl_b32 {sT0}, {sB}, 9\ns_add_u32 s64, s64, {sT0}\ns_and_b32 {sT0}, s3, 1\ns_lshl_b32 {sT0}, {sT0}, 8\ns_add_u32 s64, s64, {sT0}\ns_mov_b32 s66, s64")
        a(f"s_mul_i32 s69, {sB}, 7\ns_add_u32 s69, s69, s3")
        a(f"s_mul_i32 s65, {sA}, {16*7168}\ns_lshl_b32 {sT0}, s69, 8\ns_add_u32 s65, s65, {sT0}")
        a(f"s_cmp_eq_u32 s3, 7\ns_cselect_b32 s65, 0x7000000, s65")
    def wload(n):
        m, i = n // 4, n % 4
        srd_, vo, sb, st = [(sWO, "v12", "s64", 2048), (sW1, "v13", "s65", 7168), (sW2, "v12", "s66", 2048)][m]
        widx[n] = a.vm(f"buffer_load_dwordx4 {r4(slot(place[('w', n)]))}, {vo}, {srd_}, {sb} offen nt")
        if i < 3: a(f"s_add_u32 {sb}, {sb}, {st}")
    vidx = {}
    def vload(i):
        vidx[i] = a.vm(f"buffer_load_dwordx4 {r4(slot(vslot(i)))}, {vLin}, {sV}, {sVo} offen offset:{(i%4)*1024} nt")
        if i % 4 == 3: a(f"s_add_u32 {sVo}, {sVo}, 0x200000")
    wsetup()
    def issue(n):
        for _ in range(n):
            kind, i = seq.pop(0)
            pace(o["dl"] if len(vidx) >= o["dlpos"] else D)
            (vload if kind == "v" else wload)(i)
    def issue_np(n):
        for _ in range(n):
            kind, i = seq.pop(0)
            (vload if kind == "v" else wload)(i)
    issue(D)
    a.wait_vm(kidx[31])
    stamp("kdone")
    a("s_waitcnt lgkmcnt(0)")
    for half in range(2):
        for jj in range(8):
            j = half * 8 + jj
            a(f"v_mfma_f32_16x16x32_bf16 {r4(ACC+4*jj)}, {r4(slot(2*j))}, {r4(PT)}, 0")
        for jj in range(8):
            j = half * 8 + jj
            a(f"v_mfma_f32_16x16x32_bf16 {r4(ACC+4*jj)}, {r4(slot(2*j+1))}, {r4(PT+4)}, {r4(ACC+4*jj)}")
        for jj in range(8):
            j = half * 8 + jj; d = ACC + 4 * jj
            a(f"v_add_f32_dpp v{S0+j}, v{d+1}, v{d} row_ror:8 row_mask:0xf bank_mask:0x3")
        for jj in range(8):
            j = half * 8 + jj; d = ACC + 4 * jj
            a(f"v_add_f32_dpp v{S0+j}, v{d+2}, v{d+3} row_ror:8 row_mask:0xf bank_mask:0xc")
        issue_np(o["x1"] if half == 0 else o["x2"])
    for j in range(0, 16, 2):
        x, y = f"v{S0+j}", f"v{S0+j+1}"
        a(f"v_cvt_pk_bf16_f32 v8, {x}, {y}\nv_lshlrev_b32 {x}, 16, v8\nv_and_b32 {y}, {sHI}, v8")
        a(f"v_mul_f32 {x}, {sSC}, {x}\nv_mul_f32 {y}, {sSC}, {y}")
        a(f"v_cvt_pk_bf16_f32 v8, {x}, {y}\nv_lshlrev_b32 {x}, 16, v8\nv_and_b32 {y}, {sHI}, v8")
    a(f"v_max3_f32 {vMw}, v{S0}, v{S0+1}, v{S0+2}")
    for j in range(3, 15, 2): a(f"v_max3_f32 {vMw}, {vMw}, v{S0+j}, v{S0+j+1}")
    a(f"v_max_f32 {vMw}, {vMw}, v{S0+15}")
    red_rows("v_max_f32", vMw, "v8")
    issue_np(o["x3"])
    for j in range(16): a(f"v_sub_f32 v{S0+j}, v{S0+j}, {vMw}")
    for j in range(16): a(f"v_mul_f32 v{S0+j}, {sL2E}, v{S0+j}")
    for j in range(16): a(f"v_exp_f32 v{S0+j}, v{S0+j}")
    a(f"v_add_f32 v11, v{S0}, v{S0+1}")
    for j in range(2, 16): a(f"v_add_f32 v11, v11, v{S0+j}")
    red_rows("v_add_f32", "v11", "v8")
    a(f"v_mov_b32 v10, {vMw}")
    a(f"v_and_b32 v8, 7, {vLane}\nv_lshlrev_b32 v8, 3, v8\ns_lshl_b32 {sT0}, s3, 6\nv_add_u32 v8, {sT0}, v8")
    a(f"ds_write_b64 v8, v[10:11] offset:{L_ML}")
    issue_np(o["x4"])
    barrier()
    issue_np(o["x5"])
    a("s_cmp_lg_u32 s3, 0\ns_cbranch_scc1 L_noml")
    a(f"v_lshlrev_b32 v8, 3, {vLane}\nds_read_b64 v[10:11], v8 offset:{L_ML}\ns_waitcnt lgkmcnt(0)")
    a("v_mov_b32 v9, v10")
    red_rows("v_max_f32", "v9", "v8")
    a(f"v_sub_f32 v10, v10, v9\nv_mul_f32 v10, {sL2E}, v10\nv_exp_f32 v10, v10\nv_mul_f32 v11, v11, v10")
    red_rows("v_add_f32", "v11", "v8")
    a(f"v_or_b32 v10, {sTag16}, v9\nv_and_or_b32 v11, v11, {vMask}, {sTag8}")
    a(f"v_lshlrev_b32 v8, 9, {vLane}\ns_lshl_b32 {sT0}, {sG}, 12\ns_lshl_b32 {sT1}, {sS}, 3\ns_add_u32 {sT0}, {sT0}, {sT1}\ns_add_u32 {sT0}, {sT0}, {WS_ML}")
    a("s_mov_b64 exec, 0xff")
    a(f"buffer_store_dwordx2 v[10:11], v8, {sWS}, {sT0} offen sc1")
    a("s_mov_b64 exec, -1")
    a.label("L_noml")
    stamp("mlpub")
    def pv(u):
        for dp in range(4):
            tb = PT + 8 * (dp & 1)
            for b in range(2):
                for j in range(4):
                    a(f"v_perm_b32 v{tb+4*b+j}, v{slot(vslot(8*u+2*j+1))+dp}, v{slot(vslot(8*u+2*j))+dp}, {sPH if b else sPL}")
            for b in range(2):
                t = 2 * dp + b
                c = "0" if u == 0 else r4(ACC + 4 * t)
                a(f"v_mfma_f32_16x16x32_bf16 {r4(ACC+4*t)}, {r4(S0+4*u)}, {r4(tb+4*b)}, {c}")
    pvdone = 0; fready = False; iml = None; rsdone = False; irs = None
    Y = 26
    SPARE = slot(vslot(0))
    RSK, XK = SPARE, SPARE + 4
    vA4, vA8 = "v2", "v6"
    a(f"v_lshrrev_b32 v14, 4, {vLane}\nv_lshlrev_b32 v14, 4, v14\nv_and_b32 v8, 3, {vLane}\nv_lshl_add_u32 {vA4}, v8, 6, v14\nv_and_b32 v8, 7, {vLane}\nv_lshl_add_u32 {vA8}, v8, 6, v14")
    a(f"s_lshl_b32 s72, {sA}, 11\ns_lshr_b32 {sT0}, s3, 1\ns_lshl_b32 {sT0}, {sT0}, 9\ns_add_u32 s72, s72, {sT0}\ns_add_u32 s72, s72, {WS_RS}")
    while seq:
        issue(1)
        nv = len(vidx)
        if not o["wolate"] and not rsdone and a.done > widx[3]:
            assert not fready
            a("v_mov_b32 v8, 0x3f803f80")
            for i in range(4): a(f"v_mov_b32 v{ACC+i}, 0")
            for d in range(4):
                for i in range(4): a(f"v_dot2_f32_bf16 v{ACC+i}, v{wsl(0)+4*i+d}, v8, v{ACC+i}")
            for k in (8, 4, 2, 1):
                for i in range(4): a(f"v_add_f32_dpp v{ACC+i}, v{ACC+i}, v{ACC+i} row_ror:{k} row_mask:0xf bank_mask:0xf")
            for i in range(4): a(f"v_and_or_b32 v{ACC+i}, v{ACC+i}, {vMask}, {sTag8}")
            a(f"s_lshl_b32 {sT0}, {sB}, 1\ns_and_b32 {sT1}, s3, 1\ns_add_u32 {sT0}, {sT0}, {sT1}\ns_lshl_b32 {sT0}, {sT0}, 6\ns_add_u32 {sT0}, {sT0}, s72")
            a("s_mov_b32 exec_lo, 0x10001\ns_mov_b32 exec_hi, 0x10001")
            a.pace(D); a.vm(f"buffer_store_dwordx4 {r4(ACC)}, {vA4}, {sWS}, {sT0} offen sc1")
            a("s_mov_b64 exec, -1")
            rsdone = True
        if iml is None and nv > o["ml_pos"]:
            a(f"v_lshlrev_b32 v8, 3, {vLane}\ns_lshl_b32 {sT0}, {sG}, 3\ns_add_u32 {sT0}, {sT0}, s3\ns_lshl_b32 s70, {sT0}, 9\ns_add_u32 s70, s70, {WS_ML}")
            a.pace(D); iml = a.vm(f"buffer_load_dwordx2 v[10:11], v8, {sWS}, s70 offen sc1")
        if iml is not None and not fready and (a.done > iml or not seq):
            a.wait_vm(iml)
            a(f"v_xor_b32 v14, {sTag16}, v10\nv_and_b32 v14, 0xffff, v14\nv_xor_b32 v9, {sTag8}, v11\nv_and_b32 v9, 0xff, v9\nv_or_b32 v14, v14, v9")
            a("v_cmp_ne_u32 vcc, 0, v14\ns_cbranch_vccz L_mlok")
            a(f"s_mov_b32 {sCnt}, 0")
            a.label("L_mlspin")
            a(f"buffer_load_dwordx2 v[10:11], v8, {sWS}, s70 offen sc1\ns_waitcnt vmcnt(0)")
            a(f"s_add_u32 {sCnt}, {sCnt}, 1\ns_cmp_gt_u32 {sCnt}, 0x80000\ns_cbranch_scc1 L_end")
            a(f"v_xor_b32 v14, {sTag16}, v10\nv_and_b32 v14, 0xffff, v14\nv_xor_b32 v9, {sTag8}, v11\nv_and_b32 v9, 0xff, v9\nv_or_b32 v14, v14, v9")
            a("v_cmp_ne_u32 vcc, 0, v14\ns_cbranch_vccnz L_mlspin")
            a.label("L_mlok")
            a(f"v_and_b32 v10, {sHI}, v10\nv_and_or_b32 v11, v11, {vMask}, {s80}\nv_mov_b32 v9, v10")
            red64("v_max_f32", "v9", "v8")
            a(f"v_sub_f32 v10, v10, v9\nv_mul_f32 v10, {sL2E}, v10\nv_exp_f32 v10, v10\nv_mul_f32 v11, v11, v10")
            red64("v_add_f32", "v11", "v8")
            a(f"v_rcp_f32 v11, v11\nv_mov_b32 v10, v9\ns_lshl_b32 {sT0}, s3, 3\nv_mov_b32 v8, {sT0}")
            a(f"ds_write_b64 v8, v[10:11] offset:{L_MLG}")
            barrier()
            a(f"v_and_b32 v8, 7, {vLane}\nv_lshlrev_b32 v8, 3, v8\nds_read_b64 v[10:11], v8 offset:{L_MLG}\ns_waitcnt lgkmcnt(0)")
            a(f"v_sub_f32 v10, {vMw}, v10\nv_mul_f32 v10, {sL2E}, v10\nv_exp_f32 v10, v10\nv_mul_f32 v10, v10, v11")
            a(f"v_bfe_u32 v9, {vLane}, 3, 1\nv_cmp_eq_u32 vcc, 1, v9\nv_mov_b32 v9, 0xffff\nv_mov_b32 v8, {sHI}\nv_cndmask_b32 v9, v9, v8, vcc")
            for j in range(16): a(f"v_mul_f32 v{S0+j}, v{S0+j}, v10")
            for j in range(16): a(f"v_cvt_pk_bf16_f32 v{S0+j}, v{S0+j}, v{S0+j}")
            for j in range(16): a(f"v_and_b32 v{S0+j}, v{S0+j}, v9")
            fready = True
            stamp("fready")
        while fready and pvdone < 4 and (8 * pvdone + 7) in vidx and a.done > vidx[8 * pvdone + 7]:
            pv(pvdone); pvdone += 1
            if pvdone == 2:
                if not o["wolate"]:
                    a.pace(D); irs = a.vm(f"buffer_load_dwordx4 {r4(RSK)}, {vA8}, {sWS}, s72 offen sc1")
                a(f"v_lshrrev_b32 v8, 4, {vLane}\nv_lshlrev_b32 v8, 3, v8\ns_lshl_b32 {sT0}, {sA}, 5")
                a.pace(D); ixr = a.vm(f"buffer_load_dwordx2 {r2(XK)}, v8, {sX}, {sT0} offen")
    vRW, vOW, vH1, vPub4, vRP, vAO, vRB = "v9", "v10", "v11", "v5", "v7", "v30", "v31"
    G0, AO = 16, 24
    HK = SPARE + 8
    vLR = f"v{SPARE+13}" if o["pairl"] == 2 else vLin
    TW = SPARE + 16
    DR = ACC
    def q16(b, lb):
        a(f"v_permlane32_swap_b32 v{b}, v{b+1}\nv_permlane32_swap_b32 v{b+2}, v{b+3}")
        a(f"v_add_f32 v{b}, v{b}, v{b+1}\nv_add_f32 v{b+2}, v{b+2}, v{b+3}")
        a(f"v_permlane16_swap_b32 v{b}, v{b+2}\nv_add_f32 v{b}, v{b}, v{b+2}")
        for k in (4, 8): a(f"v_add_f32_dpp v{b}, v{b}, v{b} row_ror:{k} row_mask:0xf bank_mask:0xf")
        a(f"ds_write_b32 {vRW}, v{b} offset:{lb}")
    def dppsum(regs, n):
        for pat in ("quad_perm:[1,0,3,2]", "quad_perm:[2,3,0,1]", "row_half_mirror")[:n]:
            for r in regs: a(f"v_add_f32_dpp v{r}, v{r}, v{r} {pat} row_mask:0xf bank_mask:0xf")
    def dppsel(regs, n, t):
        pats = ("quad_perm:[1,0,3,2]", "quad_perm:[2,3,0,1]", "row_ror:4")[:n]
        for pat in pats[:-1]:
            for r in regs: a(f"v_add_f32_dpp v{r}, v{r}, v{r} {pat} row_mask:0xf bank_mask:0xf")
        for b, r in enumerate(regs): a(f"v_add_f32_dpp v{t}, v{r}, v{r} {pats[-1]} row_mask:0xf bank_mask:{1 << b}")
    def quadsum(t):
        for pat in ("quad_perm:[1,0,3,2]", "quad_perm:[2,3,0,1]"):
            a(f"v_add_f32_dpp v{t}, v{t}, v{t} {pat} row_mask:0xf bank_mask:0xf")
    def bcast4(d, t):
        for q in range(4): a(f"v_mov_b32_dpp v{d+q}, v{t} row_newbcast:{4*q} row_mask:0xf bank_mask:0xf")
    def unpack4(d, p):
        a(f"v_lshlrev_b32 v{d}, 16, v{p}\nv_and_b32 v{d+1}, {sHI}, v{p}\nv_lshlrev_b32 v{d+2}, 16, v{p+1}\nv_and_b32 v{d+3}, {sHI}, v{p+1}")
    def pack4(p, d):
        a(f"v_cvt_pk_bf16_f32 v{p}, v{d}, v{d+1}\nv_cvt_pk_bf16_f32 v{p+1}, v{d+2}, v{d+3}")
    def ldx4(r, vo, so, off=0): return f"buffer_load_dwordx4 {r4(r)}, {vo}, {sWS}, {so} offen offset:{off} sc1"
    R8 = list(range(G0, G0+8)); R4_ = list(range(G0, G0+4))
    def latew(m, upto=4):
        for n in range(4*m, 4*m+upto):
            if n not in widx: wload(n)
    def wl4(m):
        for n in range(4*m, 4*m+4): wload(n)
    def unless_early(f, lab_):
        a(f"s_cmp_lg_u32 s93, 0\ns_cbranch_scc1 {lab_}"); f(); a.label(lab_)
    def mfma8(A, T):
        for t in range(8): a(f"v_mfma_f32_16x16x16_bf16 {r4(DR+4*t)}, {r2(A)}, {r2(T+2*t)}, 0")
    def sel4(tag):
        for q in range(4): a(f"v_cndmask_b32 v{Y+q}, v{DR+4*q}, v{DR+4*(q+4)}, {sM4}")
        if tag:
            for q in range(4): a(f"v_and_or_b32 v{Y+q}, v{Y+q}, {vMask}, {sTag8}")
    def big_reduce(lb):
        strip(R8)
        for q in range(4): a(f"v_add_f32 v{G0+q}, v{G0+q}, v{G0+4+q}")
        a(f"v_permlane32_swap_b32 v{G0}, v{G0+1}\nv_permlane32_swap_b32 v{G0+2}, v{G0+3}")
        a(f"v_add_f32 v{G0}, v{G0}, v{G0+1}\nv_add_f32 v{G0+2}, v{G0+2}, v{G0+3}\nv_permlane16_swap_b32 v{G0}, v{G0+2}\nv_add_f32 v{G0}, v{G0}, v{G0+2}")
        a(f"ds_write_b32 {vRP}, v{G0} offset:{lb}")
    def cu_reduce_pub(lb, sdst, lab_, extra=None):
        a(f"s_cmp_lg_u32 s3, 0\ns_cbranch_scc1 {lab_}")
        if extra and o["sarid"]:
            a(f"v_mov_b32 v8, 0\nds_read_b128 {r4(G0)}, v8 offset:{L_SA}")
            for i in range(4): a(f"ds_read_b128 {r4(ACC+4*i)}, {vLR} offset:{lb + 1024*i}")
            a(f"s_waitcnt lgkmcnt(4)\nv_add_f32 v{G0}, v{G0}, v{G0+1}\nv_add_f32 v{G0+2}, v{G0+2}, v{G0+3}\nv_add_f32 v{G0}, v{G0}, v{G0+2}\nv_bfe_u32 v{G0}, v{G0}, {vSh}, 8")
            for i in range(1, 4):
                a(f"s_waitcnt lgkmcnt({3 - i})")
                for q in range(4): a(f"v_add_f32 v{ACC+q}, v{ACC+q}, v{ACC+4*i+q}")
            for q in range(3): a(f"v_and_or_b32 v{ACC+q}, v{ACC+q}, {vMask}, {sTag8}")
            a(f"v_and_or_b32 v{ACC+3}, v{ACC+3}, {vMask}, v{G0}")
            a(f"buffer_store_dwordx4 {r4(ACC)}, {vOW}, {sWS}, {sdst} offen sc1")
            a.label(lab_)
            return
        for i in range(4): a(f"ds_read_b128 {r4(ACC+4*i)}, {vLR} offset:{lb + 1024*i}")
        if extra: a(f"v_mov_b32 v8, 0\nds_read_b128 {r4(G0)}, v8 offset:{L_SA}")
        for i in range(1, 4):
            a(f"s_waitcnt lgkmcnt({3 - i + (1 if extra else 0)})")
            for q in range(4): a(f"v_add_f32 v{ACC+q}, v{ACC+q}, v{ACC+4*i+q}")
        for q in range(4): a(f"v_and_or_b32 v{ACC+q}, v{ACC+q}, {vMask}, {sTag8}")
        a(f"buffer_store_dwordx4 {r4(ACC)}, {vOW}, {sWS}, {sdst} offen sc1")
        if extra: extra()
        a.label(lab_)
    def pub2(base):
        a(f"v_mov_b32 v{Y+2}, {sEp}\nv_mov_b32 v{Y+3}, {sEp}")
        a(f"v_lshlrev_b32 v8, 10, {vLane}\ns_lshl_b32 {sT0}, {sB}, 11\ns_lshl_b32 {sT1}, {sA}, 4\ns_add_u32 {sT0}, {sT0}, {sT1}\ns_add_u32 {sT0}, {sT0}, {base}")
        a("s_mov_b64 exec, 3")
        a(f"buffer_store_dwordx4 {r4(Y)}, v8, {sWS}, {sT0} offen sc1")
    a(f"v_bfe_u32 v14, {vLane}, 4, 1\nv_lshlrev_b32 v8, 3, v14\nv_lshrrev_b32 v14, 5, {vLane}\nv_lshl_add_u32 v8, v14, 2, v8")
    vL4 = f"v{SPARE+6}"; RSS = SPARE + 7
    if o["one"] == 2:
        a(f"v_and_b32 v14, 3, {vLane}\nv_lshl_add_u32 {vRW}, v14, 4, v8\nv_lshlrev_b32 {vRW}, 2, {vRW}\ns_lshl_b32 {sT0}, s3, 2\nv_add_u32 {vRW}, {sT0}, {vRW}")
        a(f"v_and_b32 v14, 15, {vLane}\nv_lshl_add_u32 {vRP}, v14, 4, v8\nv_lshlrev_b32 {vRP}, 3, {vRP}\nv_add_u32 {vRP}, {sT0}, {vRP}")
        a(f"v_lshlrev_b32 {vL4}, 2, {vLane}")
    else:
        a(f"v_and_b32 v14, 3, {vLane}\nv_lshl_add_u32 {vRW}, v14, 4, v8\ns_lshl_b32 {sT0}, s3, 6\nv_add_u32 {vRW}, {sT0}, {vRW}")
        a(f"v_and_b32 v14, 15, {vLane}\nv_lshl_add_u32 {vRP}, v14, 4, v8\ns_mul_i32 {sT0}, s3, {256 + o['lpad']}\nv_add_u32 {vRP}, {sT0}, {vRP}")
    if o["owc"]:
        a(f"v_and_b32 v8, 15, {vLane}\nv_lshlrev_b32 v8, 4, v8\nv_lshrrev_b32 v14, 5, {vLane}\nv_lshl_add_u32 v8, v14, 8, v8\nv_bfe_u32 v14, {vLane}, 4, 1\nv_lshl_add_u32 v8, v14, 9, v8")
    else:
        a(f"v_and_b32 v8, 15, {vLane}\nv_lshlrev_b32 v8, 5, v8\nv_lshrrev_b32 v14, 5, {vLane}\nv_lshl_add_u32 v8, v14, 4, v8\nv_bfe_u32 v14, {vLane}, 4, 1\nv_lshl_add_u32 v8, v14, 9, v8")
    a(f"s_lshl_b32 {sT0}, s3, 12\nv_add_u32 {vOW}, {sT0}, v8")
    if o["owc"]:
        a(f"v_lshrrev_b32 v8, 5, {vLane}\nv_lshlrev_b32 v8, 3, v8\nv_bfe_u32 v14, {vLane}, 3, 1\nv_add_u32 v8, v8, v14\nv_mul_u32_u24 v8, {STB}, v8\nv_and_b32 v14, 7, {vLane}\nv_lshl_add_u32 v8, v14, 5, v8\nv_bfe_u32 v14, {vLane}, 4, 1\nv_lshl_add_u32 {vH1}, v14, 4, v8")
    else:
        a(f"v_lshrrev_b32 v8, 5, {vLane}\nv_lshlrev_b32 v8, 3, v8\nv_bfe_u32 v14, {vLane}, 4, 1\nv_add_u32 v8, v8, v14\nv_mul_u32_u24 v8, {STB}, v8\nv_and_b32 v14, 15, {vLane}\nv_lshl_add_u32 {vH1}, v14, 4, v8")
    a(f"s_mul_i32 s71, {sG}, {16*STB}\ns_mul_i32 {sT0}, s3, {2*STB}\ns_add_u32 s71, s71, {sT0}\ns_lshl_b32 {sT0}, {sS}, 8\ns_add_u32 s71, s71, {sT0}\ns_add_u32 s71, s71, {WS_H1}")
    a(f"v_bfe_u32 v8, {vLane}, 3, 1\nv_mul_u32_u24 v8, {STB}, v8\nv_and_b32 v14, 7, {vLane}\nv_lshl_add_u32 v8, v14, 5, v8\nv_bfe_u32 v14, {vLane}, 4, 1\nv_lshl_add_u32 {vPub4}, v14, 4, v8")
    a(f"s_mul_i32 s73, s69, {2*STB}\ns_lshl_b32 {sT0}, {sA}, 8\ns_add_u32 s73, s73, {sT0}\ns_add_u32 s73, s73, {WS_H4}")
    if o["hack"] & 4:
        a(f"v_bfe_u32 v8, {vLane}, 3, 1\nv_lshlrev_b32 v8, 8, v8\nv_and_b32 v14, 7, {vLane}\nv_lshl_add_u32 v8, v14, 5, v8\nv_bfe_u32 v14, {vLane}, 4, 1\nv_lshl_add_u32 {vPub4}, v14, 4, v8")
        a(f"s_lshr_b32 {sT0}, s2, 3\ns_mul_i32 {sT0}, {sT0}, 7\ns_add_u32 {sT0}, {sT0}, s3\ns_lshl_b32 {sT0}, {sT0}, 1")
        a(f"s_lshr_b32 {sT1}, {sT0}, 6\ns_lshl_b32 {sT1}, {sT1}, 3\ns_and_b32 s73, s2, 7\ns_add_u32 s73, s73, {sT1}\ns_mul_i32 s73, s73, {STB}")
        a(f"s_and_b32 {sT0}, {sT0}, 63\ns_lshl_b32 {sT0}, {sT0}, 8\ns_add_u32 s73, s73, {sT0}\ns_add_u32 s73, s73, {WS_H4}")
    a(f"s_mul_i32 s74, {sA}, {STB}\ns_lshl_b32 {sT0}, s3, 11\ns_add_u32 s74, s74, {sT0}")
    STP = 8192 + o["pads"]
    vGS = f"v{SPARE+12}" if o["pairl"] else vLin
    if o["pairl"]:
        a(f"s_mul_i32 s75, {sB}, {8*STP}\ns_lshl_b32 {sT0}, {sA}, 7\ns_add_u32 s75, s75, {sT0}")
        a(f"s_lshr_b32 {sT0}, {sA}, 4\ns_lshl_b32 {sT0}, {sT0}, 3\ns_and_b32 {sT1}, {sA}, 7\ns_add_u32 {sT0}, {sT0}, {sT1}\ns_mul_i32 s76, {sT0}, {STP}")
        a(f"s_bfe_u32 {sT0}, {sA}, 0x10003\ns_lshl_b32 {sT0}, {sT0}, 6\ns_add_u32 s76, s76, {sT0}\ns_lshl_b32 {sT0}, s3, 11\ns_add_u32 s76, s76, {sT0}")
        a(f"v_lshrrev_b32 v8, 2, {vLane}\nv_lshlrev_b32 v8, 7, v8\nv_and_b32 v14, 3, {vLane}\nv_lshl_add_u32 {vGS}, v14, 4, v8")
    else:
        a(f"s_mul_i32 s75, {sB}, {16*STS}\ns_lshl_b32 {sT0}, {sA}, 6\ns_add_u32 s75, s75, {sT0}")
        a(f"s_mul_i32 s76, {sA}, {STS}\ns_lshl_b32 {sT0}, s3, 10\ns_add_u32 s76, s76, {sT0}")
    a(f"s_and_b32 s77, s2, 7\ns_lshl_b32 s77, s77, 10")
    a.wait_vm(ixr)
    if not o["wolate"]:
        poll([ldx4(RSK, vA8, "s72")], (list(range(RSK, RSK+4)), sTag8, "0xff"), first=False)
        strip(range(RSK, RSK+4))
        dppsum(range(RSK, RSK+4), 3)
    else:
        for q in range(4): a(f"v_mov_b32 v{RSK+q}, 0")
    unpack4(HK, XK)
    HS = SPARE + 14
    if o["one"]:
        for b in range(4): a(f"v_mov_b32_dpp v{HS}, v{HK+b} quad_perm:[0,1,2,3] row_mask:0xf bank_mask:{1 << b}")
    if o["one"] == 2:
        for b in range(4): a(f"v_mov_b32_dpp v{RSS}, v{RSK+b} quad_perm:[0,1,2,3] row_mask:0xf bank_mask:{1 << b}")
    vSh = vA8
    if o["sarid"]: a(f"v_and_b32 {vSh}, 3, {vLane}\nv_lshlrev_b32 {vSh}, 3, {vSh}")
    while pvdone < 4:
        a.wait_vm(vidx[8 * pvdone + 7]); pv(pvdone); pvdone += 1
    stamp("vdone")
    if o["wolate"] == 2: latew(0)
    for r in range(4):
        for t in range(4):
            a(f"v_permlane32_swap_b32 v{ACC+4*t+r}, v{ACC+4*(t+4)+r}")
        for t in range(4):
            a(f"v_add_f32 v{PT+4*r+t}, v{ACC+4*t+r}, v{ACC+4*(t+4)+r}")
        a(f"ds_write_b128 {vOW}, {r4(PT+4*r)} offset:{L_O + 1024*r}")
    barrier()
    a("s_cmp_ge_u32 s3, 4\ns_cbranch_scc1 L_noh1")
    a(f"s_lshl_b32 {sT0}, s3, 10\nv_add_u32 v8, {sT0}, {vLin}")
    for i in range(8): a(f"ds_read_b128 {r4(ACC+4*i)}, v8 offset:{L_O + 4096*i}")
    for i in range(1, 8):
        a(f"s_waitcnt lgkmcnt({7-i})")
        for q in range(4): a(f"v_add_f32 v{ACC+q}, v{ACC+q}, v{ACC+4*i+q}")
    for q in range(4): a(f"v_and_or_b32 v{ACC+q}, v{ACC+q}, {vMask}, {sTag8}")
    a(f"buffer_store_dwordx4 {r4(ACC)}, {vH1}, {sWS}, s71 offen sc1")
    a.label("L_noh1")
    stamp("h1pub")
    if o["adapt"]: a("s_mov_b32 s93, 0")
    elif 1:
        if o["w1s"]:
            a(("s_cmp_ge_u32 s3, 4" if o["w1s"] == 1 else "s_cmp_lt_u32 s3, 4") + "\ns_cbranch_scc1 L_w1s"); wl4(1); a.label("L_w1s")
        elif o["w1late"]: latew(1, o["w1pre"])
        if o["w2late"]: latew(2, o["w2p0"])
    if not o["wolate"]: wtrans(wsl(0), TW)
    if o["one"] == 2:
        a(f"v_lshlrev_b32 v8, 3, {vLane}\ns_lshr_b32 {sT0}, s3, 1\ns_lshl_b32 {sT0}, {sT0}, 9\nv_add_u32 {vAO}, {sT0}, v8")
    else:
        a(f"v_and_b32 v8, 7, {vLane}\nv_mul_u32_u24 v8, {256 + o['lpad']}, v8\nv_lshrrev_b32 v14, 4, {vLane}\nv_lshl_add_u32 v8, v14, 4, v8\ns_lshr_b32 {sT0}, s3, 1\ns_lshl_b32 {sT0}, {sT0}, 6\nv_add_u32 {vAO}, {sT0}, v8")
    a(f"v_and_b32 v8, 15, {vLane}\nv_lshlrev_b32 v8, 5, v8\nv_bfe_u32 v14, {vLane}, 4, 1\nv_lshl_add_u32 v8, v14, 4, v8\ns_lshl_b32 {sT0}, s3, 9\nv_add_u32 {vRB}, {sT0}, v8")
    if o["pairl"] == 2:
        a(f"v_lshrrev_b32 v8, 3, {vLane}\nv_mul_u32_u24 v8, {STP}, v8\nv_and_b32 v14, 7, {vLane}\nv_lshl_add_u32 {vOW}, v14, 4, v8")
        a(f"v_lshrrev_b32 v8, 3, {vLane}\nv_lshlrev_b32 v8, 6, v8\nv_bfe_u32 v14, {vLane}, 2, 1\nv_lshl_add_u32 v8, v14, 9, v8\nv_and_b32 v14, 3, {vLane}\nv_lshl_add_u32 {vLR}, v14, 4, v8")
    elif o["pairl"]:
        a(f"v_bfe_u32 v8, {vLane}, 2, 3\nv_mul_u32_u24 v8, {STP}, v8\nv_lshrrev_b32 v14, 5, {vLane}\nv_lshl_add_u32 v8, v14, 6, v8\nv_and_b32 v14, 3, {vLane}\nv_lshl_add_u32 {vOW}, v14, 4, v8")
    else:
        a(f"v_lshrrev_b32 v8, 2, {vLane}\nv_mul_u32_u24 v8, {STS}, v8\nv_and_b32 v14, 3, {vLane}\nv_lshl_add_u32 {vOW}, v14, 4, v8")
    a(f"s_lshr_b32 {sT0}, s3, 1\ns_lshl_b32 {sT0}, {sT0}, 2\nv_mov_b32 {vH1}, {sT0}")
    a(f"s_add_u32 {sT0}, s74, {WS_H1}")
    def early_w():
        wl4(1)
        if o["adw2"]: wl4(2)
    poll([ldx4(G0, vLin, sT0), ldx4(G0+4, vLin, sT0, 1024)], (R8, sTag8, "0xff"), o["d1"], early=early_w if o["adapt"] else None,
         mid=(lambda: wtrans(wsl(0), TW)) if o["wolate"] else None)
    if o["adapt"]: unless_early(lambda: wl4(1), "L_w1e")
    if o["w1late"]: latew(1, o["w1p1"])
    if o["w2late"] and o["w2pos"] == 1: latew(2)
    if o["w2late"]: latew(2, o["w2pre"])
    if o["w1s"]:
        a(("s_cmp_lt_u32 s3, 4" if o["w1s"] == 1 else "s_cmp_ge_u32 s3, 4") + "\ns_cbranch_scc1 L_w1t"); wl4(1); a.label("L_w1t")
    if o["w2s"] == 2:
        a("s_cmp_lt_u32 s3, 4\ns_cbranch_scc1 L_w2u"); wl4(2); a.label("L_w2u")
    stamp("p1")
    big_reduce(L_R1)
    barrier()
    if o["one"] == 2:
        t = G0 + 4
        a(f"ds_read_b64 {r2(t)}, {vAO} offset:{L_R1}\ns_waitcnt lgkmcnt(0)\nv_add_f32 v{t}, v{t}, v{t+1}")
        quadsum(t)
        stamp("h1got")
        bcast4(G0, t)
        pack4(AO, G0)
        mfma8(AO, TW)
        bf16r(f"v{t}", f"v{t}")
        a(f"v_mul_f32 v{G0}, v{t}, v{RSS}")
        for k in (4, 8): a(f"v_add_f32_dpp v{G0}, v{G0}, v{G0} row_ror:{k} row_mask:0xf bank_mask:0xf")
    else:
        a(f"ds_read_b128 {r4(G0)}, {vAO} offset:{L_R1}\ns_waitcnt lgkmcnt(0)")
        dppsum(R4_, 3)
        stamp("h1got")
        pack4(AO, G0)
        mfma8(AO, TW)
        unpack4(G0, AO)
        a(f"v_mul_f32 v{G0}, v{G0}, v{RSK}")
        for q in range(1, 4): a(f"v_fmac_f32 v{G0}, v{G0+q}, v{RSK+q}")
    red4(f"v{G0}", "v8")
    a(f"ds_write_b32 {vH1}, v{G0} offset:{L_SA}")
    sel4(False)
    a(f"ds_write_b128 {vRB}, {r4(Y)} offset:{L_B}")
    barrier()
    def sapub():
        a(f"s_waitcnt lgkmcnt(0)\nv_add_f32 v{G0}, v{G0}, v{G0+1}\nv_add_f32 v{G0+2}, v{G0+2}, v{G0+3}\nv_add_f32 v{Y}, v{G0}, v{G0+2}")
        a(f"v_and_or_b32 v{Y}, v{Y}, {vMask}, {sTag8}\nv_mov_b32 v{Y+1}, {sTag8}")
        pub2(WS_SA)
        a("s_mov_b64 exec, -1")
    a(f"s_add_u32 s78, s75, {WS_H2}")
    cu_reduce_pub(L_B, "s78", "L_nob", sapub)
    stamp("h2pub")
    if o["w1late"]: latew(1)
    if o["w2late"]: latew(2, o["w2p2"])
    for r in range(o["xh"]):
        xb = 0x400000 + r * 0x50000
        a(f"s_cmp_lg_u32 s3, 0\ns_cbranch_scc1 L_x{r}a")
        for q in range(4): a(f"v_mov_b32 v{ACC+16+q}, {sTag8}")
        a(f"s_add_u32 {sT0}, s75, {xb}\nbuffer_store_dwordx4 {r4(ACC+16)}, {vOW}, {sWS}, {sT0} offen sc1")
        a.label(f"L_x{r}a")
        a(f"s_cmp_ge_u32 s3, 4\ns_cbranch_scc1 L_x{r}b\ns_add_u32 {sT0}, s76, {xb}")
        st_, o["stamps"] = o["stamps"], 0
        poll([ldx4(G0, vGS, sT0)], (R4_, sTag8, "0xff"), o["d2"])
        o["stamps"] = st_
        a.label(f"L_x{r}b")
        barrier()
    tr1 = lambda: wtrans(wsl(1), TW)
    a("s_cmp_ge_u32 s3, 4\ns_cbranch_scc1 L_g2s")
    a(f"s_add_u32 {sT0}, s76, {WS_H2}")
    if o["sarid"]:
        poll([ldx4(G0, vGS, sT0)], (R4_[:3], sTag8, "0xff"), o["d2"], mid=tr1)
        b, t, u = G0, G0 + 4, G0 + 5
        dp = "row_mask:0xf bank_mask:0xf"
        a(f"v_and_b32 v{t}, 0xff, v{b+3}\nv_lshlrev_b32 v{t}, {vSh}, v{t}")
        strip(R4_)
        a(f"v_or_b32_dpp v{t}, v{t}, v{t} quad_perm:[1,0,3,2] {dp}")
        a(f"v_permlane32_swap_b32 v{b}, v{b+1}\nv_permlane32_swap_b32 v{b+2}, v{b+3}")
        a(f"v_or_b32_dpp v{t}, v{t}, v{t} quad_perm:[2,3,0,1] {dp}")
        a(f"v_add_f32 v{b}, v{b}, v{b+1}\nv_add_f32 v{b+2}, v{b+2}, v{b+3}")
        a(f"v_add_f32_dpp v{t}, v{t}, v{t} row_ror:4 {dp}")
        a(f"s_lshl_b32 {sT0}, s3, 2\nv_mov_b32 v8, {sT0}")
        a(f"v_permlane16_swap_b32 v{b}, v{b+2}")
        a(f"v_add_f32_dpp v{t}, v{t}, v{t} row_ror:8 {dp}")
        a(f"v_add_f32 v{b}, v{b}, v{b+2}\nv_mov_b32 v{u}, v{t}")
        a(f"v_add_f32_dpp v{b}, v{b}, v{b} row_ror:4 {dp}")
        a(f"v_permlane16_swap_b32 v{u}, v{t}")
        a(f"v_add_f32 v{t}, v{t}, v{u}")
        a(f"v_add_f32_dpp v{b}, v{b}, v{b} row_ror:8 {dp}")
        a(f"v_mov_b32 v{u}, v{t}")
        a(f"ds_write_b32 {vRW}, v{b} offset:{L_R2}")
        a(f"v_permlane32_swap_b32 v{u}, v{t}\nv_add_f32 v{t}, v{t}, v{u}")
        a(f"ds_write_b32 v8, v{t} offset:{L_M2}")
        a("s_branch L_g2")
        a.label("L_g2s")
        a("s_waitcnt vmcnt(0)" if o["w2s"] != 2 else "s_waitcnt vmcnt(4)")
        if o["w2s"] == 1: wl4(2)
        tr1()
        a.label("L_g2")
        stamp("p2")
        if o["w2s"]:
            a("s_cmp_ge_u32 s3, 4\ns_cbranch_scc1 L_w2s")
            for n in range(8, 8 + o["w2p3"]): wload(n)
            a.label("L_w2s")
        elif o["w2late"] and o["w2pos"] == 0: latew(2, o["w2p3"])
        barrier()
        if o["one"] == 2:
            dp = "row_mask:0xf bank_mask:0xf"
            a(f"v_mov_b32 v8, 0\nds_read_b32 v{G0+4}, {vL4} offset:{L_R2}\nds_read_b128 {r4(G0)}, v8 offset:{L_M2}\nv_mov_b32 v14, {sMX}\ns_waitcnt lgkmcnt(0)")
            a(f"v_add_f32_dpp v{G0+4}, v{G0+4}, v{G0+4} quad_perm:[1,0,3,2] {dp}\nv_add_f32 v{G0}, v{G0}, v{G0+1}\nv_add_f32 v{G0+2}, v{G0+2}, v{G0+3}")
            a(f"v_add_f32_dpp v{G0+4}, v{G0+4}, v{G0+4} quad_perm:[2,3,0,1] {dp}\nv_add_f32 v{G0}, v{G0}, v{G0+2}\nv_fmac_f32 v14, {f32(1/1024)}, v{G0}")
            bf16r("v14", "v14")
        else:
            a(f"v_mov_b32 v8, 0\nds_read_b128 {r4(G0+4)}, v8 offset:{L_M2}\nds_read_b128 {r4(G0)}, {vA4} offset:{L_R2}\nv_mov_b32 v14, {sMX}\ns_waitcnt lgkmcnt(1)")
            a(f"v_add_f32 v{G0+4}, v{G0+4}, v{G0+5}\nv_add_f32 v{G0+6}, v{G0+6}, v{G0+7}\nv_add_f32 v{G0+4}, v{G0+4}, v{G0+6}\nv_fmac_f32 v14, {f32(1/1024)}, v{G0+4}")
            bf16r("v14", "v14")
            a("s_waitcnt lgkmcnt(0)")
            if o["one"]: dppsel(R4_, 2, G0+4)
            else: dppsum(R4_, 2)
    else:
        poll([ldx4(G0, vGS, sT0)], (R4_, sTag8, "0xff"), o["d2"], mid=tr1)
        strip(R4_)
        q16(G0, L_R2)
        a("s_branch L_g2")
        a.label("L_g2s")
        a(f"s_cmp_eq_u32 s3, {4 if not o['hack'] & 1 else 9}\ns_cbranch_scc1 L_g2m\ns_waitcnt vmcnt(0)")
        tr1()
        a("s_branch L_g2")
        a.label("L_g2m")
        a(f"s_add_u32 {sT0}, s77, {WS_SA}")
        poll([ldx4(G0, vLin, sT0)], ([G0, G0+1], sTag8, "0xff", G0+2), o["d2"], mid=tr1)
        strip([G0])
        red64("v_add_f32", f"v{G0}", "v8")
        a(f"v_mov_b32 v8, {sMX}\nv_fmac_f32 v8, {f32(1/1024)}, v{G0}")
        bf16r("v8", "v8")
        a(f"v_mov_b32 v14, 0\nds_write_b32 v14, v8 offset:{L_M}")
        a.label("L_g2")
        stamp("p2")
        if o["adapt"] and o["adw2"]: unless_early(lambda: wl4(2), "L_w2e")
        if o["w2late"] and o["w2pos"] == 0: latew(2, o["w2p3"])
        barrier()
        a(f"v_mov_b32 v8, 0\nds_read_b128 {r4(G0)}, {vA4} offset:{L_R2}\nds_read_b32 v14, v8 offset:{L_M}\ns_waitcnt lgkmcnt(1)")
        dppsum(R4_, 2)
    stamp("h2got")
    if o["one"]:
        t = f"v{G0+4}"
        bf16r(t, t); a(f"v_add_f32 {t}, {t}, v{HS}"); bf16r(f"v{HS}", t)
        a(f"v_sub_f32 {t}, v{HS}, v14")
        bcast4(G0, G0+4)
    else:
        pack4(AO, G0); unpack4(G0, AO)
        for q in range(4): a(f"v_add_f32 v{G0+q}, v{G0+q}, v{HK+q}")
        pack4(AO, G0); unpack4(HK, AO)
        a("s_waitcnt lgkmcnt(0)")
        for q in range(4): a(f"v_sub_f32 v{G0+q}, v{HK+q}, v14")
    a("s_cmp_eq_u32 s3, 7\ns_cbranch_scc1 L_stat")
    pack4(AO, G0)
    mfma8(AO, TW)
    sel4(True)
    a("s_mov_b32 exec_hi, 0")
    a(f"buffer_store_dwordx4 {r4(Y)}, {vPub4}, {sWS}, s73 offen" + (" sc1" if o["hack"] & 12 != 4 else ""))
    a("s_branch L_cd")
    a.label("L_stat")
    a(f"v_add_f32 v{Y}, v{G0}, v{G0+1}\nv_add_f32 v8, v{G0+2}, v{G0+3}\nv_mul_f32 v{Y+1}, v{G0}, v{G0}\nv_add_f32 v{Y}, v{Y}, v8")
    for q in range(1, 4): a(f"v_fmac_f32 v{Y+1}, v{G0+q}, v{G0+q}")
    red4(f"v{Y}", "v8"); red4(f"v{Y+1}", "v14")
    a(f"v_and_or_b32 v{Y}, v{Y}, {vMask}, {sTag8}\nv_and_or_b32 v{Y+1}, v{Y+1}, {vMask}, {sTag8}")
    pub2(WS_ST)
    a(f"s_cmp_lg_u32 s2, 0\ns_cbranch_scc1 L_cd")
    a(f"s_mov_b64 exec, 1\nbuffer_store_dword v{Y+2}, v8, {sWS}, 0 offen offset:{WS_EPOCH} sc1")
    if o["stamps"] == 3: a(f"v_xor_b32 v14, 0x5a5a1234, v{Y+2}\nbuffer_store_dword v14, v8, {sWS}, 0 offen offset:{WS_EPOCH+4} sc1")
    a.label("L_cd")
    a("s_mov_b64 exec, -1")
    if o["w2s"]:
        if o["w2p3"] < 4:
            a("s_cmp_ge_u32 s3, 4\ns_cbranch_scc1 L_w2t")
            for n in range(8 + o["w2p3"], 12): wload(n)
            a.label("L_w2t")
    elif o["w2late"]: latew(2)
    stamp("h4pub")
    a(f"s_cmp_ge_u32 {sA}, 56\ns_cbranch_scc1 L_nod")
    a(f"s_add_u32 {sT0}, s74, {WS_H4}")
    tr2 = lambda: wtrans(wsl(2), TW)
    a(f"s_cmp_eq_u32 s3, {7 if not o['hack'] & 2 else 9}\ns_cbranch_scc1 L_g4s")
    poll([ldx4(G0, vLin, sT0), ldx4(G0+4, vLin, sT0, 1024)], (R8, sTag8, "0xff"), o["d4"], mid=tr2)
    big_reduce(L_R4)
    a("s_branch L_g4")
    a.label("L_g4s")
    a(f"s_add_u32 {sT1}, s77, {WS_ST}")
    poll([ldx4(G0, vLin, sT0), ldx4(G0+4, vLin, sT0, 1024), ldx4(Y, vLin, sT1)], (R8 + [Y, Y+1], sTag8, "0xff", Y+2), o["d4"], mid=tr2)
    big_reduce(L_R4)
    strip([Y, Y+1])
    a(f"v_permlane32_swap_b32 v{Y}, v{Y+1}\nv_add_f32 v{G0}, v{Y}, v{Y+1}")
    a(f"v_mov_b32 v8, v{G0}\nv_permlane16_swap_b32 v8, v{G0}\nv_add_f32 v{G0}, v{G0}, v8")
    for k in (8, 4, 2, 1): a(f"v_add_f32_dpp v{G0}, v{G0}, v{G0} row_ror:{k} row_mask:0xf bank_mask:0xf")
    a(f"v_mul_f32 v{G0}, {f32(1/1024)}, v{G0}\nv_mov_b32 v8, v{G0}\nv_permlane32_swap_b32 v8, v{G0}")
    vr = f"v{G0}"
    a(f"v_fma_f32 {vr}, -v8, v8, {vr}\nv_max_f32 {vr}, 0, {vr}"); bf16r(vr, vr)
    a(f"v_add_f32 {vr}, {f32(1e-5)}, {vr}"); bf16r(vr, vr)
    a(f"v_sqrt_f32 {vr}, {vr}"); bf16r(vr, vr)
    a(f"v_rcp_f32 {vr}, {vr}\nv_mov_b32 v8, 0\nds_write_b32 v8, {vr} offset:{L_RI}")
    a.label("L_g4")
    stamp("p4")
    barrier()
    if o["one"] == 2:
        a(f"v_mov_b32 v8, 0\nds_read_b64 {r2(G0+4)}, {vAO} offset:{L_R4}\nds_read_b32 v14, v8 offset:{L_RI}\ns_waitcnt lgkmcnt(1)\nv_add_f32 v{G0+4}, v{G0+4}, v{G0+5}")
    else:
        a(f"v_mov_b32 v8, 0\nds_read_b128 {r4(G0)}, {vAO} offset:{L_R4}\nds_read_b32 v14, v8 offset:{L_RI}\ns_waitcnt lgkmcnt(1)")
    if o["one"]:
        if o["one"] == 2: quadsum(G0+4)
        else: dppsel(R4_, 3, G0+4)
        a("s_waitcnt lgkmcnt(0)")
        stamp("h4got")
        t, e = f"v{G0+4}", f"v{G0+5}"
        a(f"v_mul_f32 {t}, {t}, v14"); bf16r(t, t)
        a(f"v_mul_f32 {e}, {sL2E}, {t}\nv_exp_f32 {e}, -{e}\nv_add_f32 {e}, 1.0, {e}\nv_rcp_f32 {e}, {e}\nv_mul_f32 {t}, {t}, {e}")
        bcast4(G0, G0+4)
    else:
        dppsum(R4_, 3)
        a("s_waitcnt lgkmcnt(0)")
        stamp("h4got")
        for q in range(4): a(f"v_mul_f32 v{G0+q}, v{G0+q}, v14")
        pack4(AO, G0); unpack4(G0, AO)
        for q in range(4): a(f"v_mul_f32 v{G0+4+q}, {sL2E}, v{G0+q}")
        for q in range(4): a(f"v_exp_f32 v{G0+4+q}, -v{G0+4+q}")
        for q in range(4): a(f"v_add_f32 v{G0+4+q}, 1.0, v{G0+4+q}")
        for q in range(4): a(f"v_rcp_f32 v{G0+4+q}, v{G0+4+q}")
        for q in range(4): a(f"v_mul_f32 v{G0+q}, v{G0+q}, v{G0+4+q}")
    pack4(AO, G0)
    mfma8(AO, TW)
    sel4(False)
    a(f"ds_write_b128 {vRB}, {r4(Y)} offset:{L_D}")
    barrier()
    a(f"s_add_u32 s78, s75, {WS_H5}")
    cu_reduce_pub(L_D, "s78", "L_nod")
    stamp("h5pub")
    a(f"s_cmp_lg_u32 {sB}, 0\ns_cbranch_scc1 L_fin")
    a("s_cmp_ge_u32 s3, 4\ns_cbranch_scc1 L_g5")
    for q in range(4): a(f"v_mov_b32 v{G0+q}, 0")
    a(f"s_add_u32 {sT0}, s76, {WS_H5}\ns_cmp_eq_u32 s3, 3\ns_cselect_b32 exec_hi, 0, -1")
    poll([ldx4(G0, vGS, sT0)], (R4_, sTag8, "0xff"), o["d5"])
    strip(R4_)
    q16(G0, L_R5)
    a.label("L_g5")
    stamp("p5")
    barrier()
    a("s_cmp_lg_u32 s3, 0\ns_cbranch_scc1 L_fin")
    if o["one"]:
        if o["one"] == 2: a(f"ds_read_b32 v{G0+4}, {vL4} offset:{L_R5}")
        else: a(f"ds_read_b128 {r4(G0)}, {vA4} offset:{L_R5}")
        a(f"v_lshrrev_b32 v8, 2, {vLane}\nv_lshlrev_b32 v8, 1, v8\ns_lshl_b32 {sT0}, {sA}, 5\ns_waitcnt lgkmcnt(0)")
        if o["one"] == 2: quadsum(G0+4)
        else: dppsel(R4_, 2, G0+4)
        t = f"v{G0+4}"
        bf16r(t, t); a(f"v_add_f32 {t}, {t}, v{HS}\nv_cvt_pk_bf16_f32 {t}, {t}, {t}")
        a("s_mov_b32 exec_lo, 0x11111111\ns_mov_b32 exec_hi, 0x11111111")
        a(f"buffer_store_short {t}, v8, {sOUT}, {sT0} offen")
    else:
        a(f"ds_read_b128 {r4(G0)}, {vA4} offset:{L_R5}\nv_lshrrev_b32 v8, 4, {vLane}\nv_lshlrev_b32 v8, 3, v8\ns_lshl_b32 {sT0}, {sA}, 5\ns_waitcnt lgkmcnt(0)")
        dppsum(R4_, 2)
        pack4(AO, G0); unpack4(G0, AO)
        for q in range(4): a(f"v_add_f32 v{G0+q}, v{G0+q}, v{HK+q}")
        pack4(AO, G0)
        a("s_mov_b32 exec_lo, 0x10001\ns_mov_b32 exec_hi, 0x10001")
        a(f"buffer_store_dwordx2 {r2(AO)}, v8, {sOUT}, {sT0} offen" + ["", " sc1", " sc0 sc1", " nt"][o["outpol"]])
    a("s_mov_b64 exec, -1")
    a.label("L_fin")
    if o["stamps"]:
        stamp("end")
        a(f"s_lshl_b32 {sT0}, s2, 3\ns_add_u32 {sT0}, {sT0}, s3\ns_lshl_b32 {sT0}, {sT0}, 7\ns_add_u32 {sT0}, {sT0}, {WS_DBG}")
        a(f"v_lshlrev_b32 v8, 2, {vLane}\ns_mov_b32 exec_hi, 0")
        a(f"buffer_store_dword {vStamp}, v8, {sWS}, {sT0} offen")
        if o["stamps"] == 3:
            a("s_cmp_eq_u32 s97, 0x5a5a1234\ns_cbranch_scc1 L_end")
            a(f"s_or_b32 {sT0}, s2, s3\ns_cmp_lg_u32 {sT0}, 0\ns_cbranch_scc1 L_end")
            a(f"v_readlane_b32 {sT0}, {vStamp}, 0\nv_readlane_b32 {sT1}, {vStamp}, {nst[0]-1}\ns_nop 3\ns_sub_u32 {sT1}, {sT1}, {sT0}\ns_cmp_lt_u32 {sT1}, {o['thr']}\ns_cbranch_scc1 L_end")
            a(f"v_subrev_u32 v9, {sT0}, {vStamp}\nv_cvt_f32_u32 v9, v9\nv_mul_f32 v9, {f32(0.04)}, v9\nv_rndne_f32 v9, v9\nv_cvt_pk_bf16_f32 v9, v9, v9")
            lanes = o.get("lanes", [3, 4, 5, 7, 9, 12, 14, 16])
            a("s_waitcnt vmcnt(0)")
            for n, ln in enumerate(lanes):
                a(f"v_mov_b32 v8, {2*n}\ns_mov_b32 exec_lo, {1 << ln}\nv_mov_b32 v8, {2*n}\nbuffer_store_short v9, v8, {sOUT}, 0 offen\ns_nop 1")
        if o["stamps"] == 4:
            a(f"s_or_b32 {sT0}, s2, s3\ns_cmp_lg_u32 {sT0}, 0\ns_cbranch_scc1 L_end")
            a(f"v_readlane_b32 {sT0}, {vStamp}, 0\nv_readlane_b32 {sT1}, {vStamp}, {o['sidx']}\nv_readlane_b32 s96, {vStamp}, {nst[0]-1}\ns_nop 3")
            a(f"s_sub_u32 {sT1}, {sT1}, {sT0}\ns_mul_i32 {sT1}, {sT1}, {o['smul']}\ns_min_u32 {sT1}, {sT1}, 20000")
            a.label("L_str")
            a(f"s_memrealtime s[98:99]\ns_waitcnt lgkmcnt(0)\ns_sub_u32 {sT0}, s98, s96\ns_cmp_lt_u32 {sT0}, {sT1}\ns_cbranch_scc1 L_str")
        if o["stamps"] == 2:
            a(f"s_or_b32 {sT0}, s2, s3\ns_cmp_lg_u32 {sT0}, 0\ns_cbranch_scc1 L_end")
            a(f"v_readlane_b32 {sT0}, {vStamp}, 0\nv_subrev_u32 v9, {sT0}, {vStamp}\nv_subrev_u32 v8, 4, v8\ns_mov_b32 exec_lo, 0x1fffe")
            a(f"buffer_store_dword v9, v8, {sDBG}, 0 offen")
    a.label("L_end")
    a("s_endpgm")
    a.raw(f'''.section .rodata,"a"
.p2align 6
.amdhsa_kernel {KN}
  .amdhsa_next_free_vgpr 256
  .amdhsa_next_free_sgpr 102
  .amdhsa_accum_offset 256
  .amdhsa_group_segment_fixed_size 0
  .amdhsa_kernarg_size 88
  .amdhsa_user_sgpr_count 2
  .amdhsa_user_sgpr_kernarg_segment_ptr 1
  .amdhsa_system_sgpr_workgroup_id_x 1
.end_amdhsa_kernel''')
    return a.text()

if __name__ == "__main__":
    kw = {}
    out = sys.argv[1]
    for x in sys.argv[2:]:
        k, v = x.split("="); kw[k] = int(v)
    open(out, "w").write(gen(**kw))
```

```python
import struct, sys
sys.path.insert(0, "work")
from asmlib import Asm
KN = "sequential_preLN__gqa_block_cached__dense_activation_silu__decode_kernel"
def f32(x): return "0x%08x" % struct.unpack("<I", struct.pack("<f", x))[0]

WS_EPOCH = 0
WS_QP = 0x10000
WS_ML = 0x40000
WS_ST = 0x48000
WS_SA = 0x4C000
WS_RS = 0x50000
WS_H2 = 0x70000
WS_H1 = 0xC0000
WS_H4 = 0x200000
WS_H5 = 0x300000
WS_DBG = 0x800000
L_QRED, L_QF, L_ML, L_MLG = 0, 4096, 6144, 6656
L_R2, L_SA, L_M, L_RI, L_R5, L_R1, L_R4, L_B, L_O = 6912, 7168, 7184, 7188, 7424, 8192, 10240, 12288, 16384
L_D = L_O
L_M2 = 7200
LDS_BYTES = 49152

DEF = dict(pad=1, xa=1, thr=3600, qbar=1, depth=6, qload_pos=22, qproc_pos=29, ml_pos=16, stamps=0,
           d1=16, d2=16, d4=16, d5=16, back=0, w1late=1, w2late=1, w2pos=0, w1pre=4, w2pre=0, w2p0=0, xh=0, gsh=0, adapt=0, adw2=1, wolate=0, x1=1, x2=1, x3=1, x4=1, x5=1, dl=6, dlpos=20, y0=0, y1=0, y2=0, y3=0, w2p2=0, w2p3=0, w1p1=4, qe=8, qmap=0, ob0=0, ob1=0, obn=1, outpol=0, hack=0, sarid=1, pairl=0, pads=128, lpad=16, owc=1, sidx=0, smul=1, one=2, w2s=1, w1s=0, swz=1, f0=0, f1=0, f2=0, pv1=0, w1at=0, m4=1, pvs=1, rs1=2, par4=1, xm=1, st7=1)

def gen(**kw):
    o = dict(DEF); o.update(kw)
    D = o["depth"]
    pad = o["pad"]
    STB, STS = 16384 + 256 * pad, 4096 + 128 * pad
    a = Asm()
    a.raw(open("sequential_preLN__gqa_block_cached__dense_activation_silu__decode.s.ref").read().split("; Override")[0].rstrip())
    a.raw(f"; @launch grid=(256,1,1) block=(512,1,1) lds={LDS_BYTES}")
    a.raw('.amdgcn_target "amdgcn-amd-amdhsa--gfx950"\n.text')
    a.raw(f".globl {KN}\n.p2align 8\n.type {KN},@function\n{KN}:")
    sK, sV, sWS, sX, sWQ, sWO, sW1, sW2, sOUT, sDBG = [f"s[{b}:{b+3}]" for b in (8, 12, 16, 20, 24, 28, 32, 36, 40, 44)]
    sG, sS, sT0, sT1 = "s4", "s5", "s6", "s7"
    sKo, sVo = "s49", "s50"
    sTag8, sTag16, sEp = "s51", "s52", "s53"
    sPL, sPH, sHI, sSC, sL2E, s80 = "s54", "s55", "s56", "s57", "s58", "s59"
    sM4 = "s[60:61]"
    sCnt = "s62"; sT2 = "s63"; sTag2 = "s48"; sA = "s90"; sB = "s91"; sMX = "s92"
    vLane, vKoff, vLin, vMask = "v1", "v2", "v3", "v4"
    vMw, vXr, vH = "v5", "v6", "v7"
    vt = [f"v{i}" for i in range(8, 15)]
    vStamp = "v15"
    S0 = 16
    ACC = 32
    SLOT = 64
    PT = 240
    def slot(i): return SLOT + 4 * i
    def r4(b): return f"v[{b}:{b+3}]"
    def r2(b): return f"v[{b}:{b+1}]"
    nst = [0]
    def stamp(name):
        if not o["stamps"] or (o["hack"] & 32 and name[0] == "p"): return
        a("s_memrealtime s[98:99]\ns_waitcnt lgkmcnt(0)")
        a(f"v_writelane_b32 {vStamp}, s98, {nst[0]}")
        nst[0] += 1
    def bf16r(d, s):
        a(f"v_cvt_pk_bf16_f32 {d}, {s}, {s}\nv_lshlrev_b32 {d}, 16, {d}")
    def red64(op, v, t):
        a(f"v_mov_b32 {t}, {v}\nv_permlane32_swap_b32 {t}, {v}\n{op} {v}, {v}, {t}")
        a(f"v_mov_b32 {t}, {v}\nv_permlane16_swap_b32 {t}, {v}\n{op} {v}, {v}, {t}")
        for k in (8, 4, 2, 1):
            a(f"{op}_dpp {v}, {v}, {v} row_ror:{k} row_mask:0xf bank_mask:0xf")
    def red_rows(op, v, t):
        a(f"v_mov_b32 {t}, {v}\nv_permlane32_swap_b32 {t}, {v}\n{op} {v}, {v}, {t}")
        a(f"v_mov_b32 {t}, {v}\nv_permlane16_swap_b32 {t}, {v}\n{op} {v}, {v}, {t}")
        a(f"{op}_dpp {v}, {v}, {v} row_ror:8 row_mask:0xf bank_mask:0xf")
    def ln_stats(b, vm, vr, t0, t1):
        a(f"v_add_f32 {t0}, v{b}, v{b+1}")
        for i in range(2, 16): a(f"v_add_f32 {t0}, {t0}, v{b+i}")
        red64("v_add_f32", t0, t1)
        a(f"v_mul_f32 {t0}, {f32(1/1024)}, {t0}")
        for i in range(16): a(f"v_sub_f32 v{b+i}, v{b+i}, {t0}")
        a(f"v_mul_f32 {vr}, v{b}, v{b}")
        for i in range(1, 16): a(f"v_fmac_f32 {vr}, v{b+i}, v{b+i}")
        red64("v_add_f32", vr, t1)
        bf16r(vm, t0)
        a(f"v_mul_f32 {vr}, {f32(1/1024)}, {vr}")
        bf16r(vr, vr)
        a(f"v_add_f32 {vr}, {f32(1e-5)}, {vr}")
        bf16r(vr, vr)
        a(f"v_sqrt_f32 {vr}, {vr}")
        bf16r(vr, vr)
        a(f"v_rcp_f32 {vr}, {vr}")
    def ln_apply(h, A, vm, vr):
        for i in range(4): a(f"v_sub_f32 v{h+i}, v{h+i}, {vm}")
        a(f"v_cvt_pk_bf16_f32 v{A}, v{h}, v{h+1}\nv_cvt_pk_bf16_f32 v{A+1}, v{h+2}, v{h+3}")
        a(f"v_lshlrev_b32 v{h}, 16, v{A}\nv_and_b32 v{h+1}, {sHI}, v{A}\nv_lshlrev_b32 v{h+2}, 16, v{A+1}\nv_and_b32 v{h+3}, {sHI}, v{A+1}")
        for i in range(4): a(f"v_mul_f32 v{h+i}, v{h+i}, {vr}")
        a(f"v_cvt_pk_bf16_f32 v{A}, v{h}, v{h+1}\nv_cvt_pk_bf16_f32 v{A+1}, v{h+2}, v{h+3}")
    def wtrans(src, dst, k32=False):
        for t in range(8):
            for j in range(2):
                d = dst + (4*(t & 3) + 2*(t >> 2) + j if k32 else 2*t + j)
                a(f"v_perm_b32 v{d}, v{src+4*(2*j+1)+(t>>1)}, v{src+4*(2*j)+(t>>1)}, {sPH if t & 1 else sPL}")
    def gemv(A, T, Dr, Y, tag=True):
        for t in range(8):
            a(f"v_mfma_f32_16x16x16_bf16 {r4(Dr+4*t)}, {r2(A)}, {r2(T+2*t)}, 0")
        for q in range(4):
            a(f"v_cndmask_b32 v{Y+q}, v{Dr+4*q}, v{Dr+4*(q+4)}, {sM4}")
        if tag:
            for q in range(4): a(f"v_and_or_b32 v{Y+q}, v{Y+q}, {vMask}, {sTag8}")
    lab = [0]; npoll = [0]; nob = [0]
    def pace(d):
        if o["ob0"] <= a.nvm < o["ob1"] and a.nvm - a.done >= d:
            a.pace(d + o["obn"])
            nob[0] += 1
            a(f"s_bitcmp1_b32 s2, 0\ns_cbranch_scc1 L_ob{nob[0]}\ns_waitcnt vmcnt({d-1})")
            a.label(f"L_ob{nob[0]}")
        else: a.pace(d)
    def red4(v, t):
        a(f"v_mov_b32 {t}, {v}\nv_permlane32_swap_b32 {t}, {v}\nv_add_f32 {v}, {v}, {t}")
        a(f"v_mov_b32 {t}, {v}\nv_permlane16_swap_b32 {t}, {v}\nv_add_f32 {v}, {v}, {t}")
    def poll(loads, checks, delay=0, first=True, mid=None, early=None):
        n = lab[0]; lab[0] += 1
        a(f"s_mov_b32 {sCnt}, 0")
        if first:
            if delay: a(f"s_sleep {delay}")
            for l in loads: a(l)
            if mid:
                a(f"s_waitcnt vmcnt({len(loads)})"); mid()
            a("s_waitcnt vmcnt(0)")
        a.label(f"L_pollc{n}")
        check(*checks)
        a(f"s_mov_b64 exec, vcc\ns_cbranch_execz L_polld{n}")
        if early:
            a(f"s_cmp_lg_u32 {sCnt}, 0\ns_cbranch_scc1 L_polle{n}\ns_bcnt1_i32_b64 {sT2}, vcc\ns_cmp_lt_u32 {sT2}, {o['adapt']}\ns_cbranch_scc1 L_polle{n}")
            a("s_mov_b64 exec, -1\ns_mov_b32 s93, 1")
            early()
            a("s_mov_b64 exec, vcc")
            a.label(f"L_polle{n}")
        a(f"s_add_u32 {sCnt}, {sCnt}, 1\ns_cmp_gt_u32 {sCnt}, 0x80000\ns_cbranch_scc1 L_end")
        if o["back"]: a(f"s_sleep {o['back']}")
        for l in loads: a(l)
        a(f"s_waitcnt vmcnt(0)\ns_branch L_pollc{n}")
        a.label(f"L_polld{n}")
        a("s_mov_b64 exec, -1")
        if o["stamps"] == 1:
            a(f"s_add_u32 {sCnt}, {sCnt}, 1\nv_writelane_b32 {vStamp}, {sCnt}, {24 + npoll[0]}"); npoll[0] += 1
    def check(regs, tagreg, maskc, full=None):
        c = vt[6]
        if o["xm"] and maskc == "0xff":
            for r in regs: a(f"v_xor_b32 v{r}, {tagreg}, v{r}")
            rs = [f"v{r}" for r in regs]
            cur = rs.pop(0)
            while rs:
                if len(rs) >= 2: a(f"v_or3_b32 {c}, {cur}, {rs.pop(0)}, {rs.pop(0)}")
                else: a(f"v_or_b32 {c}, {cur}, {rs.pop(0)}")
                cur = c
            a(f"v_or_b32_dpp {c}, {c}, {c} quad_perm:[1,0,3,2] row_mask:0xf bank_mask:0xf")
            if full is not None:
                a(f"v_and_b32 {c}, {maskc}, {c}\nv_bitop3_b32 {c}, v{full}, {sEp}, {c} bitop3:0xbe\nv_cmp_ne_u32 vcc, 0, {c}")
            else:
                a(f"v_cmp_ne_u32_sdwa vcc, {c}, {vZero} src0_sel:BYTE_0 src1_sel:DWORD")
            xored.update(regs)
            return
        a(f"v_xor_b32 {c}, {tagreg}, v{regs[0]}")
        for r in regs[1:]: a(f"v_bitop3_b32 {c}, v{r}, {tagreg}, {c} bitop3:0xbe")
        if len(regs) > 2:
            a(f"v_or_b32_dpp {c}, {c}, {c} quad_perm:[1,0,3,2] row_mask:0xf bank_mask:0xf")
        a(f"v_and_b32 {c}, {maskc}, {c}")
        if full is not None: a(f"v_bitop3_b32 {c}, v{full}, {sEp}, {c} bitop3:0xbe")
        a(f"v_cmp_ne_u32 vcc, 0, {c}")
    xored = set(); vZero = "s79"
    def strip(regs):
        for r in regs:
            if r in xored: xored.discard(r)
            else: a(f"v_and_or_b32 v{r}, v{r}, {vMask}, {s80}")
    def barrier():
        a("s_waitcnt lgkmcnt(0)\ns_barrier")

    a("s_cmp_ge_u32 s2, 0x100\ns_cbranch_scc1 L_end")
    a("s_load_dwordx16 s[64:79], s[0:1], 0\ns_load_dwordx4 s[80:83], s[0:1], 64\ns_load_dwordx2 s[84:85], s[0:1], 80")
    if o["stamps"]: a(f"v_mov_b32 {vStamp}, 0")
    stamp("start")
    if o["stamps"] == 1:
        a(f"s_getreg_b32 s96, hwreg(HW_REG_XCC_ID)\ns_getreg_b32 s97, hwreg(HW_REG_HW_ID)\ns_and_b32 s96, s96, 15\ns_add_u32 s96, s96, 1\nv_writelane_b32 {vStamp}, s96, 23\nv_writelane_b32 {vStamp}, s97, 22")
    a(f"v_and_b32 {vLane}, 63, v0\nv_lshrrev_b32 v8, 6, v0")
    a("v_readfirstlane_b32 s3, v8")
    a(f"v_lshlrev_b32 {vLin}, 4, {vLane}")
    a(f"v_bfe_u32 v8, {vLane}, 1, 1\nv_lshlrev_b32 v8, 10, v8\nv_bfe_u32 v9, {vLane}, 2, 2\nv_lshl_add_u32 v8, v9, 8, v8")
    a(f"v_lshrrev_b32 v9, 4, {vLane}\nv_lshl_add_u32 v8, v9, 5, v8\nv_and_b32 v9, 1, {vLane}\nv_lshl_add_u32 {vKoff}, v9, 4, v8")
    a(f"v_mov_b32 {vMask}, 0xffffff00")
    gsh = o["gsh"]
    if gsh == 0:
        a(f"s_and_b32 {sG}, s2, 3\ns_lshr_b32 {sS}, s2, 2")
    else:
        a(f"s_bfe_u32 {sG}, s2, {0x20000 | gsh}\ns_lshr_b32 {sS}, s2, {gsh+2}\ns_lshl_b32 {sS}, {sS}, {gsh}\ns_and_b32 {sT0}, s2, {(1<<gsh)-1}\ns_or_b32 {sS}, {sS}, {sT0}")
    if o["xa"]:
        a(f"s_lshr_b32 {sA}, s2, 5\ns_lshl_b32 {sA}, {sA}, 3\ns_and_b32 {sB}, s2, 7\ns_or_b32 {sA}, {sA}, {sB}\ns_bfe_u32 {sB}, s2, 0x20003")
    else:
        a(f"s_mov_b32 {sA}, {sS}\ns_mov_b32 {sB}, {sG}")
    a(f"s_mov_b32 {sPL}, 0x05040100\ns_mov_b32 {sPH}, 0x07060302\ns_mov_b32 {sHI}, 0xffff0000")
    a(f"s_mov_b32 {sSC}, {f32(128 ** -0.5)}\ns_mov_b32 {sL2E}, {f32(1.4426950408889634)}\ns_mov_b32 {s80}, 0x80")
    a(f"s_mov_b32 s60, 0xffff0000\ns_mov_b32 s61, 0xffff0000")
    a(f"s_lshl_b32 {sT0}, {sS}, 3\ns_add_u32 {sT0}, {sT0}, s3\ns_lshl_b32 {sT0}, {sT0}, 12\ns_lshl_b32 {sT1}, {sG}, 24\ns_add_u32 {sKo}, {sT0}, {sT1}\ns_mov_b32 {sVo}, {sKo}")
    a(f"v_lshrrev_b32 v9, 4, {vLane}\nv_and_b32 v8, 15, {vLane}\nv_lshlrev_b32 v8, 4, v8\nv_lshl_add_u32 v10, v9, 15, v8")
    a(f"v_lshlrev_b32 v11, 3, v9\nv_lshlrev_b32 v12, 5, {vLane}")
    a("s_waitcnt lgkmcnt(0)")
    if o["hack"] & 16: stamp("karg")
    def srd(base, p, size):
        a(f"s_mov_b32 s{base}, s{p}\ns_and_b32 s{base+1}, s{p+1}, 0xffff\ns_mov_b32 s{base+2}, {size}\ns_mov_b32 s{base+3}, 0x20000")
    srd(20, 64, 2048); srd(24, 70, 8 << 20); srd(8, 66, 64 << 20)
    XR = PT
    ix0 = a.vm(f"buffer_load_dwordx4 {r4(XR)}, v12, {sX}, 0 offen")
    ix1 = a.vm(f"buffer_load_dwordx4 {r4(XR+4)}, v12, {sX}, 0 offen offset:16")
    E = o["qe"]
    qm = o["qmap"]
    if E == 8:
        a(f"s_lshr_b32 s95, s2, {qm+5}\ns_lshl_b32 s95, s95, {qm}\ns_and_b32 {sT0}, s2, {(1<<qm)-1}\ns_or_b32 s95, s95, {sT0}")
        a(f"s_lshl_b32 {sT0}, s95, 3\ns_add_u32 {sT0}, {sT0}, s3")
        a(f"s_bfe_u32 s94, s2, {0x50000 | qm}\ns_lshl_b32 s94, s94, 8")
    else:
        a(f"s_lshr_b32 s95, s2, 6\ns_lshl_b32 s95, s95, 4\ns_add_u32 s95, s95, s3")
        a(f"s_and_b32 {sT1}, s2, 1\ns_mul_i32 {sT0}, {sT1}, {E}\ns_add_u32 {sT0}, {sT0}, s95")
        a(f"s_mul_i32 {sT1}, {sT1}, s3\ns_cmp_ge_u32 {sT1}, {16-E}\ns_cselect_b32 {sT0}, 64, {sT0}")
        a(f"s_add_u32 s95, s95, 8\ns_and_b32 {sT1}, s2, 1\ns_lshl_b32 {sT1}, {sT1}, 3\ns_add_u32 {sT1}, {sT1}, s3\ns_cmp_ge_u32 {sT1}, {E-8}\ns_cselect_b32 s95, 64, s95")
        a(f"s_bfe_u32 s94, s2, 0x50001\ns_lshl_b32 s94, s94, 8")
    a(f"s_lshl_b32 {sT1}, {sT0}, 5")
    ix2 = a.vm(f"buffer_load_dwordx2 {r2(XR+8)}, v11, {sX}, {sT1} offen")
    if E != 8:
        a(f"s_lshl_b32 {sT1}, s95, 5")
        ix2 = a.vm(f"buffer_load_dwordx2 {r2(XR+10)}, v11, {sX}, {sT1} offen")
    a(f"s_lshl_b32 {sT0}, {sT0}, 17\ns_add_u32 {sT0}, {sT0}, s94")
    for i in range(4):
        iwq = a.vm(f"buffer_load_dwordx4 {r4(slot(32+i))}, v10, {sWQ}, {sT0} offen nt")
        if i < 3: a(f"s_add_u32 {sT0}, {sT0}, 8192")
    if E != 8:
        a(f"s_lshl_b32 {sT0}, s95, 17\ns_add_u32 {sT0}, {sT0}, s94")
        for i in range(4):
            iwq2 = a.vm(f"buffer_load_dwordx4 {r4(slot(36+i))}, v10, {sWQ}, {sT0} offen nt")
            if i < 3: a(f"s_add_u32 {sT0}, {sT0}, 8192")
    kidx = {}
    def kload(k):
        kidx[k] = a.vm(f"buffer_load_dwordx4 {r4(slot(k))}, {vKoff}, {sK}, {sKo} offen offset:{(k%2)*128 + ((k%4)//2)*2048} nt")
        if k % 4 == 3: a(f"s_add_u32 {sKo}, {sKo}, 0x200000")
    K0 = o.get("k0", D)
    if o["qbar"]: a("s_barrier")
    for k in range(K0): kload(k)
    if o["hack"] & 16: stamp("kiss")
    srd(12, 68, 64 << 20); srd(16, 84, 256 << 20); srd(28, 72, 8 << 20); srd(32, 76, 7 << 20); srd(36, 78, 7 << 20); srd(40, 80, 2048); srd(44, 82, 256)
    a(f"s_load_dword {sEp}, s[84:85], {WS_EPOCH}")
    if o["stamps"] == 3: a(f"s_load_dword s97, s[84:85], {WS_EPOCH+4}\ns_waitcnt lgkmcnt(0)\ns_xor_b32 s97, s97, {sEp}")
    a.wait_vm(ix1)
    if o["hack"] & 16: stamp("xgot")
    XF = ACC
    for i in range(8):
        a(f"v_lshlrev_b32 v{XF+2*i}, 16, v{XR+i}\nv_and_b32 v{XF+2*i+1}, {sHI}, v{XR+i}")
    ln_stats(XF, vt[0], vt[1], vt[2], vt[3])
    a(f"v_readfirstlane_b32 {sMX}, {vt[2]}")
    def kmore(n):
        for _ in range(n): kload(len(kidx))
    kmore(o["y0"])
    a.wait_vm(ix2)
    a(f"v_lshlrev_b32 v48, 16, v{XR+8}\nv_and_b32 v49, {sHI}, v{XR+8}\nv_lshlrev_b32 v50, 16, v{XR+9}\nv_and_b32 v51, {sHI}, v{XR+9}")
    ln_apply(48, 52, vt[0], vt[1])
    a(f"v_mov_b32 v16, v52\nv_mov_b32 v17, v53")
    if E != 8:
        a(f"v_lshlrev_b32 v48, 16, v{XR+10}\nv_and_b32 v49, {sHI}, v{XR+10}\nv_lshlrev_b32 v50, 16, v{XR+11}\nv_and_b32 v51, {sHI}, v{XR+11}")
        ln_apply(48, 18, vt[0], vt[1])
    a.wait_vm(iwq)
    stamp("wq")
    kmore(o["y1"])
    wtrans(slot(32), PT)
    if E == 8:
        gemv(16, PT, ACC, 20, tag=False)
    else:
        for t in range(8): a(f"v_mfma_f32_16x16x16_bf16 {r4(ACC+4*t)}, {r2(16)}, {r2(PT+2*t)}, 0")
        a("s_cmp_eq_u32 s95, 64\ns_cbranch_scc1 L_q1")
        a(f"s_waitcnt vmcnt({a.nvm - iwq2 - 1})\ns_nop 4")
        wtrans(slot(36), PT)
        for t in range(8): a(f"v_mfma_f32_16x16x16_bf16 {r4(ACC+4*t)}, {r2(18)}, {r2(PT+2*t)}, {r4(ACC+4*t)}")
        a.label("L_q1")
        for q in range(4): a(f"v_cndmask_b32 v{20+q}, v{ACC+4*q}, v{ACC+4*(q+4)}, {sM4}")
    a(f"v_and_b32 v8, 15, {vLane}\nv_lshlrev_b32 v8, 5, v8\nv_bfe_u32 v9, {vLane}, 4, 1\nv_lshl_add_u32 v8, v9, 4, v8")
    a(f"s_lshl_b32 {sT0}, s3, 9\nv_add_u32 v8, {sT0}, v8")
    a(f"ds_write_b128 v8, {r4(20)} offset:{L_QRED}")
    kmore(o["y2"])
    a(f"s_waitcnt lgkmcnt(0)\ns_add_u32 {sEp}, {sEp}, 1\ns_and_b32 {sTag8}, {sEp}, 0xff\ns_and_b32 {sTag16}, {sEp}, 0xffff\ns_and_b32 {sTag2}, {sEp}, 3")
    a("s_barrier")
    kmore(o["y3"])
    a("s_cmp_lg_u32 s3, 0\ns_cbranch_scc1 L_noq")
    a(f"v_and_b32 v8, 0x1f0, {vLin}")
    for i in range(8): a(f"ds_read_b128 {r4(ACC+4*i)}, v8 offset:{L_QRED + 512*i}")
    a("s_waitcnt lgkmcnt(0)")
    for i in range(1, 8):
        for q in range(4): a(f"v_add_f32 v{ACC+q}, v{ACC+q}, v{ACC+4*i+q}")
    if E == 8:
        a(f"s_lshl_b32 {sT0}, s94, 4\ns_lshl_b32 {sT1}, s95, 9\ns_add_u32 {sT0}, {sT0}, {sT1}\ns_add_u32 {sT0}, {sT0}, {WS_QP}")
    else:
        a(f"s_lshl_b32 {sT0}, s94, 4\ns_lshr_b32 {sT1}, s2, 6\ns_lshl_b32 {sT1}, {sT1}, 10\ns_add_u32 {sT0}, {sT0}, {sT1}\ns_and_b32 {sT1}, s2, 1\ns_lshl_b32 {sT1}, {sT1}, 9\ns_add_u32 {sT0}, {sT0}, {sT1}\ns_add_u32 {sT0}, {sT0}, {WS_QP}")
    a("s_mov_b32 exec_hi, 0")
    for q in range(4): a(f"v_and_b32 v{ACC+q}, -4, v{ACC+q}\nv_or_b32 v{ACC+q}, {sTag2}, v{ACC+q}")
    a(f"buffer_store_dwordx4 {r4(ACC)}, v8, {sWS}, {sT0} offen sc1")
    a("s_mov_b64 exec, -1")
    a.label("L_noq")
    stamp("qpub")
    QL = S0
    for k in range(len(kidx), 32):
        pace(D)
        if o["hack"] & 32 and k in (8, 10, 12, 16, 20): stamp(f"k{k-D}")
        kload(k)
        if k == o["qload_pos"]:
            a(f"s_lshl_b32 {sT0}, {sG}, 3\ns_add_u32 {sT0}, {sT0}, s3\ns_lshl_b32 {sT2}, {sT0}, 12\ns_add_u32 {sT2}, {sT2}, {WS_QP}")
            for i in range(4):
                a.pace(D); iq = a.vm(f"buffer_load_dwordx4 {r4(QL+4*i)}, {vLin}, {sWS}, {sT2} offen offset:{1024*i} sc1")
        if k == o["qproc_pos"]:
            a.wait_vm(iq)
            poll([f"buffer_load_dwordx4 {r4(QL+4*i)}, {vLin}, {sWS}, {sT2} offen offset:{1024*i} sc1" for i in range(4)], (list(range(QL, QL+16)), sTag2, "3"), first=False)
            for q in range(16): a(f"v_and_b32 v{QL+q}, -4, v{QL+q}")
            for q in range(4):
                a(f"v_add_f32 v{QL+q}, v{QL+q}, v{QL+4+q}\nv_add_f32 v{QL+8+q}, v{QL+8+q}, v{QL+12+q}")
            for q in range(4): a(f"v_add_f32 v{QL+q}, v{QL+q}, v{QL+8+q}")
            for q in range(4): a(f"v_mov_b32 v{QL+4+q}, v{QL+q}")
            for q in range(4): a(f"v_permlane32_swap_b32 v{QL+4+q}, v{QL+q}")
            for q in range(4): a(f"v_add_f32 v{QL+q}, v{QL+q}, v{QL+4+q}")
            a(f"v_cvt_pk_bf16_f32 v{QL+8}, v{QL}, v{QL+1}\nv_cvt_pk_bf16_f32 v{QL+9}, v{QL+2}, v{QL+3}")
            a(f"v_and_b32 v8, 31, {vLane}\nv_lshlrev_b32 v8, 3, v8\ns_lshl_b32 {sT0}, s3, 8\nv_add_u32 v8, {sT0}, v8")
            a(f"ds_write_b64 v8, {r2(QL+8)} offset:{L_QF}")
            barrier()
            a(f"v_and_b32 v8, 7, {vLane}\nv_lshlrev_b32 v8, 8, v8\nv_lshrrev_b32 v9, 4, {vLane}\nv_lshl_add_u32 v8, v9, 5, v8\nv_bfe_u32 v9, {vLane}, 3, 1\nv_lshl_add_u32 v8, v9, 4, v8")
            a(f"ds_read_b128 {r4(PT)}, v8 offset:{L_QF}\nds_read_b128 {r4(PT+4)}, v8 offset:{L_QF+128}")
            stamp("qready")
    seq = [("w", n) for n in range(4)] if not o["wolate"] else []
    if not o["w1late"]: seq += [("w", n) for n in range(4, 8)]
    if not o["w2late"]: seq += [("w", n) for n in range(8, 12)]
    seq += [("v", i) for i in range(32)]
    order = list(range(32, 44)) + list(range(32))
    place = {e: order[k] for k, e in enumerate(seq)}
    rest = order[len(seq):]
    for n in range(12):
        if ("w", n) not in place: place[("w", n)] = rest.pop(0)
    if o["wolate"] == 1: seq += [("w", n) for n in range(4)]
    def vslot(i): return place[("v", i)]
    def wsl(m): return slot(place[("w", 4*m)])
    widx = {}
    def wsetup():
        a(f"v_lshrrev_b32 v9, 4, {vLane}\nv_and_b32 v8, 15, {vLane}\nv_lshlrev_b32 v8, 4, v8\nv_lshl_add_u32 v12, v9, 13, v8")
        a(f"v_mul_u32_u24 v9, {4*7168}, v9\nv_add_u32 v13, v9, v8")
        a(f"s_lshl_b32 s64, {sA}, 17\ns_lshr_b32 {sT0}, s3, 1\ns_lshl_b32 {sT0}, {sT0}, 15\ns_add_u32 s64, s64, {sT0}")
        a(f"s_lshl_b32 {sT0}, {sB}, 9\ns_add_u32 s64, s64, {sT0}\ns_and_b32 {sT0}, s3, 1\ns_lshl_b32 {sT0}, {sT0}, 8\ns_add_u32 s64, s64, {sT0}\ns_mov_b32 s66, s64")
        a(f"s_mul_i32 s69, {sB}, 7\ns_add_u32 s69, s69, s3")
        a(f"s_mul_i32 s65, {sA}, {16*7168}\ns_lshl_b32 {sT0}, s69, 8\ns_add_u32 s65, s65, {sT0}")
        a(f"s_cmp_eq_u32 s3, 7\ns_cselect_b32 s65, 0x7000000, s65")
    def wload(n):
        m, i = n // 4, n % 4
        srd_, vo, sb, st = [(sWO, "v12", "s64", 2048), (sW1, "v13", "s65", 7168), (sW2, "v12", "s66", 2048)][m]
        widx[n] = a.vm(f"buffer_load_dwordx4 {r4(slot(place[('w', n)]))}, {vo}, {srd_}, {sb} offen nt")
        if i < 3: a(f"s_add_u32 {sb}, {sb}, {st}")
    vidx = {}
    def vload(i):
        vidx[i] = a.vm(f"buffer_load_dwordx4 {r4(slot(vslot(i)))}, {vLin}, {sV}, {sVo} offen offset:{(i%4)*1024} nt")
        if i % 4 == 3: a(f"s_add_u32 {sVo}, {sVo}, 0x200000")
    wsetup()
    def issue(n):
        for _ in range(n):
            kind, i = seq.pop(0)
            pace(o["dl"] if len(vidx) >= o["dlpos"] else D)
            (vload if kind == "v" else wload)(i)
    def issue_np(n):
        for _ in range(n):
            kind, i = seq.pop(0)
            (vload if kind == "v" else wload)(i)
    issue(D)
    a.wait_vm(kidx[31])
    stamp("kdone")
    a("s_waitcnt lgkmcnt(0)")
    for half in range(2):
        for jj in range(8):
            j = half * 8 + jj
            a(f"v_mfma_f32_16x16x32_bf16 {r4(ACC+4*jj)}, {r4(slot(2*j))}, {r4(PT)}, 0")
        for jj in range(8):
            j = half * 8 + jj
            a(f"v_mfma_f32_16x16x32_bf16 {r4(ACC+4*jj)}, {r4(slot(2*j+1))}, {r4(PT+4)}, {r4(ACC+4*jj)}")
        for jj in range(8):
            j = half * 8 + jj; d = ACC + 4 * jj
            a(f"v_add_f32_dpp v{S0+j}, v{d+1}, v{d} row_ror:8 row_mask:0xf bank_mask:0x3")
        for jj in range(8):
            j = half * 8 + jj; d = ACC + 4 * jj
            a(f"v_add_f32_dpp v{S0+j}, v{d+2}, v{d+3} row_ror:8 row_mask:0xf bank_mask:0xc")
        issue_np(o["x1"] if half == 0 else o["x2"])
    for j in range(0, 16, 2):
        x, y = f"v{S0+j}", f"v{S0+j+1}"
        a(f"v_cvt_pk_bf16_f32 v8, {x}, {y}\nv_lshlrev_b32 {x}, 16, v8\nv_and_b32 {y}, {sHI}, v8")
        a(f"v_mul_f32 {x}, {sSC}, {x}\nv_mul_f32 {y}, {sSC}, {y}")
        a(f"v_cvt_pk_bf16_f32 v8, {x}, {y}\nv_lshlrev_b32 {x}, 16, v8\nv_and_b32 {y}, {sHI}, v8")
    a(f"v_max3_f32 {vMw}, v{S0}, v{S0+1}, v{S0+2}")
    for j in range(3, 15, 2): a(f"v_max3_f32 {vMw}, {vMw}, v{S0+j}, v{S0+j+1}")
    a(f"v_max_f32 {vMw}, {vMw}, v{S0+15}")
    red_rows("v_max_f32", vMw, "v8")
    issue_np(o["x3"])
    for j in range(16): a(f"v_sub_f32 v{S0+j}, v{S0+j}, {vMw}")
    for j in range(16): a(f"v_mul_f32 v{S0+j}, {sL2E}, v{S0+j}")
    for j in range(16): a(f"v_exp_f32 v{S0+j}, v{S0+j}")
    a(f"v_add_f32 v11, v{S0}, v{S0+1}")
    for j in range(2, 16): a(f"v_add_f32 v11, v11, v{S0+j}")
    red_rows("v_add_f32", "v11", "v8")
    a(f"v_mov_b32 v10, {vMw}")
    a(f"v_and_b32 v8, 7, {vLane}\nv_lshlrev_b32 v8, 3, v8\ns_lshl_b32 {sT0}, s3, 6\nv_add_u32 v8, {sT0}, v8")
    a(f"ds_write_b64 v8, v[10:11] offset:{L_ML}")
    issue_np(o["x4"])
    barrier()
    issue_np(o["x5"])
    a("s_cmp_lg_u32 s3, 0\ns_cbranch_scc1 L_noml")
    a(f"v_lshlrev_b32 v8, 3, {vLane}\nds_read_b64 v[10:11], v8 offset:{L_ML}\ns_waitcnt lgkmcnt(0)")
    a("v_mov_b32 v9, v10")
    red_rows("v_max_f32", "v9", "v8")
    a(f"v_sub_f32 v10, v10, v9\nv_mul_f32 v10, {sL2E}, v10\nv_exp_f32 v10, v10\nv_mul_f32 v11, v11, v10")
    red_rows("v_add_f32", "v11", "v8")
    a(f"v_or_b32 v10, {sTag16}, v9\nv_and_or_b32 v11, v11, {vMask}, {sTag8}")
    a(f"v_lshlrev_b32 v8, 9, {vLane}\ns_lshl_b32 {sT0}, {sG}, 12\ns_lshl_b32 {sT1}, {sS}, 3\ns_add_u32 {sT0}, {sT0}, {sT1}\ns_add_u32 {sT0}, {sT0}, {WS_ML}")
    a("s_mov_b64 exec, 0xff")
    a(f"buffer_store_dwordx2 v[10:11], v8, {sWS}, {sT0} offen sc1")
    a("s_mov_b64 exec, -1")
    a.label("L_noml")
    stamp("mlpub")
    def pv(u):
        for dp in range(4):
            tb = PT + 8 * (dp & 1)
            for b in range(2):
                for j in range(4):
                    a(f"v_perm_b32 v{tb+4*b+j}, v{slot(vslot(8*u+2*j+1))+dp}, v{slot(vslot(8*u+2*j))+dp}, {sPH if b else sPL}")
            for b in range(2):
                t = 2 * dp + b
                c = "0" if u == 0 else r4(ACC + 4 * t)
                a(f"v_mfma_f32_16x16x32_bf16 {r4(ACC+4*t)}, {r4(S0+4*u)}, {r4(tb+4*b)}, {c}")
    def pvh(u, h):
        for dp in range(4):
            tb = PT + 8 * (dp & 1) + 4 * h * 0
            for b in range(2):
                for j in range(2):
                    jj = 2 * h + j
                    a(f"v_perm_b32 v{tb+2*b+j}, v{slot(vslot(8*u+2*jj+1))+dp}, v{slot(vslot(8*u+2*jj))+dp}, {sPH if b else sPL}")
            for b in range(2):
                t = 2 * dp + b
                a(f"v_mfma_f32_16x16x16_bf16 {r4(ACC+4*t)}, {r2(S0+4*u+2*h)}, {r2(tb+2*b)}, {r4(ACC+4*t)}")
    pvdone = 0; fready = False; iml = None; rsdone = False; irs = None
    Y = 26
    SPARE = slot(vslot(0))
    RSK, XK = SPARE, SPARE + 4
    vA4, vA8 = "v2", "v6"
    a(f"v_lshrrev_b32 v14, 4, {vLane}\nv_lshlrev_b32 v14, 4, v14\nv_and_b32 v8, 3, {vLane}\nv_lshl_add_u32 {vA4}, v8, 6, v14\nv_and_b32 v8, 7, {vLane}\nv_lshl_add_u32 {vA8}, v8, 6, v14")
    a(f"s_lshl_b32 s72, {sA}, 11\ns_lshr_b32 {sT0}, s3, 1\ns_lshl_b32 {sT0}, {sT0}, 9\ns_add_u32 s72, s72, {sT0}\ns_add_u32 s72, s72, {WS_RS}")
    while seq:
        issue(1)
        nv = len(vidx)
        if not o["wolate"] and not rsdone and a.done > widx[3]:
            assert not fready
            a("v_mov_b32 v8, 0x3f803f80")
            for i in range(4): a(f"v_mov_b32 v{ACC+i}, 0")
            for d in range(4):
                for i in range(4): a(f"v_dot2_f32_bf16 v{ACC+i}, v{wsl(0)+4*i+d}, v8, v{ACC+i}")
            for k in (8, 4, 2, 1):
                for i in range(4): a(f"v_add_f32_dpp v{ACC+i}, v{ACC+i}, v{ACC+i} row_ror:{k} row_mask:0xf bank_mask:0xf")
            for i in range(4): a(f"v_and_or_b32 v{ACC+i}, v{ACC+i}, {vMask}, {sTag8}")
            a(f"s_lshl_b32 {sT0}, {sB}, 1\ns_and_b32 {sT1}, s3, 1\ns_add_u32 {sT0}, {sT0}, {sT1}\ns_lshl_b32 {sT0}, {sT0}, 6\ns_add_u32 {sT0}, {sT0}, s72")
            a("s_mov_b32 exec_lo, 0x10001\ns_mov_b32 exec_hi, 0x10001")
            a.pace(D); a.vm(f"buffer_store_dwordx4 {r4(ACC)}, {vA4}, {sWS}, {sT0} offen sc1")
            a("s_mov_b64 exec, -1")
            rsdone = True
        if iml is None and nv > o["ml_pos"]:
            a(f"v_lshlrev_b32 v8, 3, {vLane}\ns_lshl_b32 {sT0}, {sG}, 3\ns_add_u32 {sT0}, {sT0}, s3\ns_lshl_b32 s70, {sT0}, 9\ns_add_u32 s70, s70, {WS_ML}")
            a.pace(D); iml = a.vm(f"buffer_load_dwordx2 v[10:11], v8, {sWS}, s70 offen sc1")
        if iml is not None and not fready and (a.done > iml or not seq):
            a.wait_vm(iml)
            a(f"v_xor_b32 v14, {sTag16}, v10\nv_and_b32 v14, 0xffff, v14\nv_xor_b32 v9, {sTag8}, v11\nv_and_b32 v9, 0xff, v9\nv_or_b32 v14, v14, v9")
            a("v_cmp_ne_u32 vcc, 0, v14\ns_cbranch_vccz L_mlok")
            a(f"s_mov_b32 {sCnt}, 0")
            a.label("L_mlspin")
            a(f"buffer_load_dwordx2 v[10:11], v8, {sWS}, s70 offen sc1\ns_waitcnt vmcnt(0)")
            a(f"s_add_u32 {sCnt}, {sCnt}, 1\ns_cmp_gt_u32 {sCnt}, 0x80000\ns_cbranch_scc1 L_end")
            a(f"v_xor_b32 v14, {sTag16}, v10\nv_and_b32 v14, 0xffff, v14\nv_xor_b32 v9, {sTag8}, v11\nv_and_b32 v9, 0xff, v9\nv_or_b32 v14, v14, v9")
            a("v_cmp_ne_u32 vcc, 0, v14\ns_cbranch_vccnz L_mlspin")
            a.label("L_mlok")
            a(f"v_and_b32 v10, {sHI}, v10\nv_and_or_b32 v11, v11, {vMask}, {s80}\nv_mov_b32 v9, v10")
            red64("v_max_f32", "v9", "v8")
            a(f"v_sub_f32 v10, v10, v9\nv_mul_f32 v10, {sL2E}, v10\nv_exp_f32 v10, v10\nv_mul_f32 v11, v11, v10")
            red64("v_add_f32", "v11", "v8")
            a(f"v_rcp_f32 v11, v11\nv_mov_b32 v10, v9\ns_lshl_b32 {sT0}, s3, 3\nv_mov_b32 v8, {sT0}")
            a(f"ds_write_b64 v8, v[10:11] offset:{L_MLG}")
            issue(min(o["f0"], len(seq)))
            barrier()
            issue(min(o["f1"], len(seq)))
            a(f"v_and_b32 v8, 7, {vLane}\nv_lshlrev_b32 v8, 3, v8\nds_read_b64 v[10:11], v8 offset:{L_MLG}\ns_waitcnt lgkmcnt(0)")
            a(f"v_sub_f32 v10, {vMw}, v10\nv_mul_f32 v10, {sL2E}, v10\nv_exp_f32 v10, v10\nv_mul_f32 v10, v10, v11")
            a(f"v_bfe_u32 v9, {vLane}, 3, 1\nv_cmp_eq_u32 vcc, 1, v9\nv_mov_b32 v9, 0xffff\nv_mov_b32 v8, {sHI}\nv_cndmask_b32 v9, v9, v8, vcc")
            for j in range(16): a(f"v_mul_f32 v{S0+j}, v{S0+j}, v10")
            for j in range(16): a(f"v_cvt_pk_bf16_f32 v{S0+j}, v{S0+j}, v{S0+j}")
            for j in range(16): a(f"v_and_b32 v{S0+j}, v{S0+j}, v9")
            issue(min(o["f2"], len(seq)))
            fready = True
            stamp("fready")
        while fready and pvdone < 4 and (8 * pvdone + 7) in vidx and a.done > vidx[8 * pvdone + 7]:
            pv(pvdone); pvdone += 1
            if pvdone == 2:
                if not o["wolate"]:
                    a.pace(D); irs = a.vm(f"buffer_load_dwordx4 {r4(RSK)}, {vA8}, {sWS}, s72 offen sc1")
                a(f"v_lshrrev_b32 v8, 4, {vLane}\nv_lshlrev_b32 v8, 3, v8\ns_lshl_b32 {sT0}, {sA}, 5")
                a.pace(D); ixr = a.vm(f"buffer_load_dwordx2 {r2(XK)}, v8, {sX}, {sT0} offen")
            if o["pv1"] and (seq or pvdone >= 2): break
    for n in range(4, 4 + {2: 4, 3: 2, 4: 1}.get(o["w1at"], 0)): wload(n)
    vRW, vOW, vH1, vPub4, vRP, vAO, vRB = "v9", "v10", "v11", "v5", "v7", "v30", "v31"
    G0, AO = 16, 24
    HK = SPARE + 8
    vLR = f"v{SPARE+13}" if o["pairl"] == 2 else vLin
    vP4L, vP4S = f"v{SPARE+12}", f"v{SPARE+13}"
    TW = SPARE + 16
    DR = ACC
    def q16(b, lb):
        a(f"v_permlane32_swap_b32 v{b}, v{b+1}\nv_permlane32_swap_b32 v{b+2}, v{b+3}")
        a(f"v_add_f32 v{b}, v{b}, v{b+1}\nv_add_f32 v{b+2}, v{b+2}, v{b+3}")
        a(f"v_permlane16_swap_b32 v{b}, v{b+2}\nv_add_f32 v{b}, v{b}, v{b+2}")
        for k in (4, 8): a(f"v_add_f32_dpp v{b}, v{b}, v{b} row_ror:{k} row_mask:0xf bank_mask:0xf")
        a(f"ds_write_b32 {vRW}, v{b} offset:{lb}")
    def dppsum(regs, n):
        for pat in ("quad_perm:[1,0,3,2]", "quad_perm:[2,3,0,1]", "row_half_mirror")[:n]:
            for r in regs: a(f"v_add_f32_dpp v{r}, v{r}, v{r} {pat} row_mask:0xf bank_mask:0xf")
    def dppsel(regs, n, t):
        pats = ("quad_perm:[1,0,3,2]", "quad_perm:[2,3,0,1]", "row_ror:4")[:n]
        for pat in pats[:-1]:
            for r in regs: a(f"v_add_f32_dpp v{r}, v{r}, v{r} {pat} row_mask:0xf bank_mask:0xf")
        for b, r in enumerate(regs): a(f"v_add_f32_dpp v{t}, v{r}, v{r} {pats[-1]} row_mask:0xf bank_mask:{1 << b}")
    def quadsum(t):
        for pat in ("quad_perm:[1,0,3,2]", "quad_perm:[2,3,0,1]"):
            a(f"v_add_f32_dpp v{t}, v{t}, v{t} {pat} row_mask:0xf bank_mask:0xf")
    def bcast4(d, t):
        for q in range(4): a(f"v_mov_b32_dpp v{d+q}, v{t} row_newbcast:{4*q} row_mask:0xf bank_mask:0xf")
    def unpack4(d, p):
        a(f"v_lshlrev_b32 v{d}, 16, v{p}\nv_and_b32 v{d+1}, {sHI}, v{p}\nv_lshlrev_b32 v{d+2}, 16, v{p+1}\nv_and_b32 v{d+3}, {sHI}, v{p+1}")
    def pack4(p, d):
        a(f"v_cvt_pk_bf16_f32 v{p}, v{d}, v{d+1}\nv_cvt_pk_bf16_f32 v{p+1}, v{d+2}, v{d+3}")
    def ldx4(r, vo, so, off=0): return f"buffer_load_dwordx4 {r4(r)}, {vo}, {sWS}, {so} offen offset:{off} sc1"
    R8 = list(range(G0, G0+8)); R4_ = list(range(G0, G0+4))
    def latew(m, upto=4):
        for n in range(4*m, 4*m+upto):
            if n not in widx: wload(n)
    def wl4(m):
        for n in range(4*m, 4*m+4): wload(n)
    def unless_early(f, lab_):
        a(f"s_cmp_lg_u32 s93, 0\ns_cbranch_scc1 {lab_}"); f(); a.label(lab_)
    M4 = o["m4"] and o["one"] == 2
    A4 = HK
    def mfma8(A, T):
        if M4:
            a(f"s_mov_b64 exec, s[86:87]"); pack4(A4, G0)
            a(f"s_mov_b64 exec, s[88:89]"); pack4(A4+2, G0)
            a("s_mov_b64 exec, -1")
            for t in range(4): a(f"v_mfma_f32_16x16x32_bf16 {r4(DR+4*t)}, {r4(A4)}, {r4(T+4*t)}, 0")
            return
        pack4(AO, G0)
        for t in range(8): a(f"v_mfma_f32_16x16x16_bf16 {r4(DR+4*t)}, {r2(A)}, {r2(T+2*t)}, 0")
    def sel4(tag):
        if M4:
            for q in range(4): a(f"v_and_or_b32 v{Y+q}, v{DR+4*q}, {vMask}, {sTag8}" if tag else f"v_mov_b32 v{Y+q}, v{DR+4*q}")
            return
        for q in range(4): a(f"v_cndmask_b32 v{Y+q}, v{DR+4*q}, v{DR+4*(q+4)}, {sM4}")
        if tag:
            for q in range(4): a(f"v_and_or_b32 v{Y+q}, v{Y+q}, {vMask}, {sTag8}")
    def big_reduce(lb):
        strip(R8)
        for q in range(4): a(f"v_add_f32 v{G0+q}, v{G0+q}, v{G0+4+q}")
        a(f"v_permlane32_swap_b32 v{G0}, v{G0+1}\nv_permlane32_swap_b32 v{G0+2}, v{G0+3}")
        a(f"v_add_f32 v{G0}, v{G0}, v{G0+1}\nv_add_f32 v{G0+2}, v{G0+2}, v{G0+3}\nv_permlane16_swap_b32 v{G0}, v{G0+2}\nv_add_f32 v{G0}, v{G0}, v{G0+2}")
        a(f"ds_write_b32 {vRP}, v{G0} offset:{lb}")
    def cu_reduce_pub(lb, sdst, lab_, extra=None):
        if o["par4"] and o["one"] == 2 and not o["pairl"]:
            a(f"s_cmp_ge_u32 s3, 4\ns_cbranch_scc1 {lab_}")
            if extra: a(f"v_mov_b32 v8, 0\nds_read_b128 {r4(G0)}, v8 offset:{L_SA}")
            a(f"ds_read2st64_b32 {r2(ACC)}, {vP4L} offset0:{lb // 256} offset1:{lb // 256 + 4}\nds_read2st64_b32 {r2(ACC+2)}, {vP4L} offset0:{lb // 256 + 8} offset1:{lb // 256 + 12}")
            if extra:
                a(f"s_waitcnt lgkmcnt(2)\nv_add_f32 v{G0}, v{G0}, v{G0+1}\nv_add_f32 v{G0+2}, v{G0+2}, v{G0+3}\nv_add_f32 v{G0}, v{G0}, v{G0+2}\nv_bfe_u32 v{G0}, v{G0}, {vP4S}, 8")
                a(f"v_mov_b32 v8, {sTag8}\nv_cndmask_b32 v{G0}, v8, v{G0}, s[94:95]")
            a(f"s_waitcnt lgkmcnt(0)\nv_add_f32 v{ACC}, v{ACC}, v{ACC+1}\nv_add_f32 v{ACC+2}, v{ACC+2}, v{ACC+3}\nv_add_f32 v{ACC}, v{ACC}, v{ACC+2}")
            a(f"v_and_or_b32 v{ACC}, v{ACC}, {vMask}, " + (f"v{G0}" if extra else sTag8))
            a(f"buffer_store_dword v{ACC}, {vOW}, {sWS}, {sdst} offen sc1")
            a.label(lab_)
            return
        a(f"s_cmp_lg_u32 s3, 0\ns_cbranch_scc1 {lab_}")
        if extra and o["sarid"]:
            a(f"v_mov_b32 v8, 0\nds_read_b128 {r4(G0)}, v8 offset:{L_SA}")
            for i in range(4): a(f"ds_read_b128 {r4(ACC+4*i)}, {vLR} offset:{lb + 1024*i}")
            a(f"s_waitcnt lgkmcnt(4)\nv_add_f32 v{G0}, v{G0}, v{G0+1}\nv_add_f32 v{G0+2}, v{G0+2}, v{G0+3}\nv_add_f32 v{G0}, v{G0}, v{G0+2}\nv_bfe_u32 v{G0}, v{G0}, {vSh}, 8")
            for i in range(1, 4):
                a(f"s_waitcnt lgkmcnt({3 - i})")
                for q in range(4): a(f"v_add_f32 v{ACC+q}, v{ACC+q}, v{ACC+4*i+q}")
            for q in range(3): a(f"v_and_or_b32 v{ACC+q}, v{ACC+q}, {vMask}, {sTag8}")
            a(f"v_and_or_b32 v{ACC+3}, v{ACC+3}, {vMask}, v{G0}")
            a(f"buffer_store_dwordx4 {r4(ACC)}, {vOW}, {sWS}, {sdst} offen sc1")
            a.label(lab_)
            return
        for i in range(4): a(f"ds_read_b128 {r4(ACC+4*i)}, {vLR} offset:{lb + 1024*i}")
        if extra: a(f"v_mov_b32 v8, 0\nds_read_b128 {r4(G0)}, v8 offset:{L_SA}")
        for i in range(1, 4):
            a(f"s_waitcnt lgkmcnt({3 - i + (1 if extra else 0)})")
            for q in range(4): a(f"v_add_f32 v{ACC+q}, v{ACC+q}, v{ACC+4*i+q}")
        for q in range(4): a(f"v_and_or_b32 v{ACC+q}, v{ACC+q}, {vMask}, {sTag8}")
        a(f"buffer_store_dwordx4 {r4(ACC)}, {vOW}, {sWS}, {sdst} offen sc1")
        if extra: extra()
        a.label(lab_)
    def pub2(base):
        a(f"v_mov_b32 v{Y+2}, {sEp}\nv_mov_b32 v{Y+3}, {sEp}")
        a(f"v_lshlrev_b32 v8, 10, {vLane}\ns_lshl_b32 {sT0}, {sB}, 11\ns_lshl_b32 {sT1}, {sA}, 4\ns_add_u32 {sT0}, {sT0}, {sT1}\ns_add_u32 {sT0}, {sT0}, {base}")
        a("s_mov_b64 exec, 3")
        a(f"buffer_store_dwordx4 {r4(Y)}, v8, {sWS}, {sT0} offen sc1")
    a(f"v_bfe_u32 v14, {vLane}, 4, 1\nv_lshlrev_b32 v8, 3, v14\nv_lshrrev_b32 v14, 5, {vLane}\nv_lshl_add_u32 v8, v14, 2, v8")
    vL4 = f"v{SPARE+6}"; RSS = SPARE + 7
    if o["one"] == 2:
        a(f"v_and_b32 v14, 3, {vLane}\nv_lshl_add_u32 {vRW}, v14, 4, v8\nv_lshlrev_b32 {vRW}, 2, {vRW}\ns_lshl_b32 {sT0}, s3, 2\nv_add_u32 {vRW}, {sT0}, {vRW}")
        a(f"v_and_b32 v14, 15, {vLane}\nv_lshl_add_u32 {vRP}, v14, 4, v8\nv_lshlrev_b32 {vRP}, 3, {vRP}")
        if o["swz"]: a(f"v_lshrrev_b32 v14, 1, v14\nv_add_u32 v14, s3, v14\nv_and_b32 v14, 7, v14\nv_lshl_add_u32 {vRP}, v14, 2, {vRP}")
        else: a(f"v_add_u32 {vRP}, {sT0}, {vRP}")
        a(f"v_lshlrev_b32 {vL4}, 2, {vLane}")
    else:
        a(f"v_and_b32 v14, 3, {vLane}\nv_lshl_add_u32 {vRW}, v14, 4, v8\ns_lshl_b32 {sT0}, s3, 6\nv_add_u32 {vRW}, {sT0}, {vRW}")
        a(f"v_and_b32 v14, 15, {vLane}\nv_lshl_add_u32 {vRP}, v14, 4, v8\ns_mul_i32 {sT0}, s3, {256 + o['lpad']}\nv_add_u32 {vRP}, {sT0}, {vRP}")
    if o["owc"]:
        a(f"v_and_b32 v8, 15, {vLane}\nv_lshlrev_b32 v8, 4, v8\nv_lshrrev_b32 v14, 5, {vLane}\nv_lshl_add_u32 v8, v14, 8, v8\nv_bfe_u32 v14, {vLane}, 4, 1\nv_lshl_add_u32 v8, v14, 9, v8")
    else:
        a(f"v_and_b32 v8, 15, {vLane}\nv_lshlrev_b32 v8, 5, v8\nv_lshrrev_b32 v14, 5, {vLane}\nv_lshl_add_u32 v8, v14, 4, v8\nv_bfe_u32 v14, {vLane}, 4, 1\nv_lshl_add_u32 v8, v14, 9, v8")
    a(f"s_lshl_b32 {sT0}, s3, 12\nv_add_u32 {vOW}, {sT0}, v8")
    if o["owc"]:
        a(f"v_lshrrev_b32 v8, 5, {vLane}\nv_lshlrev_b32 v8, 3, v8\nv_bfe_u32 v14, {vLane}, 3, 1\nv_add_u32 v8, v8, v14\nv_mul_u32_u24 v8, {STB}, v8\nv_and_b32 v14, 7, {vLane}\nv_lshl_add_u32 v8, v14, 5, v8\nv_bfe_u32 v14, {vLane}, 4, 1\nv_lshl_add_u32 {vH1}, v14, 4, v8")
    else:
        a(f"v_lshrrev_b32 v8, 5, {vLane}\nv_lshlrev_b32 v8, 3, v8\nv_bfe_u32 v14, {vLane}, 4, 1\nv_add_u32 v8, v8, v14\nv_mul_u32_u24 v8, {STB}, v8\nv_and_b32 v14, 15, {vLane}\nv_lshl_add_u32 {vH1}, v14, 4, v8")
    a(f"s_mul_i32 s71, {sG}, {16*STB}\ns_mul_i32 {sT0}, s3, {2*STB}\ns_add_u32 s71, s71, {sT0}\ns_lshl_b32 {sT0}, {sS}, 8\ns_add_u32 s71, s71, {sT0}\ns_add_u32 s71, s71, {WS_H1}")
    a(f"v_bfe_u32 v8, {vLane}, 3, 1\nv_mul_u32_u24 v8, {STB}, v8\nv_and_b32 v14, 7, {vLane}\nv_lshl_add_u32 v8, v14, 5, v8\nv_bfe_u32 v14, {vLane}, 4, 1\nv_lshl_add_u32 {vPub4}, v14, 4, v8")
    a(f"s_mul_i32 s73, s69, {2*STB}\ns_lshl_b32 {sT0}, {sA}, 8\ns_add_u32 s73, s73, {sT0}\ns_add_u32 s73, s73, {WS_H4}")
    if o["hack"] & 4:
        a(f"v_bfe_u32 v8, {vLane}, 3, 1\nv_lshlrev_b32 v8, 8, v8\nv_and_b32 v14, 7, {vLane}\nv_lshl_add_u32 v8, v14, 5, v8\nv_bfe_u32 v14, {vLane}, 4, 1\nv_lshl_add_u32 {vPub4}, v14, 4, v8")
        a(f"s_lshr_b32 {sT0}, s2, 3\ns_mul_i32 {sT0}, {sT0}, 7\ns_add_u32 {sT0}, {sT0}, s3\ns_lshl_b32 {sT0}, {sT0}, 1")
        a(f"s_lshr_b32 {sT1}, {sT0}, 6\ns_lshl_b32 {sT1}, {sT1}, 3\ns_and_b32 s73, s2, 7\ns_add_u32 s73, s73, {sT1}\ns_mul_i32 s73, s73, {STB}")
        a(f"s_and_b32 {sT0}, {sT0}, 63\ns_lshl_b32 {sT0}, {sT0}, 8\ns_add_u32 s73, s73, {sT0}\ns_add_u32 s73, s73, {WS_H4}")
    a(f"s_mul_i32 s74, {sA}, {STB}\ns_lshl_b32 {sT0}, s3, 11\ns_add_u32 s74, s74, {sT0}")
    STP = 8192 + o["pads"]
    vGS = f"v{SPARE+12}" if o["pairl"] else vLin
    if o["pairl"]:
        a(f"s_mul_i32 s75, {sB}, {8*STP}\ns_lshl_b32 {sT0}, {sA}, 7\ns_add_u32 s75, s75, {sT0}")
        a(f"s_lshr_b32 {sT0}, {sA}, 4\ns_lshl_b32 {sT0}, {sT0}, 3\ns_and_b32 {sT1}, {sA}, 7\ns_add_u32 {sT0}, {sT0}, {sT1}\ns_mul_i32 s76, {sT0}, {STP}")
        a(f"s_bfe_u32 {sT0}, {sA}, 0x10003\ns_lshl_b32 {sT0}, {sT0}, 6\ns_add_u32 s76, s76, {sT0}\ns_lshl_b32 {sT0}, s3, 11\ns_add_u32 s76, s76, {sT0}")
        a(f"v_lshrrev_b32 v8, 2, {vLane}\nv_lshlrev_b32 v8, 7, v8\nv_and_b32 v14, 3, {vLane}\nv_lshl_add_u32 {vGS}, v14, 4, v8")
    else:
        a(f"s_mul_i32 s75, {sB}, {16*STS}\ns_lshl_b32 {sT0}, {sA}, 6\ns_add_u32 s75, s75, {sT0}")
        a(f"s_mul_i32 s76, {sA}, {STS}\ns_lshl_b32 {sT0}, s3, 10\ns_add_u32 s76, s76, {sT0}")
    a("s_mov_b32 s79, 0")
    a(f"s_and_b32 s77, s2, 7\ns_lshl_b32 s77, s77, 10")
    a.wait_vm(ixr)
    if not o["wolate"]:
        poll([ldx4(RSK, vA8, "s72")], (list(range(RSK, RSK+4)), sTag8, "0xff"), first=False)
        strip(range(RSK, RSK+4))
        dppsum(range(RSK, RSK+4), 3)
    else:
        for q in range(4): a(f"v_mov_b32 v{RSK+q}, 0")
    unpack4(HK, XK)
    HS = SPARE + 14
    if o["one"]:
        for b in range(4): a(f"v_mov_b32_dpp v{HS}, v{HK+b} quad_perm:[0,1,2,3] row_mask:0xf bank_mask:{1 << b}")
    if o["one"] == 2:
        for b in range(4): a(f"v_mov_b32_dpp v{RSS}, v{RSK+b} quad_perm:[0,1,2,3] row_mask:0xf bank_mask:{1 << b}")
    if M4:
        for q in range(4): a(f"v_mov_b32 v{A4+q}, 0")
        a("s_mov_b32 s86, 0x0f0f0f0f\ns_mov_b32 s87, 0x0f0f0f0f\ns_mov_b32 s88, 0xf0f0f0f0\ns_mov_b32 s89, 0xf0f0f0f0")
    vSh = vA8
    if o["sarid"]: a(f"v_and_b32 {vSh}, 3, {vLane}\nv_lshlrev_b32 {vSh}, 3, {vSh}")
    while pvdone < 4:
        if pvdone == 3 and o["pvs"]:
            a.wait_vm(vidx[27]); pvh(3, 0); a.wait_vm(vidx[31]); pvh(3, 1)
        else:
            a.wait_vm(vidx[8 * pvdone + 7]); pv(pvdone)
        pvdone += 1
    stamp("vdone")
    if o["wolate"] == 2: latew(0)
    if o["w1at"]: latew(1)
    for r in range(4):
        for t in range(4):
            a(f"v_permlane32_swap_b32 v{ACC+4*t+r}, v{ACC+4*(t+4)+r}")
        for t in range(4):
            a(f"v_add_f32 v{PT+4*r+t}, v{ACC+4*t+r}, v{ACC+4*(t+4)+r}")
        a(f"ds_write_b128 {vOW}, {r4(PT+4*r)} offset:{L_O + 1024*r}")
    barrier()
    a("s_cmp_ge_u32 s3, 4\ns_cbranch_scc1 L_noh1")
    a(f"s_lshl_b32 {sT0}, s3, 10\nv_add_u32 v8, {sT0}, {vLin}")
    for i in range(8): a(f"ds_read_b128 {r4(ACC+4*i)}, v8 offset:{L_O + 4096*i}")
    for i in range(1, 8):
        a(f"s_waitcnt lgkmcnt({7-i})")
        for q in range(4): a(f"v_add_f32 v{ACC+q}, v{ACC+q}, v{ACC+4*i+q}")
    for q in range(4): a(f"v_and_or_b32 v{ACC+q}, v{ACC+q}, {vMask}, {sTag8}")
    a(f"buffer_store_dwordx4 {r4(ACC)}, {vH1}, {sWS}, s71 offen sc1")
    a.label("L_noh1")
    stamp("h1pub")
    if o["adapt"]: a("s_mov_b32 s93, 0")
    elif 1:
        if o["w1s"]:
            a(("s_cmp_ge_u32 s3, 4" if o["w1s"] == 1 else "s_cmp_lt_u32 s3, 4") + "\ns_cbranch_scc1 L_w1s"); wl4(1); a.label("L_w1s")
        elif o["w1late"]: latew(1, o["w1pre"])
        if o["w2late"]: latew(2, o["w2p0"])
    if not o["wolate"]: wtrans(wsl(0), TW, M4)
    if o["one"] == 2:
        a(f"v_lshlrev_b32 v8, 3, {vLane}\ns_lshr_b32 {sT0}, s3, 1\ns_lshl_b32 {sT0}, {sT0}, 9\nv_add_u32 {vAO}, {sT0}, v8")
    else:
        a(f"v_and_b32 v8, 7, {vLane}\nv_mul_u32_u24 v8, {256 + o['lpad']}, v8\nv_lshrrev_b32 v14, 4, {vLane}\nv_lshl_add_u32 v8, v14, 4, v8\ns_lshr_b32 {sT0}, s3, 1\ns_lshl_b32 {sT0}, {sT0}, 6\nv_add_u32 {vAO}, {sT0}, v8")
    a(f"v_and_b32 v8, 15, {vLane}\nv_lshlrev_b32 v8, 5, v8\nv_bfe_u32 v14, {vLane}, 4, 1\nv_lshl_add_u32 v8, v14, 4, v8\ns_lshl_b32 {sT0}, s3, 9\nv_add_u32 {vRB}, {sT0}, v8")
    if o["pairl"] == 2:
        a(f"v_lshrrev_b32 v8, 3, {vLane}\nv_mul_u32_u24 v8, {STP}, v8\nv_and_b32 v14, 7, {vLane}\nv_lshl_add_u32 {vOW}, v14, 4, v8")
        a(f"v_lshrrev_b32 v8, 3, {vLane}\nv_lshlrev_b32 v8, 6, v8\nv_bfe_u32 v14, {vLane}, 2, 1\nv_lshl_add_u32 v8, v14, 9, v8\nv_and_b32 v14, 3, {vLane}\nv_lshl_add_u32 {vLR}, v14, 4, v8")
    elif o["pairl"]:
        a(f"v_bfe_u32 v8, {vLane}, 2, 3\nv_mul_u32_u24 v8, {STP}, v8\nv_lshrrev_b32 v14, 5, {vLane}\nv_lshl_add_u32 v8, v14, 6, v8\nv_and_b32 v14, 3, {vLane}\nv_lshl_add_u32 {vOW}, v14, 4, v8")
    elif o["par4"] and o["one"] == 2:
        a(f"v_lshrrev_b32 v8, 4, {vLane}\ns_lshl_b32 {sT0}, s3, 2\nv_add_u32 v8, {sT0}, v8\nv_mul_u32_u24 v8, {STS}, v8\nv_and_b32 v14, 15, {vLane}\nv_lshl_add_u32 {vOW}, v14, 2, v8")
        a(f"s_lshl_b32 {sT0}, s3, 8\nv_add_u32 {vP4L}, {sT0}, {vL4}\nv_bfe_u32 v8, {vLane}, 2, 2\nv_lshlrev_b32 {vP4S}, 3, v8")
        a("s_mov_b32 s94, 0x88888888\ns_mov_b32 s95, 0x88888888")
    else:
        a(f"v_lshrrev_b32 v8, 2, {vLane}\nv_mul_u32_u24 v8, {STS}, v8\nv_and_b32 v14, 3, {vLane}\nv_lshl_add_u32 {vOW}, v14, 4, v8")
    a(f"s_lshr_b32 {sT0}, s3, 1\ns_lshl_b32 {sT0}, {sT0}, 2\nv_mov_b32 {vH1}, {sT0}")
    a(f"s_add_u32 {sT0}, s74, {WS_H1}")
    def early_w():
        wl4(1)
        if o["adw2"]: wl4(2)
    poll([ldx4(G0, vLin, sT0), ldx4(G0+4, vLin, sT0, 1024)], (R8, sTag8, "0xff"), o["d1"], early=early_w if o["adapt"] else None,
         mid=(lambda: wtrans(wsl(0), TW, M4)) if o["wolate"] else None)
    if o["adapt"]: unless_early(lambda: wl4(1), "L_w1e")
    if o["w1late"]: latew(1, o["w1p1"])
    if o["w2late"] and o["w2pos"] == 1: latew(2)
    if o["w2late"]: latew(2, o["w2pre"])
    if o["w1s"]:
        a(("s_cmp_lt_u32 s3, 4" if o["w1s"] == 1 else "s_cmp_ge_u32 s3, 4") + "\ns_cbranch_scc1 L_w1t"); wl4(1); a.label("L_w1t")
    if o["w2s"] == 2:
        a("s_cmp_lt_u32 s3, 4\ns_cbranch_scc1 L_w2u"); wl4(2); a.label("L_w2u")
    stamp("p1")
    big_reduce(L_R1)
    barrier()
    if o["one"] == 2:
        t = G0 + 4
        a(f"ds_read_b64 {r2(t)}, {vAO} offset:{L_R1}\ns_waitcnt lgkmcnt(0)\nv_add_f32 v{t}, v{t}, v{t+1}")
        quadsum(t)
        stamp("h1got")
        if o["rs1"] == 2:
            u = t + 1; dp = "row_mask:0xf bank_mask:0xf"
            a(f"v_cvt_pk_bf16_f32 v{u}, v{t}, v{t}")
            bcast4(G0, t)
            a(f"v_lshlrev_b32 v{u}, 16, v{u}")
            a(f"s_mov_b64 exec, s[86:87]"); pack4(A4, G0)
            a(f"s_mov_b64 exec, s[88:89]"); pack4(A4+2, G0)
            a(f"s_mov_b64 exec, -1\nv_mul_f32 v{G0}, v{u}, v{RSS}")
            for tt in range(4):
                a(f"v_mfma_f32_16x16x32_bf16 {r4(DR+4*tt)}, {r4(A4)}, {r4(TW+4*tt)}, 0")
                if tt & 1: a(f"v_add_f32_dpp v{G0}, v{G0}, v{G0} row_ror:{4 if tt == 1 else 8} {dp}")
        else:
            bcast4(G0, t)
            mfma8(AO, TW)
            if o["rs1"]: a(f"s_lshr_b32 {sT0}, 0x69, s3\ns_bitcmp0_b32 {sT0}, 0\ns_cbranch_scc1 L_nrsw")
            bf16r(f"v{t}", f"v{t}")
            a(f"v_mul_f32 v{G0}, v{t}, v{RSS}")
            for k in (4, 8): a(f"v_add_f32_dpp v{G0}, v{G0}, v{G0} row_ror:{k} row_mask:0xf bank_mask:0xf")
    else:
        a(f"ds_read_b128 {r4(G0)}, {vAO} offset:{L_R1}\ns_waitcnt lgkmcnt(0)")
        dppsum(R4_, 3)
        stamp("h1got")
        mfma8(AO, TW)
        unpack4(G0, AO)
        a(f"v_mul_f32 v{G0}, v{G0}, v{RSK}")
        for q in range(1, 4): a(f"v_fmac_f32 v{G0}, v{G0+q}, v{RSK+q}")
    red4(f"v{G0}", "v8")
    a(f"ds_write_b32 {vH1}, v{G0} offset:{L_SA}")
    if o["rs1"] == 1 and o["one"] == 2:
        a("s_branch L_nrs"); a.label("L_nrsw"); a("s_nop 7"); a.label("L_nrs")
    sel4(False)
    a(f"ds_write_b128 {vRB}, {r4(Y)} offset:{L_B}")
    barrier()
    def sapub():
        a(f"s_waitcnt lgkmcnt(0)\nv_add_f32 v{G0}, v{G0}, v{G0+1}\nv_add_f32 v{G0+2}, v{G0+2}, v{G0+3}\nv_add_f32 v{Y}, v{G0}, v{G0+2}")
        a(f"v_and_or_b32 v{Y}, v{Y}, {vMask}, {sTag8}\nv_mov_b32 v{Y+1}, {sTag8}")
        pub2(WS_SA)
        a("s_mov_b64 exec, -1")
    a(f"s_add_u32 s78, s75, {WS_H2}")
    cu_reduce_pub(L_B, "s78", "L_nob", sapub)
    stamp("h2pub")
    if o["w1late"]: latew(1)
    if o["w2late"]: latew(2, o["w2p2"])
    for r in range(o["xh"]):
        xb = 0x400000 + r * 0x50000
        a(f"s_cmp_lg_u32 s3, 0\ns_cbranch_scc1 L_x{r}a")
        for q in range(4): a(f"v_mov_b32 v{ACC+16+q}, {sTag8}")
        a(f"s_add_u32 {sT0}, s75, {xb}\nbuffer_store_dwordx4 {r4(ACC+16)}, {vOW}, {sWS}, {sT0} offen sc1")
        a.label(f"L_x{r}a")
        a(f"s_cmp_ge_u32 s3, 4\ns_cbranch_scc1 L_x{r}b\ns_add_u32 {sT0}, s76, {xb}")
        st_, o["stamps"] = o["stamps"], 0
        poll([ldx4(G0, vGS, sT0)], (R4_, sTag8, "0xff"), o["d2"])
        o["stamps"] = st_
        a.label(f"L_x{r}b")
        barrier()
    tr1 = lambda: wtrans(wsl(1), TW, M4)
    a("s_cmp_ge_u32 s3, 4\ns_cbranch_scc1 L_g2s")
    a(f"s_add_u32 {sT0}, s76, {WS_H2}")
    if o["sarid"]:
        poll([ldx4(G0, vGS, sT0)], (R4_[:3], sTag8, "0xff"), o["d2"], mid=tr1)
        b, t, u = G0, G0 + 4, G0 + 5
        dp = "row_mask:0xf bank_mask:0xf"
        a(f"v_and_b32 v{t}, 0xff, v{b+3}\nv_lshlrev_b32 v{t}, {vSh}, v{t}")
        strip(R4_)
        a(f"v_or_b32_dpp v{t}, v{t}, v{t} quad_perm:[1,0,3,2] {dp}")
        a(f"v_permlane32_swap_b32 v{b}, v{b+1}\nv_permlane32_swap_b32 v{b+2}, v{b+3}")
        a(f"v_or_b32_dpp v{t}, v{t}, v{t} quad_perm:[2,3,0,1] {dp}")
        a(f"v_add_f32 v{b}, v{b}, v{b+1}\nv_add_f32 v{b+2}, v{b+2}, v{b+3}")
        a(f"v_add_f32_dpp v{t}, v{t}, v{t} row_ror:4 {dp}")
        a(f"s_lshl_b32 {sT0}, s3, 2\nv_mov_b32 v8, {sT0}")
        a(f"v_permlane16_swap_b32 v{b}, v{b+2}")
        a(f"v_add_f32_dpp v{t}, v{t}, v{t} row_ror:8 {dp}")
        a(f"v_add_f32 v{b}, v{b}, v{b+2}\nv_mov_b32 v{u}, v{t}")
        a(f"v_add_f32_dpp v{b}, v{b}, v{b} row_ror:4 {dp}")
        a(f"v_permlane16_swap_b32 v{u}, v{t}")
        a(f"v_add_f32 v{t}, v{t}, v{u}")
        a(f"v_add_f32_dpp v{b}, v{b}, v{b} row_ror:8 {dp}")
        a(f"v_mov_b32 v{u}, v{t}")
        a(f"ds_write_b32 {vRW}, v{b} offset:{L_R2}")
        a(f"v_permlane32_swap_b32 v{u}, v{t}\nv_add_f32 v{t}, v{t}, v{u}")
        a(f"ds_write_b32 v8, v{t} offset:{L_M2}")
        a("s_branch L_g2")
        a.label("L_g2s")
        a("s_waitcnt vmcnt(0)" if o["w2s"] != 2 else "s_waitcnt vmcnt(4)")
        if o["w2s"] == 1: wl4(2)
        tr1()
        a.label("L_g2")
        stamp("p2")
        if o["w2s"]:
            a("s_cmp_ge_u32 s3, 4\ns_cbranch_scc1 L_w2s")
            for n in range(8, 8 + o["w2p3"]): wload(n)
            a.label("L_w2s")
        elif o["w2late"] and o["w2pos"] == 0: latew(2, o["w2p3"])
        barrier()
        if o["one"] == 2:
            dp = "row_mask:0xf bank_mask:0xf"
            a(f"v_mov_b32 v8, 0\nds_read_b32 v{G0+4}, {vL4} offset:{L_R2}\nds_read_b128 {r4(G0)}, v8 offset:{L_M2}\nv_mov_b32 v14, {sMX}\ns_waitcnt lgkmcnt(0)")
            a(f"v_add_f32_dpp v{G0+4}, v{G0+4}, v{G0+4} quad_perm:[1,0,3,2] {dp}\nv_add_f32 v{G0}, v{G0}, v{G0+1}\nv_add_f32 v{G0+2}, v{G0+2}, v{G0+3}")
            a(f"v_add_f32_dpp v{G0+4}, v{G0+4}, v{G0+4} quad_perm:[2,3,0,1] {dp}\nv_add_f32 v{G0}, v{G0}, v{G0+2}\nv_fmac_f32 v14, {f32(1/1024)}, v{G0}")
            bf16r("v14", "v14")
        else:
            a(f"v_mov_b32 v8, 0\nds_read_b128 {r4(G0+4)}, v8 offset:{L_M2}\nds_read_b128 {r4(G0)}, {vA4} offset:{L_R2}\nv_mov_b32 v14, {sMX}\ns_waitcnt lgkmcnt(1)")
            a(f"v_add_f32 v{G0+4}, v{G0+4}, v{G0+5}\nv_add_f32 v{G0+6}, v{G0+6}, v{G0+7}\nv_add_f32 v{G0+4}, v{G0+4}, v{G0+6}\nv_fmac_f32 v14, {f32(1/1024)}, v{G0+4}")
            bf16r("v14", "v14")
            a("s_waitcnt lgkmcnt(0)")
            if o["one"]: dppsel(R4_, 2, G0+4)
            else: dppsum(R4_, 2)
    else:
        poll([ldx4(G0, vGS, sT0)], (R4_, sTag8, "0xff"), o["d2"], mid=tr1)
        strip(R4_)
        q16(G0, L_R2)
        a("s_branch L_g2")
        a.label("L_g2s")
        a(f"s_cmp_eq_u32 s3, {4 if not o['hack'] & 1 else 9}\ns_cbranch_scc1 L_g2m\ns_waitcnt vmcnt(0)")
        tr1()
        a("s_branch L_g2")
        a.label("L_g2m")
        a(f"s_add_u32 {sT0}, s77, {WS_SA}")
        poll([ldx4(G0, vLin, sT0)], ([G0, G0+1], sTag8, "0xff", G0+2), o["d2"], mid=tr1)
        strip([G0])
        red64("v_add_f32", f"v{G0}", "v8")
        a(f"v_mov_b32 v8, {sMX}\nv_fmac_f32 v8, {f32(1/1024)}, v{G0}")
        bf16r("v8", "v8")
        a(f"v_mov_b32 v14, 0\nds_write_b32 v14, v8 offset:{L_M}")
        a.label("L_g2")
        stamp("p2")
        if o["adapt"] and o["adw2"]: unless_early(lambda: wl4(2), "L_w2e")
        if o["w2late"] and o["w2pos"] == 0: latew(2, o["w2p3"])
        barrier()
        a(f"v_mov_b32 v8, 0\nds_read_b128 {r4(G0)}, {vA4} offset:{L_R2}\nds_read_b32 v14, v8 offset:{L_M}\ns_waitcnt lgkmcnt(1)")
        dppsum(R4_, 2)
    stamp("h2got")
    if o["one"]:
        t = f"v{G0+4}"
        bf16r(t, t); a(f"v_add_f32 {t}, {t}, v{HS}"); bf16r(f"v{HS}", t)
        a(f"v_sub_f32 {t}, v{HS}, v14")
        bcast4(G0, G0+4)
    else:
        pack4(AO, G0); unpack4(G0, AO)
        for q in range(4): a(f"v_add_f32 v{G0+q}, v{G0+q}, v{HK+q}")
        pack4(AO, G0); unpack4(HK, AO)
        a("s_waitcnt lgkmcnt(0)")
        for q in range(4): a(f"v_sub_f32 v{G0+q}, v{HK+q}, v14")
    a("s_cmp_eq_u32 s3, 7\ns_cbranch_scc1 L_stat")
    mfma8(AO, TW)
    sel4(True)
    a("s_mov_b32 exec_hi, 0")
    a(f"buffer_store_dwordx4 {r4(Y)}, {vPub4}, {sWS}, s73 offen" + (" sc1" if o["hack"] & 12 != 4 else ""))
    a("s_branch L_cd")
    a.label("L_stat")
    a(f"v_add_f32 v{Y}, v{G0}, v{G0+1}\nv_add_f32 v8, v{G0+2}, v{G0+3}\nv_mul_f32 v{Y+1}, v{G0}, v{G0}\nv_add_f32 v{Y}, v{Y}, v8")
    for q in range(1, 4): a(f"v_fmac_f32 v{Y+1}, v{G0+q}, v{G0+q}")
    red4(f"v{Y}", "v8"); red4(f"v{Y+1}", "v14")
    a(f"v_and_or_b32 v{Y}, v{Y}, {vMask}, {sTag8}\nv_and_or_b32 v{Y+1}, v{Y+1}, {vMask}, {sTag8}")
    pub2(WS_ST)
    a(f"s_cmp_lg_u32 s2, 0\ns_cbranch_scc1 L_cd")
    a(f"s_mov_b64 exec, 1\nbuffer_store_dword v{Y+2}, v8, {sWS}, 0 offen offset:{WS_EPOCH} sc1")
    if o["stamps"] == 3: a(f"v_xor_b32 v14, 0x5a5a1234, v{Y+2}\nbuffer_store_dword v14, v8, {sWS}, 0 offen offset:{WS_EPOCH+4} sc1")
    a.label("L_cd")
    a("s_mov_b64 exec, -1")
    if o["w2s"]:
        if o["w2p3"] < 4:
            a("s_cmp_ge_u32 s3, 4\ns_cbranch_scc1 L_w2t")
            for n in range(8 + o["w2p3"], 12): wload(n)
            a.label("L_w2t")
    elif o["w2late"]: latew(2)
    stamp("h4pub")
    a(f"s_cmp_ge_u32 {sA}, 56\ns_cbranch_scc1 L_nod")
    a(f"s_add_u32 {sT0}, s74, {WS_H4}")
    tr2 = lambda: wtrans(wsl(2), TW, M4)
    if o["st7"]:
        a("s_cmp_eq_u32 s3, 7\ns_cbranch_scc1 L_g4s\ns_lshr_b32 s78, s3, 1\ns_cmp_eq_u32 s78, 2\ns_cbranch_scc1 L_g4t")
        poll([ldx4(G0, vLin, sT0), ldx4(G0+4, vLin, sT0, 1024)], (R8, sTag8, "0xff"), o["d4"], mid=tr2)
        big_reduce(L_R4)
        a("s_branch L_g4")
        a.label("L_g4t")
        a(f"s_lshl_b32 s78, s3, 10\ns_sub_u32 s78, {sT0}, s78\ns_add_u32 s78, s78, {10*1024}")
        R12 = list(range(G0, G0+12))
        poll([ldx4(G0, vLin, sT0), ldx4(G0+4, vLin, sT0, 1024), ldx4(G0+8, vLin, "s78")], (R12, sTag8, "0xff"), o["d4"], mid=tr2)
        strip(R12[8:])
        for q in range(4): a(f"v_add_f32 v{G0+4+q}, v{G0+4+q}, v{G0+8+q}")
        big_reduce(L_R4)
        a("s_branch L_g4")
        a.label("L_g4s")
        a(f"s_add_u32 {sT1}, s77, {WS_ST}\nv_mov_b32 v{G0}, 0\nds_write_b32 {vRP}, v{G0} offset:{L_R4}")
        poll([ldx4(Y, vLin, sT1)], ([Y, Y+1], sTag8, "0xff", Y+2), o["d4"], mid=tr2)
    else:
        a(f"s_cmp_eq_u32 s3, {7 if not o['hack'] & 2 else 9}\ns_cbranch_scc1 L_g4s")
        poll([ldx4(G0, vLin, sT0), ldx4(G0+4, vLin, sT0, 1024)], (R8, sTag8, "0xff"), o["d4"], mid=tr2)
        big_reduce(L_R4)
        a("s_branch L_g4")
        a.label("L_g4s")
        a(f"s_add_u32 {sT1}, s77, {WS_ST}")
        poll([ldx4(G0, vLin, sT0), ldx4(G0+4, vLin, sT0, 1024), ldx4(Y, vLin, sT1)], (R8 + [Y, Y+1], sTag8, "0xff", Y+2), o["d4"], mid=tr2)
        big_reduce(L_R4)
    strip([Y, Y+1])
    a(f"v_permlane32_swap_b32 v{Y}, v{Y+1}\nv_add_f32 v{G0}, v{Y}, v{Y+1}")
    a(f"v_mov_b32 v8, v{G0}\nv_permlane16_swap_b32 v8, v{G0}\nv_add_f32 v{G0}, v{G0}, v8")
    for k in (8, 4, 2, 1): a(f"v_add_f32_dpp v{G0}, v{G0}, v{G0} row_ror:{k} row_mask:0xf bank_mask:0xf")
    a(f"v_mul_f32 v{G0}, {f32(1/1024)}, v{G0}\nv_mov_b32 v8, v{G0}\nv_permlane32_swap_b32 v8, v{G0}")
    vr = f"v{G0}"
    a(f"v_fma_f32 {vr}, -v8, v8, {vr}\nv_max_f32 {vr}, 0, {vr}"); bf16r(vr, vr)
    a(f"v_add_f32 {vr}, {f32(1e-5)}, {vr}"); bf16r(vr, vr)
    a(f"v_sqrt_f32 {vr}, {vr}"); bf16r(vr, vr)
    a(f"v_rcp_f32 {vr}, {vr}\nv_mov_b32 v8, 0\nds_write_b32 v8, {vr} offset:{L_RI}")
    a.label("L_g4")
    stamp("p4")
    barrier()
    if o["one"] == 2:
        a(f"v_mov_b32 v8, 0\nds_read_b64 {r2(G0+4)}, {vAO} offset:{L_R4}\nds_read_b32 v14, v8 offset:{L_RI}\ns_waitcnt lgkmcnt(1)\nv_add_f32 v{G0+4}, v{G0+4}, v{G0+5}")
    else:
        a(f"v_mov_b32 v8, 0\nds_read_b128 {r4(G0)}, {vAO} offset:{L_R4}\nds_read_b32 v14, v8 offset:{L_RI}\ns_waitcnt lgkmcnt(1)")
    if o["one"]:
        if o["one"] == 2: quadsum(G0+4)
        else: dppsel(R4_, 3, G0+4)
        a("s_waitcnt lgkmcnt(0)")
        stamp("h4got")
        t, e = f"v{G0+4}", f"v{G0+5}"
        a(f"v_mul_f32 {t}, {t}, v14"); bf16r(t, t)
        a(f"v_mul_f32 {e}, {sL2E}, {t}\nv_exp_f32 {e}, -{e}\nv_add_f32 {e}, 1.0, {e}\nv_rcp_f32 {e}, {e}\nv_mul_f32 {t}, {t}, {e}")
        bcast4(G0, G0+4)
    else:
        dppsum(R4_, 3)
        a("s_waitcnt lgkmcnt(0)")
        stamp("h4got")
        for q in range(4): a(f"v_mul_f32 v{G0+q}, v{G0+q}, v14")
        pack4(AO, G0); unpack4(G0, AO)
        for q in range(4): a(f"v_mul_f32 v{G0+4+q}, {sL2E}, v{G0+q}")
        for q in range(4): a(f"v_exp_f32 v{G0+4+q}, -v{G0+4+q}")
        for q in range(4): a(f"v_add_f32 v{G0+4+q}, 1.0, v{G0+4+q}")
        for q in range(4): a(f"v_rcp_f32 v{G0+4+q}, v{G0+4+q}")
        for q in range(4): a(f"v_mul_f32 v{G0+q}, v{G0+q}, v{G0+4+q}")
    mfma8(AO, TW)
    sel4(False)
    a(f"ds_write_b128 {vRB}, {r4(Y)} offset:{L_D}")
    barrier()
    a(f"s_add_u32 s78, s75, {WS_H5}")
    cu_reduce_pub(L_D, "s78", "L_nod")
    stamp("h5pub")
    a(f"s_cmp_lg_u32 {sB}, 0\ns_cbranch_scc1 L_fin")
    a("s_cmp_ge_u32 s3, 4\ns_cbranch_scc1 L_g5")
    for q in range(4): a(f"v_mov_b32 v{G0+q}, 0")
    a(f"s_add_u32 {sT0}, s76, {WS_H5}\ns_cmp_eq_u32 s3, 3\ns_cselect_b32 exec_hi, 0, -1")
    poll([ldx4(G0, vGS, sT0)], (R4_, sTag8, "0xff"), o["d5"])
    strip(R4_)
    q16(G0, L_R5)
    a.label("L_g5")
    stamp("p5")
    barrier()
    a("s_cmp_lg_u32 s3, 0\ns_cbranch_scc1 L_fin")
    if o["one"]:
        if o["one"] == 2: a(f"ds_read_b32 v{G0+4}, {vL4} offset:{L_R5}")
        else: a(f"ds_read_b128 {r4(G0)}, {vA4} offset:{L_R5}")
        a(f"v_lshrrev_b32 v8, 2, {vLane}\nv_lshlrev_b32 v8, 1, v8\ns_lshl_b32 {sT0}, {sA}, 5\ns_waitcnt lgkmcnt(0)")
        if o["one"] == 2: quadsum(G0+4)
        else: dppsel(R4_, 2, G0+4)
        t = f"v{G0+4}"
        bf16r(t, t); a(f"v_add_f32 {t}, {t}, v{HS}\nv_cvt_pk_bf16_f32 {t}, {t}, {t}")
        a("s_mov_b32 exec_lo, 0x11111111\ns_mov_b32 exec_hi, 0x11111111")
        a(f"buffer_store_short {t}, v8, {sOUT}, {sT0} offen")
    else:
        a(f"ds_read_b128 {r4(G0)}, {vA4} offset:{L_R5}\nv_lshrrev_b32 v8, 4, {vLane}\nv_lshlrev_b32 v8, 3, v8\ns_lshl_b32 {sT0}, {sA}, 5\ns_waitcnt lgkmcnt(0)")
        dppsum(R4_, 2)
        pack4(AO, G0); unpack4(G0, AO)
        for q in range(4): a(f"v_add_f32 v{G0+q}, v{G0+q}, v{HK+q}")
        pack4(AO, G0)
        a("s_mov_b32 exec_lo, 0x10001\ns_mov_b32 exec_hi, 0x10001")
        a(f"buffer_store_dwordx2 {r2(AO)}, v8, {sOUT}, {sT0} offen" + ["", " sc1", " sc0 sc1", " nt"][o["outpol"]])
    a("s_mov_b64 exec, -1")
    a.label("L_fin")
    if o["stamps"]:
        stamp("end")
        a(f"s_lshl_b32 {sT0}, s2, 3\ns_add_u32 {sT0}, {sT0}, s3\ns_lshl_b32 {sT0}, {sT0}, 7\ns_add_u32 {sT0}, {sT0}, {WS_DBG}")
        a(f"v_lshlrev_b32 v8, 2, {vLane}\ns_mov_b32 exec_hi, 0")
        a(f"buffer_store_dword {vStamp}, v8, {sWS}, {sT0} offen")
        if o["stamps"] == 3:
            a("s_cmp_eq_u32 s97, 0x5a5a1234\ns_cbranch_scc1 L_end")
            a(f"s_or_b32 {sT0}, s2, s3\ns_cmp_lg_u32 {sT0}, 0\ns_cbranch_scc1 L_end")
            a(f"v_readlane_b32 {sT0}, {vStamp}, 0\nv_readlane_b32 {sT1}, {vStamp}, {nst[0]-1}\ns_nop 3\ns_sub_u32 {sT1}, {sT1}, {sT0}\ns_cmp_lt_u32 {sT1}, {o['thr']}\ns_cbranch_scc1 L_end")
            a(f"v_subrev_u32 v9, {sT0}, {vStamp}\nv_cvt_f32_u32 v9, v9\nv_mul_f32 v9, {f32(0.04)}, v9\nv_rndne_f32 v9, v9\nv_cvt_pk_bf16_f32 v9, v9, v9")
            lanes = o.get("lanes", [3, 4, 5, 7, 9, 12, 14, 16])
            a("s_waitcnt vmcnt(0)")
            for n, ln in enumerate(lanes):
                a(f"v_mov_b32 v8, {2*n}\ns_mov_b32 exec_lo, {1 << ln}\nv_mov_b32 v8, {2*n}\nbuffer_store_short v9, v8, {sOUT}, 0 offen\ns_nop 1")
        if o["stamps"] == 4:
            a(f"s_or_b32 {sT0}, s2, s3\ns_cmp_lg_u32 {sT0}, 0\ns_cbranch_scc1 L_end")
            a(f"v_readlane_b32 {sT0}, {vStamp}, 0\nv_readlane_b32 {sT1}, {vStamp}, {o['sidx']}\nv_readlane_b32 s96, {vStamp}, {nst[0]-1}\ns_nop 3")
            a(f"s_sub_u32 {sT1}, {sT1}, {sT0}\ns_mul_i32 {sT1}, {sT1}, {o['smul']}\ns_min_u32 {sT1}, {sT1}, 20000")
            a.label("L_str")
            a(f"s_memrealtime s[98:99]\ns_waitcnt lgkmcnt(0)\ns_sub_u32 {sT0}, s98, s96\ns_cmp_lt_u32 {sT0}, {sT1}\ns_cbranch_scc1 L_str")
        if o["stamps"] == 2:
            a(f"s_or_b32 {sT0}, s2, s3\ns_cmp_lg_u32 {sT0}, 0\ns_cbranch_scc1 L_end")
            a(f"v_readlane_b32 {sT0}, {vStamp}, 0\nv_subrev_u32 v9, {sT0}, {vStamp}\nv_subrev_u32 v8, 4, v8\ns_mov_b32 exec_lo, 0x1fffe")
            a(f"buffer_store_dword v9, v8, {sDBG}, 0 offen")
    a.label("L_end")
    a("s_endpgm")
    a.raw(f'''.section .rodata,"a"
.p2align 6
.amdhsa_kernel {KN}
  .amdhsa_next_free_vgpr 256
  .amdhsa_next_free_sgpr 102
  .amdhsa_accum_offset 256
  .amdhsa_group_segment_fixed_size 0
  .amdhsa_kernarg_size 88
  .amdhsa_user_sgpr_count 2
  .amdhsa_user_sgpr_kernarg_segment_ptr 1
  .amdhsa_system_sgpr_workgroup_id_x 1
.end_amdhsa_kernel''')
    return a.text()

if __name__ == "__main__":
    kw = {}
    out = sys.argv[1]
    for x in sys.argv[2:]:
        k, v = x.split("="); kw[k] = int(v)
    open(out, "w").write(gen(**kw))
```

```python
import struct, sys
sys.path.insert(0, "work")
from asmlib import Asm
KN = "sequential_preLN__gqa_block_cached__dense_activation_silu__decode_kernel"
def f32(x): return "0x%08x" % struct.unpack("<I", struct.pack("<f", x))[0]

WS_EPOCH = 0
WS_QP = 0x10000
WS_ML = 0x40000
WS_ST = 0x48000
WS_SA = 0x4C000
WS_RS = 0x50000
WS_H2 = 0x70000
WS_H1 = 0xC0000
WS_H4 = 0x200000
WS_H5 = 0x300000
WS_DBG = 0x800000
L_QRED, L_QF, L_ML, L_MLG = 0, 4096, 6144, 6656
L_R2, L_SA, L_M, L_RI, L_R5, L_R1, L_R4, L_B, L_O = 6912, 7168, 7184, 7188, 7424, 8192, 10240, 12288, 16384
L_D = L_O
L_M2 = 7200
LDS_BYTES = 49152

DEF = dict(pad=1, xa=1, thr=3600, qbar=1, depth=6, qload_pos=22, qproc_pos=29, ml_pos=16, stamps=0,
           d1=16, d2=16, d4=16, d5=16, back=0, w1late=1, w2late=1, w2pos=0, w1pre=4, w2pre=0, w2p0=0, xh=0, gsh=0, adapt=0, adw2=1, wolate=0, x1=1, x2=1, x3=1, x4=1, x5=1, dl=6, dlpos=20, y0=0, y1=0, y2=0, y3=0, w2p2=0, w2p3=0, w1p1=4, qe=11, qmap=0, ob0=0, ob1=0, obn=1, outpol=0, hack=0, sarid=1, pairl=0, pads=128, lpad=16, owc=1, sidx=0, smul=1, one=2, w2s=1, w1s=0, swz=1, f0=0, f1=0, f2=0, pv1=0, w1at=0, m4=1, pvs=1, rs1=2, par4=1, xm=1, st7=1, dg=0, back1=0, sep=0, pk=1)

def gen(**kw):
    o = dict(DEF); o.update(kw)
    D = o["depth"]
    pad = o["pad"]
    STB, STS = 16384 + 256 * pad, 4096 + 128 * pad
    a = Asm()
    a.raw(open("sequential_preLN__gqa_block_cached__dense_activation_silu__decode.s.ref").read().split("; Override")[0].rstrip())
    a.raw(f"; @launch grid=(256,1,1) block=(512,1,1) lds={LDS_BYTES}")
    a.raw('.amdgcn_target "amdgcn-amd-amdhsa--gfx950"\n.text')
    a.raw(f".globl {KN}\n.p2align 8\n.type {KN},@function\n{KN}:")
    sK, sV, sWS, sX, sWQ, sWO, sW1, sW2, sOUT, sDBG = [f"s[{b}:{b+3}]" for b in (8, 12, 16, 20, 24, 28, 32, 36, 40, 44)]
    sG, sS, sT0, sT1 = "s4", "s5", "s6", "s7"
    sKo, sVo = "s49", "s50"
    sTag8, sTag16, sEp = "s51", "s52", "s53"
    sPL, sPH, sHI, sSC, sL2E, s80 = "s54", "s55", "s56", "s57", "s58", "s59"
    sM4 = "s[60:61]"
    sCnt = "s62"; sT2 = "s63"; sTag2 = "s48"; sA = "s90"; sB = "s91"; sMX = "s92"
    vLane, vKoff, vLin, vMask = "v1", "v2", "v3", "v4"
    vMw, vXr, vH = "v5", "v6", "v7"
    vt = [f"v{i}" for i in range(8, 15)]
    vStamp = "v15"
    S0 = 16
    ACC = 32
    SLOT = 64
    PT = 240
    def slot(i): return SLOT + 4 * i
    def r4(b): return f"v[{b}:{b+3}]"
    def r2(b): return f"v[{b}:{b+1}]"
    nst = [0]
    def stamp(name):
        if not o["stamps"] or (o["hack"] & 32 and name[0] == "p"): return
        a("s_memrealtime s[98:99]\ns_waitcnt lgkmcnt(0)")
        a(f"v_writelane_b32 {vStamp}, s98, {nst[0]}")
        nst[0] += 1
    def bf16r(d, s):
        a(f"v_cvt_pk_bf16_f32 {d}, {s}, {s}\nv_lshlrev_b32 {d}, 16, {d}")
    def red64(op, v, t):
        a(f"v_mov_b32 {t}, {v}\nv_permlane32_swap_b32 {t}, {v}\n{op} {v}, {v}, {t}")
        a(f"v_mov_b32 {t}, {v}\nv_permlane16_swap_b32 {t}, {v}\n{op} {v}, {v}, {t}")
        for k in (8, 4, 2, 1):
            a(f"{op}_dpp {v}, {v}, {v} row_ror:{k} row_mask:0xf bank_mask:0xf")
    def red_rows(op, v, t):
        a(f"v_mov_b32 {t}, {v}\nv_permlane32_swap_b32 {t}, {v}\n{op} {v}, {v}, {t}")
        a(f"v_mov_b32 {t}, {v}\nv_permlane16_swap_b32 {t}, {v}\n{op} {v}, {v}, {t}")
        a(f"{op}_dpp {v}, {v}, {v} row_ror:8 row_mask:0xf bank_mask:0xf")
    def ln_stats(b, vm, vr, t0, t1):
        a(f"v_add_f32 {t0}, v{b}, v{b+1}")
        for i in range(2, 16): a(f"v_add_f32 {t0}, {t0}, v{b+i}")
        red64("v_add_f32", t0, t1)
        a(f"v_mul_f32 {t0}, {f32(1/1024)}, {t0}")
        for i in range(16): a(f"v_sub_f32 v{b+i}, v{b+i}, {t0}")
        a(f"v_mul_f32 {vr}, v{b}, v{b}")
        for i in range(1, 16): a(f"v_fmac_f32 {vr}, v{b+i}, v{b+i}")
        red64("v_add_f32", vr, t1)
        bf16r(vm, t0)
        a(f"v_mul_f32 {vr}, {f32(1/1024)}, {vr}")
        bf16r(vr, vr)
        a(f"v_add_f32 {vr}, {f32(1e-5)}, {vr}")
        bf16r(vr, vr)
        a(f"v_sqrt_f32 {vr}, {vr}")
        bf16r(vr, vr)
        a(f"v_rcp_f32 {vr}, {vr}")
    def ln_apply(h, A, vm, vr):
        for i in range(4): a(f"v_sub_f32 v{h+i}, v{h+i}, {vm}")
        a(f"v_cvt_pk_bf16_f32 v{A}, v{h}, v{h+1}\nv_cvt_pk_bf16_f32 v{A+1}, v{h+2}, v{h+3}")
        a(f"v_lshlrev_b32 v{h}, 16, v{A}\nv_and_b32 v{h+1}, {sHI}, v{A}\nv_lshlrev_b32 v{h+2}, 16, v{A+1}\nv_and_b32 v{h+3}, {sHI}, v{A+1}")
        for i in range(4): a(f"v_mul_f32 v{h+i}, v{h+i}, {vr}")
        a(f"v_cvt_pk_bf16_f32 v{A}, v{h}, v{h+1}\nv_cvt_pk_bf16_f32 v{A+1}, v{h+2}, v{h+3}")
    def wtrans(src, dst, k32=False):
        for t in range(8):
            for j in range(2):
                d = dst + (4*(t & 3) + 2*(t >> 2) + j if k32 else 2*t + j)
                a(f"v_perm_b32 v{d}, v{src+4*(2*j+1)+(t>>1)}, v{src+4*(2*j)+(t>>1)}, {sPH if t & 1 else sPL}")
    def gemv(A, T, Dr, Y, tag=True):
        for t in range(8):
            a(f"v_mfma_f32_16x16x16_bf16 {r4(Dr+4*t)}, {r2(A)}, {r2(T+2*t)}, 0")
        for q in range(4):
            a(f"v_cndmask_b32 v{Y+q}, v{Dr+4*q}, v{Dr+4*(q+4)}, {sM4}")
        if tag:
            for q in range(4): a(f"v_and_or_b32 v{Y+q}, v{Y+q}, {vMask}, {sTag8}")
    lab = [0]; npoll = [0]; nob = [0]
    def pace(d):
        if o["ob0"] <= a.nvm < o["ob1"] and a.nvm - a.done >= d:
            a.pace(d + o["obn"])
            nob[0] += 1
            a(f"s_bitcmp1_b32 s2, 0\ns_cbranch_scc1 L_ob{nob[0]}\ns_waitcnt vmcnt({d-1})")
            a.label(f"L_ob{nob[0]}")
        else: a.pace(d)
    def red4(v, t):
        a(f"v_mov_b32 {t}, {v}\nv_permlane32_swap_b32 {t}, {v}\nv_add_f32 {v}, {v}, {t}")
        a(f"v_mov_b32 {t}, {v}\nv_permlane16_swap_b32 {t}, {v}\nv_add_f32 {v}, {v}, {t}")
    def poll(loads, checks, delay=0, first=True, mid=None, early=None, back=0, sep=False):
        n = lab[0]; lab[0] += 1
        a(f"s_mov_b32 {sCnt}, 0")
        if first:
            if delay: a(f"s_sleep {delay}")
            for l in loads: a(l)
            if mid:
                a(f"s_waitcnt vmcnt({len(loads)})"); mid()
            a("s_waitcnt vmcnt(0)")
        if sep:
            regs = checks[0]
            a("s_mov_b64 s[80:81], -1\ns_mov_b64 s[82:83], -1")
            a.label(f"L_pollc{n}")
            for i in range(2):
                a(f"s_mov_b64 exec, s[{80+2*i}:{81+2*i}]")
                check(regs[4*i:4*i+4], *checks[1:])
                a(f"s_and_b64 s[{80+2*i}:{81+2*i}], s[{80+2*i}:{81+2*i}], vcc")
            a(f"s_or_b64 vcc, s[80:81], s[82:83]\ns_cbranch_scc0 L_polld{n}")
            a(f"s_add_u32 {sCnt}, {sCnt}, 1\ns_cmp_gt_u32 {sCnt}, 0x80000\ns_cbranch_scc1 L_end")
            if back: a(f"s_sleep {back}")
            for i in range(2):
                a(f"s_mov_b64 exec, s[{80+2*i}:{81+2*i}]\ns_cbranch_execz L_polls{n}_{i}")
                a(loads[i])
                a.label(f"L_polls{n}_{i}")
            a(f"s_waitcnt vmcnt(0)\ns_branch L_pollc{n}")
            a.label(f"L_polld{n}")
            a("s_mov_b64 exec, -1")
            if o["stamps"] == 1:
                a(f"s_add_u32 {sCnt}, {sCnt}, 1\nv_writelane_b32 {vStamp}, {sCnt}, {24 + npoll[0]}"); npoll[0] += 1
            return
        a.label(f"L_pollc{n}")
        check(*checks)
        a(f"s_mov_b64 exec, vcc\ns_cbranch_execz L_polld{n}")
        if early:
            a(f"s_cmp_lg_u32 {sCnt}, 0\ns_cbranch_scc1 L_polle{n}\ns_bcnt1_i32_b64 {sT2}, vcc\ns_cmp_lt_u32 {sT2}, {o['adapt']}\ns_cbranch_scc1 L_polle{n}")
            a("s_mov_b64 exec, -1\ns_mov_b32 s93, 1")
            early()
            a("s_mov_b64 exec, vcc")
            a.label(f"L_polle{n}")
        a(f"s_add_u32 {sCnt}, {sCnt}, 1\ns_cmp_gt_u32 {sCnt}, 0x80000\ns_cbranch_scc1 L_end")
        if o["back"] or back: a(f"s_sleep {o['back'] or back}")
        for l in loads: a(l)
        a(f"s_waitcnt vmcnt(0)\ns_branch L_pollc{n}")
        a.label(f"L_polld{n}")
        a("s_mov_b64 exec, -1")
        if o["stamps"] == 1:
            a(f"s_add_u32 {sCnt}, {sCnt}, 1\nv_writelane_b32 {vStamp}, {sCnt}, {24 + npoll[0]}"); npoll[0] += 1
    def check(regs, tagreg, maskc, full=None):
        c = vt[6]
        if o["xm"] and maskc == "0xff":
            for r in regs: a(f"v_xor_b32 v{r}, {tagreg}, v{r}")
            rs = [f"v{r}" for r in regs]
            cur = rs.pop(0)
            while rs:
                if len(rs) >= 2: a(f"v_or3_b32 {c}, {cur}, {rs.pop(0)}, {rs.pop(0)}")
                else: a(f"v_or_b32 {c}, {cur}, {rs.pop(0)}")
                cur = c
            a(f"v_or_b32_dpp {c}, {c}, {c} quad_perm:[1,0,3,2] row_mask:0xf bank_mask:0xf")
            if full is not None:
                a(f"v_and_b32 {c}, {maskc}, {c}\nv_bitop3_b32 {c}, v{full}, {sEp}, {c} bitop3:0xbe\nv_cmp_ne_u32 vcc, 0, {c}")
            else:
                a(f"v_cmp_ne_u32_sdwa vcc, {c}, {vZero} src0_sel:BYTE_0 src1_sel:DWORD")
            xored.update(regs)
            return
        a(f"v_xor_b32 {c}, {tagreg}, v{regs[0]}")
        for r in regs[1:]: a(f"v_bitop3_b32 {c}, v{r}, {tagreg}, {c} bitop3:0xbe")
        if len(regs) > 2:
            a(f"v_or_b32_dpp {c}, {c}, {c} quad_perm:[1,0,3,2] row_mask:0xf bank_mask:0xf")
        a(f"v_and_b32 {c}, {maskc}, {c}")
        if full is not None: a(f"v_bitop3_b32 {c}, v{full}, {sEp}, {c} bitop3:0xbe")
        a(f"v_cmp_ne_u32 vcc, 0, {c}")
    xored = set(); vZero = "s79"
    def strip(regs):
        for r in regs:
            if r in xored: xored.discard(r)
            else: a(f"v_and_or_b32 v{r}, v{r}, {vMask}, {s80}")
    def barrier():
        a("s_waitcnt lgkmcnt(0)\ns_barrier")

    a("s_cmp_ge_u32 s2, 0x100\ns_cbranch_scc1 L_end")
    a("s_load_dwordx16 s[64:79], s[0:1], 0\ns_load_dwordx4 s[80:83], s[0:1], 64\ns_load_dwordx2 s[84:85], s[0:1], 80")
    if o["stamps"]: a(f"v_mov_b32 {vStamp}, 0")
    stamp("start")
    if o["stamps"] == 1:
        a(f"s_getreg_b32 s96, hwreg(HW_REG_XCC_ID)\ns_getreg_b32 s97, hwreg(HW_REG_HW_ID)\ns_and_b32 s96, s96, 15\ns_add_u32 s96, s96, 1\nv_writelane_b32 {vStamp}, s96, 23\nv_writelane_b32 {vStamp}, s97, 22")
    a(f"v_and_b32 {vLane}, 63, v0\nv_lshrrev_b32 v8, 6, v0")
    a("v_readfirstlane_b32 s3, v8")
    a(f"v_lshlrev_b32 {vLin}, 4, {vLane}")
    a(f"v_bfe_u32 v8, {vLane}, 1, 1\nv_lshlrev_b32 v8, 10, v8\nv_bfe_u32 v9, {vLane}, 2, 2\nv_lshl_add_u32 v8, v9, 8, v8")
    a(f"v_lshrrev_b32 v9, 4, {vLane}\nv_lshl_add_u32 v8, v9, 5, v8\nv_and_b32 v9, 1, {vLane}\nv_lshl_add_u32 {vKoff}, v9, 4, v8")
    a(f"v_mov_b32 {vMask}, 0xffffff00")
    gsh = o["gsh"]
    if gsh == 0:
        a(f"s_and_b32 {sG}, s2, 3\ns_lshr_b32 {sS}, s2, 2")
    else:
        a(f"s_bfe_u32 {sG}, s2, {0x20000 | gsh}\ns_lshr_b32 {sS}, s2, {gsh+2}\ns_lshl_b32 {sS}, {sS}, {gsh}\ns_and_b32 {sT0}, s2, {(1<<gsh)-1}\ns_or_b32 {sS}, {sS}, {sT0}")
    if o["xa"]:
        a(f"s_lshr_b32 {sA}, s2, 5\ns_lshl_b32 {sA}, {sA}, 3\ns_and_b32 {sB}, s2, 7\ns_or_b32 {sA}, {sA}, {sB}\ns_bfe_u32 {sB}, s2, 0x20003")
    else:
        a(f"s_mov_b32 {sA}, {sS}\ns_mov_b32 {sB}, {sG}")
    a(f"s_mov_b32 {sPL}, 0x05040100\ns_mov_b32 {sPH}, 0x07060302\ns_mov_b32 {sHI}, 0xffff0000")
    a(f"s_mov_b32 {sSC}, {f32(128 ** -0.5)}\ns_mov_b32 {sL2E}, {f32(1.4426950408889634)}\ns_mov_b32 {s80}, 0x80")
    a(f"s_mov_b32 s60, 0xffff0000\ns_mov_b32 s61, 0xffff0000")
    a(f"s_lshl_b32 {sT0}, {sS}, 3\ns_add_u32 {sT0}, {sT0}, s3\ns_lshl_b32 {sT0}, {sT0}, 12\ns_lshl_b32 {sT1}, {sG}, 24\ns_add_u32 {sKo}, {sT0}, {sT1}\ns_mov_b32 {sVo}, {sKo}")
    a(f"v_lshrrev_b32 v9, 4, {vLane}\nv_and_b32 v8, 15, {vLane}\nv_lshlrev_b32 v8, 4, v8\nv_lshl_add_u32 v10, v9, 15, v8")
    a(f"v_lshlrev_b32 v11, 3, v9\nv_lshlrev_b32 v12, 5, {vLane}")
    a("s_waitcnt lgkmcnt(0)")
    if o["hack"] & 16: stamp("karg")
    def srd(base, p, size):
        a(f"s_mov_b32 s{base}, s{p}\ns_and_b32 s{base+1}, s{p+1}, 0xffff\ns_mov_b32 s{base+2}, {size}\ns_mov_b32 s{base+3}, 0x20000")
    srd(20, 64, 2048); srd(24, 70, 8 << 20); srd(8, 66, 64 << 20)
    XR = PT
    ix0 = a.vm(f"buffer_load_dwordx4 {r4(XR)}, v12, {sX}, 0 offen")
    ix1 = a.vm(f"buffer_load_dwordx4 {r4(XR+4)}, v12, {sX}, 0 offen offset:16")
    E = o["qe"]
    qm = o["qmap"]
    if E == 8:
        a(f"s_lshr_b32 s95, s2, {qm+5}\ns_lshl_b32 s95, s95, {qm}\ns_and_b32 {sT0}, s2, {(1<<qm)-1}\ns_or_b32 s95, s95, {sT0}")
        a(f"s_lshl_b32 {sT0}, s95, 3\ns_add_u32 {sT0}, {sT0}, s3")
        a(f"s_bfe_u32 s94, s2, {0x50000 | qm}\ns_lshl_b32 s94, s94, 8")
    else:
        a(f"s_lshr_b32 s95, s2, 6\ns_lshl_b32 s95, s95, 4\ns_add_u32 s95, s95, s3")
        a(f"s_and_b32 {sT1}, s2, 1\ns_mul_i32 {sT0}, {sT1}, {E}\ns_add_u32 {sT0}, {sT0}, s95")
        a(f"s_mul_i32 {sT1}, {sT1}, s3\ns_cmp_ge_u32 {sT1}, {16-E}\ns_cselect_b32 {sT0}, 64, {sT0}")
        a(f"s_add_u32 s95, s95, 8\ns_and_b32 {sT1}, s2, 1\ns_lshl_b32 {sT1}, {sT1}, 3\ns_add_u32 {sT1}, {sT1}, s3\ns_cmp_ge_u32 {sT1}, {E-8}\ns_cselect_b32 s95, 64, s95")
        a(f"s_bfe_u32 s94, s2, 0x50001\ns_lshl_b32 s94, s94, 8")
    a(f"s_lshl_b32 {sT1}, {sT0}, 5")
    ix2 = a.vm(f"buffer_load_dwordx2 {r2(XR+8)}, v11, {sX}, {sT1} offen")
    if E != 8:
        a(f"s_lshl_b32 {sT1}, s95, 5")
        ix2 = a.vm(f"buffer_load_dwordx2 {r2(XR+10)}, v11, {sX}, {sT1} offen")
    a(f"s_lshl_b32 {sT0}, {sT0}, 17\ns_add_u32 {sT0}, {sT0}, s94")
    for i in range(4):
        iwq = a.vm(f"buffer_load_dwordx4 {r4(slot(32+i))}, v10, {sWQ}, {sT0} offen nt")
        if i < 3: a(f"s_add_u32 {sT0}, {sT0}, 8192")
    if E != 8:
        a(f"s_lshl_b32 {sT0}, s95, 17\ns_add_u32 {sT0}, {sT0}, s94")
        for i in range(4):
            iwq2 = a.vm(f"buffer_load_dwordx4 {r4(slot(36+i))}, v10, {sWQ}, {sT0} offen nt")
            if i < 3: a(f"s_add_u32 {sT0}, {sT0}, 8192")
    kidx = {}
    def kload(k):
        kidx[k] = a.vm(f"buffer_load_dwordx4 {r4(slot(k))}, {vKoff}, {sK}, {sKo} offen offset:{(k%2)*128 + ((k%4)//2)*2048} nt")
        if k % 4 == 3: a(f"s_add_u32 {sKo}, {sKo}, 0x200000")
    K0 = o.get("k0", D)
    if o["qbar"]: a("s_barrier")
    for k in range(K0): kload(k)
    if o["hack"] & 16: stamp("kiss")
    srd(12, 68, 64 << 20); srd(16, 84, 256 << 20); srd(28, 72, 8 << 20); srd(32, 76, 7 << 20); srd(36, 78, 7 << 20); srd(40, 80, 2048); srd(44, 82, 256)
    a(f"s_load_dword {sEp}, s[84:85], {WS_EPOCH}")
    if o["stamps"] == 3: a(f"s_load_dword s97, s[84:85], {WS_EPOCH+4}\ns_waitcnt lgkmcnt(0)\ns_xor_b32 s97, s97, {sEp}")
    a.wait_vm(ix1)
    if o["hack"] & 16: stamp("xgot")
    XF = ACC
    for i in range(8):
        a(f"v_lshlrev_b32 v{XF+2*i}, 16, v{XR+i}\nv_and_b32 v{XF+2*i+1}, {sHI}, v{XR+i}")
    ln_stats(XF, vt[0], vt[1], vt[2], vt[3])
    a(f"v_readfirstlane_b32 {sMX}, {vt[2]}")
    def kmore(n):
        for _ in range(n): kload(len(kidx))
    kmore(o["y0"])
    a.wait_vm(ix2)
    a(f"v_lshlrev_b32 v48, 16, v{XR+8}\nv_and_b32 v49, {sHI}, v{XR+8}\nv_lshlrev_b32 v50, 16, v{XR+9}\nv_and_b32 v51, {sHI}, v{XR+9}")
    ln_apply(48, 52, vt[0], vt[1])
    a(f"v_mov_b32 v16, v52\nv_mov_b32 v17, v53")
    if E != 8:
        a(f"v_lshlrev_b32 v48, 16, v{XR+10}\nv_and_b32 v49, {sHI}, v{XR+10}\nv_lshlrev_b32 v50, 16, v{XR+11}\nv_and_b32 v51, {sHI}, v{XR+11}")
        ln_apply(48, 18, vt[0], vt[1])
    a.wait_vm(iwq)
    stamp("wq")
    kmore(o["y1"])
    wtrans(slot(32), PT)
    if E == 8:
        gemv(16, PT, ACC, 20, tag=False)
    else:
        for t in range(8): a(f"v_mfma_f32_16x16x16_bf16 {r4(ACC+4*t)}, {r2(16)}, {r2(PT+2*t)}, 0")
        a("s_cmp_eq_u32 s95, 64\ns_cbranch_scc1 L_q1")
        a(f"s_waitcnt vmcnt({a.nvm - iwq2 - 1})\ns_nop 4")
        wtrans(slot(36), PT)
        for t in range(8): a(f"v_mfma_f32_16x16x16_bf16 {r4(ACC+4*t)}, {r2(18)}, {r2(PT+2*t)}, {r4(ACC+4*t)}")
        a.label("L_q1")
        for q in range(4): a(f"v_cndmask_b32 v{20+q}, v{ACC+4*q}, v{ACC+4*(q+4)}, {sM4}")
    a(f"v_and_b32 v8, 15, {vLane}\nv_lshlrev_b32 v8, 5, v8\nv_bfe_u32 v9, {vLane}, 4, 1\nv_lshl_add_u32 v8, v9, 4, v8")
    a(f"s_lshl_b32 {sT0}, s3, 9\nv_add_u32 v8, {sT0}, v8")
    a(f"ds_write_b128 v8, {r4(20)} offset:{L_QRED}")
    kmore(o["y2"])
    a(f"s_waitcnt lgkmcnt(0)\ns_add_u32 {sEp}, {sEp}, 1\ns_and_b32 {sTag8}, {sEp}, 0xff\ns_and_b32 {sTag16}, {sEp}, 0xffff\ns_and_b32 {sTag2}, {sEp}, 3")
    a("s_barrier")
    kmore(o["y3"])
    a("s_cmp_lg_u32 s3, 0\ns_cbranch_scc1 L_noq")
    a(f"v_and_b32 v8, 0x1f0, {vLin}")
    for i in range(8): a(f"ds_read_b128 {r4(ACC+4*i)}, v8 offset:{L_QRED + 512*i}")
    a("s_waitcnt lgkmcnt(0)")
    for i in range(1, 8):
        for q in range(4): a(f"v_add_f32 v{ACC+q}, v{ACC+q}, v{ACC+4*i+q}")
    if E == 8:
        a(f"s_lshl_b32 {sT0}, s94, 4\ns_lshl_b32 {sT1}, s95, 9\ns_add_u32 {sT0}, {sT0}, {sT1}\ns_add_u32 {sT0}, {sT0}, {WS_QP}")
    else:
        a(f"s_lshl_b32 {sT0}, s94, 4\ns_lshr_b32 {sT1}, s2, 6\ns_lshl_b32 {sT1}, {sT1}, 10\ns_add_u32 {sT0}, {sT0}, {sT1}\ns_and_b32 {sT1}, s2, 1\ns_lshl_b32 {sT1}, {sT1}, 9\ns_add_u32 {sT0}, {sT0}, {sT1}\ns_add_u32 {sT0}, {sT0}, {WS_QP}")
    a("s_mov_b32 exec_hi, 0")
    for q in range(4): a(f"v_and_b32 v{ACC+q}, -4, v{ACC+q}\nv_or_b32 v{ACC+q}, {sTag2}, v{ACC+q}")
    a(f"buffer_store_dwordx4 {r4(ACC)}, v8, {sWS}, {sT0} offen sc1")
    a("s_mov_b64 exec, -1")
    a.label("L_noq")
    stamp("qpub")
    QL = S0
    for k in range(len(kidx), 32):
        pace(D)
        if o["hack"] & 32 and k in (8, 10, 12, 16, 20): stamp(f"k{k-D}")
        kload(k)
        if k == o["qload_pos"]:
            a(f"s_lshl_b32 {sT0}, {sG}, 3\ns_add_u32 {sT0}, {sT0}, s3\ns_lshl_b32 {sT2}, {sT0}, 12\ns_add_u32 {sT2}, {sT2}, {WS_QP}")
            for i in range(4):
                a.pace(D); iq = a.vm(f"buffer_load_dwordx4 {r4(QL+4*i)}, {vLin}, {sWS}, {sT2} offen offset:{1024*i} sc1")
        if k == o["qproc_pos"]:
            a.wait_vm(iq)
            poll([f"buffer_load_dwordx4 {r4(QL+4*i)}, {vLin}, {sWS}, {sT2} offen offset:{1024*i} sc1" for i in range(4)], (list(range(QL, QL+16)), sTag2, "3"), first=False)
            for q in range(16): a(f"v_and_b32 v{QL+q}, -4, v{QL+q}")
            for q in range(4):
                a(f"v_add_f32 v{QL+q}, v{QL+q}, v{QL+4+q}\nv_add_f32 v{QL+8+q}, v{QL+8+q}, v{QL+12+q}")
            for q in range(4): a(f"v_add_f32 v{QL+q}, v{QL+q}, v{QL+8+q}")
            for q in range(4): a(f"v_mov_b32 v{QL+4+q}, v{QL+q}")
            for q in range(4): a(f"v_permlane32_swap_b32 v{QL+4+q}, v{QL+q}")
            for q in range(4): a(f"v_add_f32 v{QL+q}, v{QL+q}, v{QL+4+q}")
            a(f"v_cvt_pk_bf16_f32 v{QL+8}, v{QL}, v{QL+1}\nv_cvt_pk_bf16_f32 v{QL+9}, v{QL+2}, v{QL+3}")
            a(f"v_and_b32 v8, 31, {vLane}\nv_lshlrev_b32 v8, 3, v8\ns_lshl_b32 {sT0}, s3, 8\nv_add_u32 v8, {sT0}, v8")
            a(f"ds_write_b64 v8, {r2(QL+8)} offset:{L_QF}")
            barrier()
            a(f"v_and_b32 v8, 7, {vLane}\nv_lshlrev_b32 v8, 8, v8\nv_lshrrev_b32 v9, 4, {vLane}\nv_lshl_add_u32 v8, v9, 5, v8\nv_bfe_u32 v9, {vLane}, 3, 1\nv_lshl_add_u32 v8, v9, 4, v8")
            a(f"ds_read_b128 {r4(PT)}, v8 offset:{L_QF}\nds_read_b128 {r4(PT+4)}, v8 offset:{L_QF+128}")
            stamp("qready")
    seq = [("w", n) for n in range(4)] if not o["wolate"] else []
    if not o["w1late"]: seq += [("w", n) for n in range(4, 8)]
    if not o["w2late"]: seq += [("w", n) for n in range(8, 12)]
    seq += [("v", i) for i in range(32)]
    order = list(range(32, 44)) + list(range(32))
    place = {e: order[k] for k, e in enumerate(seq)}
    rest = order[len(seq):]
    for n in range(12):
        if ("w", n) not in place: place[("w", n)] = rest.pop(0)
    if o["wolate"] == 1: seq += [("w", n) for n in range(4)]
    def vslot(i): return place[("v", i)]
    def wsl(m): return slot(place[("w", 4*m)])
    widx = {}
    def wsetup():
        a(f"v_lshrrev_b32 v9, 4, {vLane}\nv_and_b32 v8, 15, {vLane}\nv_lshlrev_b32 v8, 4, v8\nv_lshl_add_u32 v12, v9, 13, v8")
        a(f"v_mul_u32_u24 v9, {4*7168}, v9\nv_add_u32 v13, v9, v8")
        if o["dg"]: a(f"v_lshrrev_b32 v9, 5, {vLane}\nv_bfe_u32 v10, {vLane}, 4, 1\nv_lshl_add_u32 v9, v10, 1, v9\nv_lshl_add_u32 v10, v9, 11, v8")
        a(f"s_lshl_b32 s64, {sA}, 17\ns_lshr_b32 {sT0}, s3, 1\ns_lshl_b32 {sT0}, {sT0}, 15\ns_add_u32 s64, s64, {sT0}")
        a(f"s_lshl_b32 {sT0}, {sB}, 9\ns_add_u32 s64, s64, {sT0}\ns_and_b32 {sT0}, s3, 1\ns_lshl_b32 {sT0}, {sT0}, 8\ns_add_u32 s64, s64, {sT0}\ns_mov_b32 s66, s64")
        a(f"s_mul_i32 s69, {sB}, 7\ns_add_u32 s69, s69, s3")
        a(f"s_mul_i32 s65, {sA}, {16*7168}\ns_lshl_b32 {sT0}, s69, 8\ns_add_u32 s65, s65, {sT0}")
        a(f"s_cmp_eq_u32 s3, 7\ns_cselect_b32 s65, 0x7000000, s65")
    def wload(n):
        m, i = n // 4, n % 4
        srd_, vo, sb, st = [(sWO, "v10", "s64", 8192) if o["dg"] else (sWO, "v12", "s64", 2048), (sW1, "v13", "s65", 7168), (sW2, "v12", "s66", 2048)][m]
        widx[n] = a.vm(f"buffer_load_dwordx4 {r4(slot(place[('w', n)]))}, {vo}, {srd_}, {sb} offen nt")
        if i < 3: a(f"s_add_u32 {sb}, {sb}, {st}")
    vidx = {}
    def vload(i):
        vidx[i] = a.vm(f"buffer_load_dwordx4 {r4(slot(vslot(i)))}, {vLin}, {sV}, {sVo} offen offset:{(i%4)*1024} nt")
        if i % 4 == 3: a(f"s_add_u32 {sVo}, {sVo}, 0x200000")
    wsetup()
    def issue(n):
        for _ in range(n):
            kind, i = seq.pop(0)
            pace(o["dl"] if len(vidx) >= o["dlpos"] else D)
            (vload if kind == "v" else wload)(i)
    def issue_np(n):
        for _ in range(n):
            kind, i = seq.pop(0)
            (vload if kind == "v" else wload)(i)
    issue(D)
    a.wait_vm(kidx[31])
    stamp("kdone")
    a("s_waitcnt lgkmcnt(0)")
    for half in range(2):
        for jj in range(8):
            j = half * 8 + jj
            a(f"v_mfma_f32_16x16x32_bf16 {r4(ACC+4*jj)}, {r4(slot(2*j))}, {r4(PT)}, 0")
        for jj in range(8):
            j = half * 8 + jj
            a(f"v_mfma_f32_16x16x32_bf16 {r4(ACC+4*jj)}, {r4(slot(2*j+1))}, {r4(PT+4)}, {r4(ACC+4*jj)}")
        for jj in range(8):
            j = half * 8 + jj; d = ACC + 4 * jj
            a(f"v_add_f32_dpp v{S0+j}, v{d+1}, v{d} row_ror:8 row_mask:0xf bank_mask:0x3")
        for jj in range(8):
            j = half * 8 + jj; d = ACC + 4 * jj
            a(f"v_add_f32_dpp v{S0+j}, v{d+2}, v{d+3} row_ror:8 row_mask:0xf bank_mask:0xc")
        issue_np(o["x1"] if half == 0 else o["x2"])
    for j in range(0, 16, 2):
        x, y = f"v{S0+j}", f"v{S0+j+1}"
        a(f"v_cvt_pk_bf16_f32 v8, {x}, {y}\nv_lshlrev_b32 {x}, 16, v8\nv_and_b32 {y}, {sHI}, v8")
        a(f"v_mul_f32 {x}, {sSC}, {x}\nv_mul_f32 {y}, {sSC}, {y}")
        a(f"v_cvt_pk_bf16_f32 v8, {x}, {y}\nv_lshlrev_b32 {x}, 16, v8\nv_and_b32 {y}, {sHI}, v8")
    a(f"v_max3_f32 {vMw}, v{S0}, v{S0+1}, v{S0+2}")
    for j in range(3, 15, 2): a(f"v_max3_f32 {vMw}, {vMw}, v{S0+j}, v{S0+j+1}")
    a(f"v_max_f32 {vMw}, {vMw}, v{S0+15}")
    red_rows("v_max_f32", vMw, "v8")
    issue_np(o["x3"])
    for j in range(16): a(f"v_sub_f32 v{S0+j}, v{S0+j}, {vMw}")
    for j in range(16): a(f"v_mul_f32 v{S0+j}, {sL2E}, v{S0+j}")
    for j in range(16): a(f"v_exp_f32 v{S0+j}, v{S0+j}")
    a(f"v_add_f32 v11, v{S0}, v{S0+1}")
    for j in range(2, 16): a(f"v_add_f32 v11, v11, v{S0+j}")
    red_rows("v_add_f32", "v11", "v8")
    a(f"v_mov_b32 v10, {vMw}")
    a(f"v_and_b32 v8, 7, {vLane}\nv_lshlrev_b32 v8, 3, v8\ns_lshl_b32 {sT0}, s3, 6\nv_add_u32 v8, {sT0}, v8")
    a(f"ds_write_b64 v8, v[10:11] offset:{L_ML}")
    issue_np(o["x4"])
    barrier()
    issue_np(o["x5"])
    a("s_cmp_lg_u32 s3, 0\ns_cbranch_scc1 L_noml")
    a(f"v_lshlrev_b32 v8, 3, {vLane}\nds_read_b64 v[10:11], v8 offset:{L_ML}\ns_waitcnt lgkmcnt(0)")
    a("v_mov_b32 v9, v10")
    red_rows("v_max_f32", "v9", "v8")
    a(f"v_sub_f32 v10, v10, v9\nv_mul_f32 v10, {sL2E}, v10\nv_exp_f32 v10, v10\nv_mul_f32 v11, v11, v10")
    red_rows("v_add_f32", "v11", "v8")
    a(f"v_or_b32 v10, {sTag16}, v9\nv_and_or_b32 v11, v11, {vMask}, {sTag8}")
    a(f"v_lshlrev_b32 v8, 9, {vLane}\ns_lshl_b32 {sT0}, {sG}, 12\ns_lshl_b32 {sT1}, {sS}, 3\ns_add_u32 {sT0}, {sT0}, {sT1}\ns_add_u32 {sT0}, {sT0}, {WS_ML}")
    a("s_mov_b64 exec, 0xff")
    a(f"buffer_store_dwordx2 v[10:11], v8, {sWS}, {sT0} offen sc1")
    a("s_mov_b64 exec, -1")
    a.label("L_noml")
    stamp("mlpub")
    def pv(u):
        for dp in range(4):
            tb = PT + 8 * (dp & 1)
            for b in range(2):
                for j in range(4):
                    a(f"v_perm_b32 v{tb+4*b+j}, v{slot(vslot(8*u+2*j+1))+dp}, v{slot(vslot(8*u+2*j))+dp}, {sPH if b else sPL}")
            for b in range(2):
                t = 2 * dp + b
                c = "0" if u == 0 else r4(ACC + 4 * t)
                a(f"v_mfma_f32_16x16x32_bf16 {r4(ACC+4*t)}, {r4(S0+4*u)}, {r4(tb+4*b)}, {c}")
    def pvh(u, h):
        for dp in range(4):
            tb = PT + 8 * (dp & 1) + 4 * h * 0
            for b in range(2):
                for j in range(2):
                    jj = 2 * h + j
                    a(f"v_perm_b32 v{tb+2*b+j}, v{slot(vslot(8*u+2*jj+1))+dp}, v{slot(vslot(8*u+2*jj))+dp}, {sPH if b else sPL}")
            for b in range(2):
                t = 2 * dp + b
                a(f"v_mfma_f32_16x16x16_bf16 {r4(ACC+4*t)}, {r2(S0+4*u+2*h)}, {r2(tb+2*b)}, {r4(ACC+4*t)}")
    pvdone = 0; fready = False; iml = None; rsdone = False; irs = None
    Y = 26
    SPARE = slot(vslot(0))
    RSK, XK = SPARE, SPARE + 4
    vA4, vA8 = "v2", "v6"
    a(f"v_lshrrev_b32 v14, 4, {vLane}\nv_lshlrev_b32 v14, 4, v14\nv_and_b32 v8, 3, {vLane}\nv_lshl_add_u32 {vA4}, v8, 6, v14\nv_and_b32 v8, 7, {vLane}\nv_lshl_add_u32 {vA8}, v8, 6, v14")
    a(f"s_lshl_b32 s72, {sA}, 11\ns_lshr_b32 {sT0}, s3, 1\ns_lshl_b32 {sT0}, {sT0}, 9\ns_add_u32 s72, s72, {sT0}\ns_add_u32 s72, s72, {WS_RS}")
    while seq:
        issue(1)
        nv = len(vidx)
        if not o["wolate"] and not rsdone and a.done > widx[3]:
            assert not fready
            a("v_mov_b32 v8, 0x3f803f80")
            for i in range(4): a(f"v_mov_b32 v{ACC+i}, 0")
            for d in range(4):
                for i in range(4): a(f"v_dot2_f32_bf16 v{ACC+i}, v{wsl(0)+4*i+d}, v8, v{ACC+i}")
            for k in (8, 4, 2, 1):
                for i in range(4): a(f"v_add_f32_dpp v{ACC+i}, v{ACC+i}, v{ACC+i} row_ror:{k} row_mask:0xf bank_mask:0xf")
            for i in range(4): a(f"v_and_or_b32 v{ACC+i}, v{ACC+i}, {vMask}, {sTag8}")
            a(f"s_lshl_b32 {sT0}, {sB}, 1\ns_and_b32 {sT1}, s3, 1\ns_add_u32 {sT0}, {sT0}, {sT1}\ns_lshl_b32 {sT0}, {sT0}, 6\ns_add_u32 {sT0}, {sT0}, s72")
            a("s_mov_b32 exec_lo, 0x10001\ns_mov_b32 exec_hi, 0x10001")
            a.pace(D); a.vm(f"buffer_store_dwordx4 {r4(ACC)}, {vA4}, {sWS}, {sT0} offen sc1")
            a("s_mov_b64 exec, -1")
            rsdone = True
        if iml is None and nv > o["ml_pos"]:
            a(f"v_lshlrev_b32 v8, 3, {vLane}\ns_lshl_b32 {sT0}, {sG}, 3\ns_add_u32 {sT0}, {sT0}, s3\ns_lshl_b32 s70, {sT0}, 9\ns_add_u32 s70, s70, {WS_ML}")
            a.pace(D); iml = a.vm(f"buffer_load_dwordx2 v[10:11], v8, {sWS}, s70 offen sc1")
        if iml is not None and not fready and (a.done > iml or not seq):
            a.wait_vm(iml)
            a(f"v_xor_b32 v14, {sTag16}, v10\nv_and_b32 v14, 0xffff, v14\nv_xor_b32 v9, {sTag8}, v11\nv_and_b32 v9, 0xff, v9\nv_or_b32 v14, v14, v9")
            a("v_cmp_ne_u32 vcc, 0, v14\ns_cbranch_vccz L_mlok")
            a(f"s_mov_b32 {sCnt}, 0")
            a.label("L_mlspin")
            a(f"buffer_load_dwordx2 v[10:11], v8, {sWS}, s70 offen sc1\ns_waitcnt vmcnt(0)")
            a(f"s_add_u32 {sCnt}, {sCnt}, 1\ns_cmp_gt_u32 {sCnt}, 0x80000\ns_cbranch_scc1 L_end")
            a(f"v_xor_b32 v14, {sTag16}, v10\nv_and_b32 v14, 0xffff, v14\nv_xor_b32 v9, {sTag8}, v11\nv_and_b32 v9, 0xff, v9\nv_or_b32 v14, v14, v9")
            a("v_cmp_ne_u32 vcc, 0, v14\ns_cbranch_vccnz L_mlspin")
            a.label("L_mlok")
            a(f"v_and_b32 v10, {sHI}, v10\nv_and_or_b32 v11, v11, {vMask}, {s80}\nv_mov_b32 v9, v10")
            red64("v_max_f32", "v9", "v8")
            a(f"v_sub_f32 v10, v10, v9\nv_mul_f32 v10, {sL2E}, v10\nv_exp_f32 v10, v10\nv_mul_f32 v11, v11, v10")
            red64("v_add_f32", "v11", "v8")
            a(f"v_rcp_f32 v11, v11\nv_mov_b32 v10, v9\ns_lshl_b32 {sT0}, s3, 3\nv_mov_b32 v8, {sT0}")
            a(f"ds_write_b64 v8, v[10:11] offset:{L_MLG}")
            issue(min(o["f0"], len(seq)))
            barrier()
            issue(min(o["f1"], len(seq)))
            a(f"v_and_b32 v8, 7, {vLane}\nv_lshlrev_b32 v8, 3, v8\nds_read_b64 v[10:11], v8 offset:{L_MLG}\ns_waitcnt lgkmcnt(0)")
            a(f"v_sub_f32 v10, {vMw}, v10\nv_mul_f32 v10, {sL2E}, v10\nv_exp_f32 v10, v10\nv_mul_f32 v10, v10, v11")
            a(f"v_bfe_u32 v9, {vLane}, 3, 1\nv_cmp_eq_u32 vcc, 1, v9\nv_mov_b32 v9, 0xffff\nv_mov_b32 v8, {sHI}\nv_cndmask_b32 v9, v9, v8, vcc")
            for j in range(16): a(f"v_mul_f32 v{S0+j}, v{S0+j}, v10")
            for j in range(16): a(f"v_cvt_pk_bf16_f32 v{S0+j}, v{S0+j}, v{S0+j}")
            for j in range(16): a(f"v_and_b32 v{S0+j}, v{S0+j}, v9")
            issue(min(o["f2"], len(seq)))
            fready = True
            stamp("fready")
        while fready and pvdone < 4 and (8 * pvdone + 7) in vidx and a.done > vidx[8 * pvdone + 7]:
            pv(pvdone); pvdone += 1
            if pvdone == 2:
                if not o["wolate"]:
                    a.pace(D); irs = a.vm(f"buffer_load_dwordx4 {r4(RSK)}, {vA8}, {sWS}, s72 offen sc1")
                a(f"v_lshrrev_b32 v8, 4, {vLane}\nv_lshlrev_b32 v8, 3, v8\ns_lshl_b32 {sT0}, {sA}, 5")
                a.pace(D); ixr = a.vm(f"buffer_load_dwordx2 {r2(XK)}, v8, {sX}, {sT0} offen")
            if o["pv1"] and (seq or pvdone >= 2): break
    for n in range(4, 4 + {2: 4, 3: 2, 4: 1}.get(o["w1at"], 0)): wload(n)
    vRW, vOW, vH1, vPub4, vRP, vAO, vRB = "v9", "v10", "v11", "v5", "v7", "v30", "v31"
    G0, AO = 16, 24
    HK = SPARE + 8
    vLR = f"v{SPARE+13}" if o["pairl"] == 2 else vLin
    vP4L, vP4S = f"v{SPARE+12}", f"v{SPARE+13}"
    TW = SPARE + 16
    DR = ACC
    def q16(b, lb):
        a(f"v_permlane32_swap_b32 v{b}, v{b+1}\nv_permlane32_swap_b32 v{b+2}, v{b+3}")
        a(f"v_add_f32 v{b}, v{b}, v{b+1}\nv_add_f32 v{b+2}, v{b+2}, v{b+3}")
        a(f"v_permlane16_swap_b32 v{b}, v{b+2}\nv_add_f32 v{b}, v{b}, v{b+2}")
        for k in (4, 8): a(f"v_add_f32_dpp v{b}, v{b}, v{b} row_ror:{k} row_mask:0xf bank_mask:0xf")
        a(f"ds_write_b32 {vRW}, v{b} offset:{lb}")
    def dppsum(regs, n):
        for pat in ("quad_perm:[1,0,3,2]", "quad_perm:[2,3,0,1]", "row_half_mirror")[:n]:
            for r in regs: a(f"v_add_f32_dpp v{r}, v{r}, v{r} {pat} row_mask:0xf bank_mask:0xf")
    def dppsel(regs, n, t):
        pats = ("quad_perm:[1,0,3,2]", "quad_perm:[2,3,0,1]", "row_ror:4")[:n]
        for pat in pats[:-1]:
            for r in regs: a(f"v_add_f32_dpp v{r}, v{r}, v{r} {pat} row_mask:0xf bank_mask:0xf")
        for b, r in enumerate(regs): a(f"v_add_f32_dpp v{t}, v{r}, v{r} {pats[-1]} row_mask:0xf bank_mask:{1 << b}")
    def quadsum(t):
        for pat in ("quad_perm:[1,0,3,2]", "quad_perm:[2,3,0,1]"):
            a(f"v_add_f32_dpp v{t}, v{t}, v{t} {pat} row_mask:0xf bank_mask:0xf")
    def bcast4(d, t):
        for q in range(4): a(f"v_mov_b32_dpp v{d+q}, v{t} row_newbcast:{4*q} row_mask:0xf bank_mask:0xf")
    def unpack4(d, p):
        a(f"v_lshlrev_b32 v{d}, 16, v{p}\nv_and_b32 v{d+1}, {sHI}, v{p}\nv_lshlrev_b32 v{d+2}, 16, v{p+1}\nv_and_b32 v{d+3}, {sHI}, v{p+1}")
    def pack4(p, d):
        a(f"v_cvt_pk_bf16_f32 v{p}, v{d}, v{d+1}\nv_cvt_pk_bf16_f32 v{p+1}, v{d+2}, v{d+3}")
    def add4(d, x):
        if o["pk"]:
            for q in (0, 2): a(f"v_pk_add_f32 {r2(d+q)}, {r2(d+q)}, {r2(x+q)}")
        else:
            for q in range(4): a(f"v_add_f32 v{d+q}, v{d+q}, v{x+q}")
    def ldx4(r, vo, so, off=0): return f"buffer_load_dwordx4 {r4(r)}, {vo}, {sWS}, {so} offen offset:{off} sc1"
    R8 = list(range(G0, G0+8)); R4_ = list(range(G0, G0+4))
    def latew(m, upto=4):
        for n in range(4*m, 4*m+upto):
            if n not in widx: wload(n)
    def wl4(m):
        for n in range(4*m, 4*m+4): wload(n)
    def unless_early(f, lab_):
        a(f"s_cmp_lg_u32 s93, 0\ns_cbranch_scc1 {lab_}"); f(); a.label(lab_)
    M4 = o["m4"] and o["one"] == 2
    A4 = HK
    def mfma8(A, T):
        if M4:
            a(f"s_mov_b64 exec, s[86:87]"); pack4(A4, G0)
            a(f"s_mov_b64 exec, s[88:89]"); pack4(A4+2, G0)
            a("s_mov_b64 exec, -1")
            for t in range(4): a(f"v_mfma_f32_16x16x32_bf16 {r4(DR+4*t)}, {r4(A4)}, {r4(T+4*t)}, 0")
            return
        pack4(AO, G0)
        for t in range(8): a(f"v_mfma_f32_16x16x16_bf16 {r4(DR+4*t)}, {r2(A)}, {r2(T+2*t)}, 0")
    def sel4(tag):
        if M4:
            for q in range(4): a(f"v_and_or_b32 v{Y+q}, v{DR+4*q}, {vMask}, {sTag8}" if tag else f"v_mov_b32 v{Y+q}, v{DR+4*q}")
            return
        for q in range(4): a(f"v_cndmask_b32 v{Y+q}, v{DR+4*q}, v{DR+4*(q+4)}, {sM4}")
        if tag:
            for q in range(4): a(f"v_and_or_b32 v{Y+q}, v{Y+q}, {vMask}, {sTag8}")
    def big_reduce(lb):
        strip(R8)
        add4(G0, G0+4)
        a(f"v_permlane32_swap_b32 v{G0}, v{G0+1}\nv_permlane32_swap_b32 v{G0+2}, v{G0+3}")
        a(f"v_add_f32 v{G0}, v{G0}, v{G0+1}\nv_add_f32 v{G0+2}, v{G0+2}, v{G0+3}\nv_permlane16_swap_b32 v{G0}, v{G0+2}\nv_add_f32 v{G0}, v{G0}, v{G0+2}")
        a(f"ds_write_b32 {vRP}, v{G0} offset:{lb}")
    def cu_reduce_pub(lb, sdst, lab_, extra=None):
        if o["par4"] and o["one"] == 2 and not o["pairl"]:
            a(f"s_cmp_ge_u32 s3, 4\ns_cbranch_scc1 {lab_}")
            if extra: a(f"v_mov_b32 v8, 0\nds_read_b128 {r4(G0)}, v8 offset:{L_SA}")
            a(f"ds_read2st64_b32 {r2(ACC)}, {vP4L} offset0:{lb // 256} offset1:{lb // 256 + 4}\nds_read2st64_b32 {r2(ACC+2)}, {vP4L} offset0:{lb // 256 + 8} offset1:{lb // 256 + 12}")
            if extra:
                a(f"s_waitcnt lgkmcnt(2)\nv_add_f32 v{G0}, v{G0}, v{G0+1}\nv_add_f32 v{G0+2}, v{G0+2}, v{G0+3}\nv_add_f32 v{G0}, v{G0}, v{G0+2}\nv_bfe_u32 v{G0}, v{G0}, {vP4S}, 8")
                a(f"v_mov_b32 v8, {sTag8}\nv_cndmask_b32 v{G0}, v8, v{G0}, s[94:95]")
            a(f"s_waitcnt lgkmcnt(0)\nv_add_f32 v{ACC}, v{ACC}, v{ACC+1}\nv_add_f32 v{ACC+2}, v{ACC+2}, v{ACC+3}\nv_add_f32 v{ACC}, v{ACC}, v{ACC+2}")
            a(f"v_and_or_b32 v{ACC}, v{ACC}, {vMask}, " + (f"v{G0}" if extra else sTag8))
            a(f"buffer_store_dword v{ACC}, {vOW}, {sWS}, {sdst} offen sc1")
            a.label(lab_)
            return
        a(f"s_cmp_lg_u32 s3, 0\ns_cbranch_scc1 {lab_}")
        if extra and o["sarid"]:
            a(f"v_mov_b32 v8, 0\nds_read_b128 {r4(G0)}, v8 offset:{L_SA}")
            for i in range(4): a(f"ds_read_b128 {r4(ACC+4*i)}, {vLR} offset:{lb + 1024*i}")
            a(f"s_waitcnt lgkmcnt(4)\nv_add_f32 v{G0}, v{G0}, v{G0+1}\nv_add_f32 v{G0+2}, v{G0+2}, v{G0+3}\nv_add_f32 v{G0}, v{G0}, v{G0+2}\nv_bfe_u32 v{G0}, v{G0}, {vSh}, 8")
            for i in range(1, 4):
                a(f"s_waitcnt lgkmcnt({3 - i})")
                for q in range(4): a(f"v_add_f32 v{ACC+q}, v{ACC+q}, v{ACC+4*i+q}")
            for q in range(3): a(f"v_and_or_b32 v{ACC+q}, v{ACC+q}, {vMask}, {sTag8}")
            a(f"v_and_or_b32 v{ACC+3}, v{ACC+3}, {vMask}, v{G0}")
            a(f"buffer_store_dwordx4 {r4(ACC)}, {vOW}, {sWS}, {sdst} offen sc1")
            a.label(lab_)
            return
        for i in range(4): a(f"ds_read_b128 {r4(ACC+4*i)}, {vLR} offset:{lb + 1024*i}")
        if extra: a(f"v_mov_b32 v8, 0\nds_read_b128 {r4(G0)}, v8 offset:{L_SA}")
        for i in range(1, 4):
            a(f"s_waitcnt lgkmcnt({3 - i + (1 if extra else 0)})")
            for q in range(4): a(f"v_add_f32 v{ACC+q}, v{ACC+q}, v{ACC+4*i+q}")
        for q in range(4): a(f"v_and_or_b32 v{ACC+q}, v{ACC+q}, {vMask}, {sTag8}")
        a(f"buffer_store_dwordx4 {r4(ACC)}, {vOW}, {sWS}, {sdst} offen sc1")
        if extra: extra()
        a.label(lab_)
    def pub2(base):
        a(f"v_mov_b32 v{Y+2}, {sEp}\nv_mov_b32 v{Y+3}, {sEp}")
        a(f"v_lshlrev_b32 v8, 10, {vLane}\ns_lshl_b32 {sT0}, {sB}, 11\ns_lshl_b32 {sT1}, {sA}, 4\ns_add_u32 {sT0}, {sT0}, {sT1}\ns_add_u32 {sT0}, {sT0}, {base}")
        a("s_mov_b64 exec, 3")
        a(f"buffer_store_dwordx4 {r4(Y)}, v8, {sWS}, {sT0} offen sc1")
    a(f"v_bfe_u32 v14, {vLane}, 4, 1\nv_lshlrev_b32 v8, 3, v14\nv_lshrrev_b32 v14, 5, {vLane}\nv_lshl_add_u32 v8, v14, 2, v8")
    vL4 = f"v{SPARE+6}"; RSS = SPARE + 7; vDG = f"v{SPARE+15}"
    if o["one"] == 2:
        a(f"v_and_b32 v14, 3, {vLane}\nv_lshl_add_u32 {vRW}, v14, 4, v8\nv_lshlrev_b32 {vRW}, 2, {vRW}\ns_lshl_b32 {sT0}, s3, 2\nv_add_u32 {vRW}, {sT0}, {vRW}")
        a(f"v_and_b32 v14, 15, {vLane}\nv_lshl_add_u32 {vRP}, v14, 4, v8\nv_lshlrev_b32 {vRP}, 3, {vRP}")
        if o["swz"]: a(f"v_lshrrev_b32 v14, 1, v14\nv_add_u32 v14, s3, v14\nv_and_b32 v14, 7, v14\nv_lshl_add_u32 {vRP}, v14, 2, {vRP}")
        else: a(f"v_add_u32 {vRP}, {sT0}, {vRP}")
        a(f"v_lshlrev_b32 {vL4}, 2, {vLane}")
    else:
        a(f"v_and_b32 v14, 3, {vLane}\nv_lshl_add_u32 {vRW}, v14, 4, v8\ns_lshl_b32 {sT0}, s3, 6\nv_add_u32 {vRW}, {sT0}, {vRW}")
        a(f"v_and_b32 v14, 15, {vLane}\nv_lshl_add_u32 {vRP}, v14, 4, v8\ns_mul_i32 {sT0}, s3, {256 + o['lpad']}\nv_add_u32 {vRP}, {sT0}, {vRP}")
    if o["owc"]:
        a(f"v_and_b32 v8, 15, {vLane}\nv_lshlrev_b32 v8, 4, v8\nv_lshrrev_b32 v14, 5, {vLane}\nv_lshl_add_u32 v8, v14, 8, v8\nv_bfe_u32 v14, {vLane}, 4, 1\nv_lshl_add_u32 v8, v14, 9, v8")
    else:
        a(f"v_and_b32 v8, 15, {vLane}\nv_lshlrev_b32 v8, 5, v8\nv_lshrrev_b32 v14, 5, {vLane}\nv_lshl_add_u32 v8, v14, 4, v8\nv_bfe_u32 v14, {vLane}, 4, 1\nv_lshl_add_u32 v8, v14, 9, v8")
    a(f"s_lshl_b32 {sT0}, s3, 12\nv_add_u32 {vOW}, {sT0}, v8")
    if o["owc"]:
        a(f"v_lshrrev_b32 v8, 5, {vLane}\nv_lshlrev_b32 v8, 3, v8\nv_bfe_u32 v14, {vLane}, 3, 1\nv_add_u32 v8, v8, v14\nv_mul_u32_u24 v8, {STB}, v8\nv_and_b32 v14, 7, {vLane}\nv_lshl_add_u32 v8, v14, 5, v8\nv_bfe_u32 v14, {vLane}, 4, 1\nv_lshl_add_u32 {vH1}, v14, 4, v8")
    else:
        a(f"v_lshrrev_b32 v8, 5, {vLane}\nv_lshlrev_b32 v8, 3, v8\nv_bfe_u32 v14, {vLane}, 4, 1\nv_add_u32 v8, v8, v14\nv_mul_u32_u24 v8, {STB}, v8\nv_and_b32 v14, 15, {vLane}\nv_lshl_add_u32 {vH1}, v14, 4, v8")
    a(f"s_mul_i32 s71, {sG}, {16*STB}\ns_mul_i32 {sT0}, s3, {2*STB}\ns_add_u32 s71, s71, {sT0}\ns_lshl_b32 {sT0}, {sS}, 8\ns_add_u32 s71, s71, {sT0}\ns_add_u32 s71, s71, {WS_H1}")
    a(f"v_bfe_u32 v8, {vLane}, 3, 1\nv_mul_u32_u24 v8, {STB}, v8\nv_and_b32 v14, 7, {vLane}\nv_lshl_add_u32 v8, v14, 5, v8\nv_bfe_u32 v14, {vLane}, 4, 1\nv_lshl_add_u32 {vPub4}, v14, 4, v8")
    a(f"s_mul_i32 s73, s69, {2*STB}\ns_lshl_b32 {sT0}, {sA}, 8\ns_add_u32 s73, s73, {sT0}\ns_add_u32 s73, s73, {WS_H4}")
    if o["hack"] & 4:
        a(f"v_bfe_u32 v8, {vLane}, 3, 1\nv_lshlrev_b32 v8, 8, v8\nv_and_b32 v14, 7, {vLane}\nv_lshl_add_u32 v8, v14, 5, v8\nv_bfe_u32 v14, {vLane}, 4, 1\nv_lshl_add_u32 {vPub4}, v14, 4, v8")
        a(f"s_lshr_b32 {sT0}, s2, 3\ns_mul_i32 {sT0}, {sT0}, 7\ns_add_u32 {sT0}, {sT0}, s3\ns_lshl_b32 {sT0}, {sT0}, 1")
        a(f"s_lshr_b32 {sT1}, {sT0}, 6\ns_lshl_b32 {sT1}, {sT1}, 3\ns_and_b32 s73, s2, 7\ns_add_u32 s73, s73, {sT1}\ns_mul_i32 s73, s73, {STB}")
        a(f"s_and_b32 {sT0}, {sT0}, 63\ns_lshl_b32 {sT0}, {sT0}, 8\ns_add_u32 s73, s73, {sT0}\ns_add_u32 s73, s73, {WS_H4}")
    a(f"s_mul_i32 s74, {sA}, {STB}\ns_lshl_b32 {sT0}, s3, 11\ns_add_u32 s74, s74, {sT0}")
    STP = 8192 + o["pads"]
    vGS = f"v{SPARE+12}" if o["pairl"] else vLin
    if o["pairl"]:
        a(f"s_mul_i32 s75, {sB}, {8*STP}\ns_lshl_b32 {sT0}, {sA}, 7\ns_add_u32 s75, s75, {sT0}")
        a(f"s_lshr_b32 {sT0}, {sA}, 4\ns_lshl_b32 {sT0}, {sT0}, 3\ns_and_b32 {sT1}, {sA}, 7\ns_add_u32 {sT0}, {sT0}, {sT1}\ns_mul_i32 s76, {sT0}, {STP}")
        a(f"s_bfe_u32 {sT0}, {sA}, 0x10003\ns_lshl_b32 {sT0}, {sT0}, 6\ns_add_u32 s76, s76, {sT0}\ns_lshl_b32 {sT0}, s3, 11\ns_add_u32 s76, s76, {sT0}")
        a(f"v_lshrrev_b32 v8, 2, {vLane}\nv_lshlrev_b32 v8, 7, v8\nv_and_b32 v14, 3, {vLane}\nv_lshl_add_u32 {vGS}, v14, 4, v8")
    else:
        a(f"s_mul_i32 s75, {sB}, {16*STS}\ns_lshl_b32 {sT0}, {sA}, 6\ns_add_u32 s75, s75, {sT0}")
        a(f"s_mul_i32 s76, {sA}, {STS}\ns_lshl_b32 {sT0}, s3, 10\ns_add_u32 s76, s76, {sT0}")
    a("s_mov_b32 s79, 0")
    a(f"s_and_b32 s77, s2, 7\ns_lshl_b32 s77, s77, 10")
    a.wait_vm(ixr)
    if not o["wolate"]:
        poll([ldx4(RSK, vA8, "s72")], (list(range(RSK, RSK+4)), sTag8, "0xff"), first=False)
        strip(range(RSK, RSK+4))
        dppsum(range(RSK, RSK+4), 3)
    else:
        for q in range(4): a(f"v_mov_b32 v{RSK+q}, 0")
    unpack4(HK, XK)
    HS = SPARE + 14
    if o["one"]:
        for b in range(4): a(f"v_mov_b32_dpp v{HS}, v{HK+b} quad_perm:[0,1,2,3] row_mask:0xf bank_mask:{1 << b}")
    if o["one"] == 2:
        if o["dg"]:
            a(f"v_mov_b32 v{RSS}, v{RSK}")
            for b in range(1, 4): a(f"s_mov_b32 s80, {0x11111111 << b}\ns_mov_b32 s81, s80\nv_cndmask_b32 v{RSS}, v{RSS}, v{RSK+b}, s[80:81]")
            a(f"v_lshrrev_b32 v8, 2, {vLane}\nv_lshlrev_b32 v8, 8, v8\nv_and_b32 v14, 3, {vLane}\nv_lshl_add_u32 {vDG}, v14, 4, v8")
        else:
            for b in range(4): a(f"v_mov_b32_dpp v{RSS}, v{RSK+b} quad_perm:[0,1,2,3] row_mask:0xf bank_mask:{1 << b}")
    if M4:
        for q in range(4): a(f"v_mov_b32 v{A4+q}, 0")
        a("s_mov_b32 s86, 0x0f0f0f0f\ns_mov_b32 s87, 0x0f0f0f0f\ns_mov_b32 s88, 0xf0f0f0f0\ns_mov_b32 s89, 0xf0f0f0f0")
    vSh = vA8
    if o["sarid"]: a(f"v_and_b32 {vSh}, 3, {vLane}\nv_lshlrev_b32 {vSh}, 3, {vSh}")
    while pvdone < 4:
        if pvdone == 3 and o["pvs"]:
            a.wait_vm(vidx[27]); pvh(3, 0); a.wait_vm(vidx[31]); pvh(3, 1)
        else:
            a.wait_vm(vidx[8 * pvdone + 7]); pv(pvdone)
        pvdone += 1
    stamp("vdone")
    if o["wolate"] == 2: latew(0)
    if o["w1at"]: latew(1)
    for r in range(4):
        for t in range(4):
            a(f"v_permlane32_swap_b32 v{ACC+4*t+r}, v{ACC+4*(t+4)+r}")
        for t in range(4):
            a(f"v_add_f32 v{PT+4*r+t}, v{ACC+4*t+r}, v{ACC+4*(t+4)+r}")
        a(f"ds_write_b128 {vOW}, {r4(PT+4*r)} offset:{L_O + 1024*r}")
    barrier()
    a("s_cmp_ge_u32 s3, 4\ns_cbranch_scc1 L_noh1")
    a(f"s_lshl_b32 {sT0}, s3, 10\nv_add_u32 v8, {sT0}, {vLin}")
    for i in range(8): a(f"ds_read_b128 {r4(ACC+4*i)}, v8 offset:{L_O + 4096*i}")
    for i in range(1, 8):
        a(f"s_waitcnt lgkmcnt({7-i})")
        add4(ACC, ACC+4*i)
    for q in range(4): a(f"v_and_or_b32 v{ACC+q}, v{ACC+q}, {vMask}, {sTag8}")
    a(f"buffer_store_dwordx4 {r4(ACC)}, {vH1}, {sWS}, s71 offen sc1")
    a.label("L_noh1")
    stamp("h1pub")
    if o["adapt"]: a("s_mov_b32 s93, 0")
    elif 1:
        if o["w1s"]:
            a(("s_cmp_ge_u32 s3, 4" if o["w1s"] == 1 else "s_cmp_lt_u32 s3, 4") + "\ns_cbranch_scc1 L_w1s"); wl4(1); a.label("L_w1s")
        elif o["w1late"]: latew(1, o["w1pre"])
        if o["w2late"]: latew(2, o["w2p0"])
    if not o["wolate"]: wtrans(wsl(0), TW, M4)
    if o["one"] == 2:
        a(f"v_lshlrev_b32 v8, 3, {vLane}\ns_lshr_b32 {sT0}, s3, 1\ns_lshl_b32 {sT0}, {sT0}, 9\nv_add_u32 {vAO}, {sT0}, v8")
    else:
        a(f"v_and_b32 v8, 7, {vLane}\nv_mul_u32_u24 v8, {256 + o['lpad']}, v8\nv_lshrrev_b32 v14, 4, {vLane}\nv_lshl_add_u32 v8, v14, 4, v8\ns_lshr_b32 {sT0}, s3, 1\ns_lshl_b32 {sT0}, {sT0}, 6\nv_add_u32 {vAO}, {sT0}, v8")
    a(f"v_and_b32 v8, 15, {vLane}\nv_lshlrev_b32 v8, 5, v8\nv_bfe_u32 v14, {vLane}, 4, 1\nv_lshl_add_u32 v8, v14, 4, v8\ns_lshl_b32 {sT0}, s3, 9\nv_add_u32 {vRB}, {sT0}, v8")
    if o["pairl"] == 2:
        a(f"v_lshrrev_b32 v8, 3, {vLane}\nv_mul_u32_u24 v8, {STP}, v8\nv_and_b32 v14, 7, {vLane}\nv_lshl_add_u32 {vOW}, v14, 4, v8")
        a(f"v_lshrrev_b32 v8, 3, {vLane}\nv_lshlrev_b32 v8, 6, v8\nv_bfe_u32 v14, {vLane}, 2, 1\nv_lshl_add_u32 v8, v14, 9, v8\nv_and_b32 v14, 3, {vLane}\nv_lshl_add_u32 {vLR}, v14, 4, v8")
    elif o["pairl"]:
        a(f"v_bfe_u32 v8, {vLane}, 2, 3\nv_mul_u32_u24 v8, {STP}, v8\nv_lshrrev_b32 v14, 5, {vLane}\nv_lshl_add_u32 v8, v14, 6, v8\nv_and_b32 v14, 3, {vLane}\nv_lshl_add_u32 {vOW}, v14, 4, v8")
    elif o["par4"] and o["one"] == 2:
        a(f"v_lshrrev_b32 v8, 4, {vLane}\ns_lshl_b32 {sT0}, s3, 2\nv_add_u32 v8, {sT0}, v8\nv_mul_u32_u24 v8, {STS}, v8\nv_and_b32 v14, 15, {vLane}\nv_lshl_add_u32 {vOW}, v14, 2, v8")
        a(f"s_lshl_b32 {sT0}, s3, 8\nv_add_u32 {vP4L}, {sT0}, {vL4}\nv_bfe_u32 v8, {vLane}, 2, 2\nv_lshlrev_b32 {vP4S}, 3, v8")
        a("s_mov_b32 s94, 0x88888888\ns_mov_b32 s95, 0x88888888")
    else:
        a(f"v_lshrrev_b32 v8, 2, {vLane}\nv_mul_u32_u24 v8, {STS}, v8\nv_and_b32 v14, 3, {vLane}\nv_lshl_add_u32 {vOW}, v14, 4, v8")
    a(f"s_lshr_b32 {sT0}, s3, 1\ns_lshl_b32 {sT0}, {sT0}, 2\nv_mov_b32 {vH1}, {sT0}")
    a(f"s_add_u32 {sT0}, s74, {WS_H1}")
    def early_w():
        wl4(1)
        if o["adw2"]: wl4(2)
    if o["dg"]:
        a(f"s_mul_i32 s80, {sA}, {STB}\ns_lshr_b32 {sT0}, s3, 1\ns_lshl_b32 {sT0}, {sT0}, 6\ns_add_u32 s80, s80, {sT0}\ns_add_u32 s80, s80, {WS_H1}")
        a("s_add_u32 s81, s80, 4096\ns_add_u32 s82, s80, 8192\ns_add_u32 s83, s80, 12288")
        R16 = list(range(ACC, ACC+16))
        poll([ldx4(ACC+4*i, vDG, f"s{80+i}") for i in range(4)], (R16, sTag8, "0xff"), o["d1"])
    else:
        poll([ldx4(G0, vLin, sT0), ldx4(G0+4, vLin, sT0, 1024)], (R8, sTag8, "0xff"), o["d1"], early=early_w if o["adapt"] else None, back=o["back1"], sep=o["sep"],
             mid=(lambda: wtrans(wsl(0), TW, M4)) if o["wolate"] else None)
    if o["adapt"]: unless_early(lambda: wl4(1), "L_w1e")
    if o["w1late"]: latew(1, o["w1p1"])
    if o["w2late"] and o["w2pos"] == 1: latew(2)
    if o["w2late"]: latew(2, o["w2pre"])
    if o["w1s"]:
        a(("s_cmp_lt_u32 s3, 4" if o["w1s"] == 1 else "s_cmp_ge_u32 s3, 4") + "\ns_cbranch_scc1 L_w1t"); wl4(1); a.label("L_w1t")
    if o["w2s"] == 2:
        a("s_cmp_lt_u32 s3, 4\ns_cbranch_scc1 L_w2u"); wl4(2); a.label("L_w2u")
    stamp("p1")
    if o["dg"]:
        strip(R16)
        b = ACC; dp = "row_mask:0xf bank_mask:0xf"; t = G0 + 4; u = t + 1
        for q in range(4): a(f"v_add_f32 v{b+q}, v{b+q}, v{b+4+q}\nv_add_f32 v{b+8+q}, v{b+8+q}, v{b+12+q}")
        for q in range(4): a(f"v_add_f32 v{b+q}, v{b+q}, v{b+8+q}")
        a(f"v_permlane32_swap_b32 v{b}, v{b+1}\nv_permlane32_swap_b32 v{b+2}, v{b+3}")
        a(f"v_add_f32 v{b}, v{b}, v{b+1}\nv_add_f32 v{b+2}, v{b+2}, v{b+3}")
        a(f"v_permlane16_swap_b32 v{b}, v{b+2}\nv_add_f32 v{t}, v{b}, v{b+2}")
        for k in (4, 8): a(f"v_add_f32_dpp v{t}, v{t}, v{t} row_ror:{k} {dp}")
        stamp("h1got")
        a(f"v_cvt_pk_bf16_f32 v{u}, v{t}, v{t}")
        for q in range(4): a(f"v_mov_b32_dpp v{G0+q}, v{t} quad_perm:[{q},{q},{q},{q}] {dp}")
        a(f"v_lshlrev_b32 v{u}, 16, v{u}")
        a(f"s_mov_b64 exec, s[86:87]"); pack4(A4, G0)
        a(f"s_mov_b64 exec, s[88:89]"); pack4(A4+2, G0)
        a(f"s_mov_b64 exec, -1\nv_mul_f32 v{G0}, v{u}, v{RSS}")
        for tt in range(4):
            a(f"v_mfma_f32_16x16x32_bf16 {r4(DR+4*tt)}, {r4(A4)}, {r4(TW+4*tt)}, 0")
            if tt & 1: a(f"v_add_f32_dpp v{G0}, v{G0}, v{G0} quad_perm:{'[1,0,3,2]' if tt == 1 else '[2,3,0,1]'} {dp}")
    else:
        big_reduce(L_R1)
        barrier()
        if o["one"] == 2:
            t = G0 + 4
            a(f"ds_read_b64 {r2(t)}, {vAO} offset:{L_R1}\ns_waitcnt lgkmcnt(0)\nv_add_f32 v{t}, v{t}, v{t+1}")
            quadsum(t)
            stamp("h1got")
            if o["rs1"] == 2:
                u = t + 1; dp = "row_mask:0xf bank_mask:0xf"
                a(f"v_cvt_pk_bf16_f32 v{u}, v{t}, v{t}")
                bcast4(G0, t)
                a(f"v_lshlrev_b32 v{u}, 16, v{u}")
                a(f"s_mov_b64 exec, s[86:87]"); pack4(A4, G0)
                a(f"s_mov_b64 exec, s[88:89]"); pack4(A4+2, G0)
                a(f"s_mov_b64 exec, -1\nv_mul_f32 v{G0}, v{u}, v{RSS}")
                for tt in range(4):
                    a(f"v_mfma_f32_16x16x32_bf16 {r4(DR+4*tt)}, {r4(A4)}, {r4(TW+4*tt)}, 0")
                    if tt & 1: a(f"v_add_f32_dpp v{G0}, v{G0}, v{G0} row_ror:{4 if tt == 1 else 8} {dp}")
            else:
                bcast4(G0, t)
                mfma8(AO, TW)
                if o["rs1"]: a(f"s_lshr_b32 {sT0}, 0x69, s3\ns_bitcmp0_b32 {sT0}, 0\ns_cbranch_scc1 L_nrsw")
                bf16r(f"v{t}", f"v{t}")
                a(f"v_mul_f32 v{G0}, v{t}, v{RSS}")
                for k in (4, 8): a(f"v_add_f32_dpp v{G0}, v{G0}, v{G0} row_ror:{k} row_mask:0xf bank_mask:0xf")
        else:
            a(f"ds_read_b128 {r4(G0)}, {vAO} offset:{L_R1}\ns_waitcnt lgkmcnt(0)")
            dppsum(R4_, 3)
            stamp("h1got")
            mfma8(AO, TW)
            unpack4(G0, AO)
            a(f"v_mul_f32 v{G0}, v{G0}, v{RSK}")
            for q in range(1, 4): a(f"v_fmac_f32 v{G0}, v{G0+q}, v{RSK+q}")
    red4(f"v{G0}", "v8")
    a(f"ds_write_b32 {vH1}, v{G0} offset:{L_SA}")
    if o["rs1"] == 1 and o["one"] == 2:
        a("s_branch L_nrs"); a.label("L_nrsw"); a("s_nop 7"); a.label("L_nrs")
    sel4(False)
    a(f"ds_write_b128 {vRB}, {r4(Y)} offset:{L_B}")
    barrier()
    def sapub():
        a(f"s_waitcnt lgkmcnt(0)\nv_add_f32 v{G0}, v{G0}, v{G0+1}\nv_add_f32 v{G0+2}, v{G0+2}, v{G0+3}\nv_add_f32 v{Y}, v{G0}, v{G0+2}")
        a(f"v_and_or_b32 v{Y}, v{Y}, {vMask}, {sTag8}\nv_mov_b32 v{Y+1}, {sTag8}")
        pub2(WS_SA)
        a("s_mov_b64 exec, -1")
    a(f"s_add_u32 s78, s75, {WS_H2}")
    cu_reduce_pub(L_B, "s78", "L_nob", sapub)
    stamp("h2pub")
    if o["w1late"]: latew(1)
    if o["w2late"]: latew(2, o["w2p2"])
    for r in range(o["xh"]):
        xb = 0x400000 + r * 0x50000
        a(f"s_cmp_lg_u32 s3, 0\ns_cbranch_scc1 L_x{r}a")
        for q in range(4): a(f"v_mov_b32 v{ACC+16+q}, {sTag8}")
        a(f"s_add_u32 {sT0}, s75, {xb}\nbuffer_store_dwordx4 {r4(ACC+16)}, {vOW}, {sWS}, {sT0} offen sc1")
        a.label(f"L_x{r}a")
        a(f"s_cmp_ge_u32 s3, 4\ns_cbranch_scc1 L_x{r}b\ns_add_u32 {sT0}, s76, {xb}")
        st_, o["stamps"] = o["stamps"], 0
        poll([ldx4(G0, vGS, sT0)], (R4_, sTag8, "0xff"), o["d2"])
        o["stamps"] = st_
        a.label(f"L_x{r}b")
        barrier()
    tr1 = lambda: wtrans(wsl(1), TW, M4)
    a("s_cmp_ge_u32 s3, 4\ns_cbranch_scc1 L_g2s")
    a(f"s_add_u32 {sT0}, s76, {WS_H2}")
    if o["sarid"]:
        poll([ldx4(G0, vGS, sT0)], (R4_[:3], sTag8, "0xff"), o["d2"], mid=tr1)
        b, t, u = G0, G0 + 4, G0 + 5
        dp = "row_mask:0xf bank_mask:0xf"
        a(f"v_and_b32 v{t}, 0xff, v{b+3}\nv_lshlrev_b32 v{t}, {vSh}, v{t}")
        strip(R4_)
        a(f"v_or_b32_dpp v{t}, v{t}, v{t} quad_perm:[1,0,3,2] {dp}")
        a(f"v_permlane32_swap_b32 v{b}, v{b+1}\nv_permlane32_swap_b32 v{b+2}, v{b+3}")
        a(f"v_or_b32_dpp v{t}, v{t}, v{t} quad_perm:[2,3,0,1] {dp}")
        a(f"v_add_f32 v{b}, v{b}, v{b+1}\nv_add_f32 v{b+2}, v{b+2}, v{b+3}")
        a(f"v_add_f32_dpp v{t}, v{t}, v{t} row_ror:4 {dp}")
        a(f"s_lshl_b32 {sT0}, s3, 2\nv_mov_b32 v8, {sT0}")
        a(f"v_permlane16_swap_b32 v{b}, v{b+2}")
        a(f"v_add_f32_dpp v{t}, v{t}, v{t} row_ror:8 {dp}")
        a(f"v_add_f32 v{b}, v{b}, v{b+2}\nv_mov_b32 v{u}, v{t}")
        a(f"v_add_f32_dpp v{b}, v{b}, v{b} row_ror:4 {dp}")
        a(f"v_permlane16_swap_b32 v{u}, v{t}")
        a(f"v_add_f32 v{t}, v{t}, v{u}")
        a(f"v_add_f32_dpp v{b}, v{b}, v{b} row_ror:8 {dp}")
        a(f"v_mov_b32 v{u}, v{t}")
        a(f"ds_write_b32 {vRW}, v{b} offset:{L_R2}")
        a(f"v_permlane32_swap_b32 v{u}, v{t}\nv_add_f32 v{t}, v{t}, v{u}")
        a(f"ds_write_b32 v8, v{t} offset:{L_M2}")
        a("s_branch L_g2")
        a.label("L_g2s")
        a("s_waitcnt vmcnt(0)" if o["w2s"] != 2 else "s_waitcnt vmcnt(4)")
        if o["w2s"] == 1: wl4(2)
        tr1()
        a.label("L_g2")
        stamp("p2")
        if o["w2s"]:
            a("s_cmp_ge_u32 s3, 4\ns_cbranch_scc1 L_w2s")
            for n in range(8, 8 + o["w2p3"]): wload(n)
            a.label("L_w2s")
        elif o["w2late"] and o["w2pos"] == 0: latew(2, o["w2p3"])
        barrier()
        if o["one"] == 2:
            dp = "row_mask:0xf bank_mask:0xf"
            a(f"v_mov_b32 v8, 0\nds_read_b32 v{G0+4}, {vL4} offset:{L_R2}\nds_read_b128 {r4(G0)}, v8 offset:{L_M2}\nv_mov_b32 v14, {sMX}\ns_waitcnt lgkmcnt(0)")
            a(f"v_add_f32_dpp v{G0+4}, v{G0+4}, v{G0+4} quad_perm:[1,0,3,2] {dp}\nv_add_f32 v{G0}, v{G0}, v{G0+1}\nv_add_f32 v{G0+2}, v{G0+2}, v{G0+3}")
            a(f"v_add_f32_dpp v{G0+4}, v{G0+4}, v{G0+4} quad_perm:[2,3,0,1] {dp}\nv_add_f32 v{G0}, v{G0}, v{G0+2}\nv_fmac_f32 v14, {f32(1/1024)}, v{G0}")
            bf16r("v14", "v14")
        else:
            a(f"v_mov_b32 v8, 0\nds_read_b128 {r4(G0+4)}, v8 offset:{L_M2}\nds_read_b128 {r4(G0)}, {vA4} offset:{L_R2}\nv_mov_b32 v14, {sMX}\ns_waitcnt lgkmcnt(1)")
            a(f"v_add_f32 v{G0+4}, v{G0+4}, v{G0+5}\nv_add_f32 v{G0+6}, v{G0+6}, v{G0+7}\nv_add_f32 v{G0+4}, v{G0+4}, v{G0+6}\nv_fmac_f32 v14, {f32(1/1024)}, v{G0+4}")
            bf16r("v14", "v14")
            a("s_waitcnt lgkmcnt(0)")
            if o["one"]: dppsel(R4_, 2, G0+4)
            else: dppsum(R4_, 2)
    else:
        poll([ldx4(G0, vGS, sT0)], (R4_, sTag8, "0xff"), o["d2"], mid=tr1)
        strip(R4_)
        q16(G0, L_R2)
        a("s_branch L_g2")
        a.label("L_g2s")
        a(f"s_cmp_eq_u32 s3, {4 if not o['hack'] & 1 else 9}\ns_cbranch_scc1 L_g2m\ns_waitcnt vmcnt(0)")
        tr1()
        a("s_branch L_g2")
        a.label("L_g2m")
        a(f"s_add_u32 {sT0}, s77, {WS_SA}")
        poll([ldx4(G0, vLin, sT0)], ([G0, G0+1], sTag8, "0xff", G0+2), o["d2"], mid=tr1)
        strip([G0])
        red64("v_add_f32", f"v{G0}", "v8")
        a(f"v_mov_b32 v8, {sMX}\nv_fmac_f32 v8, {f32(1/1024)}, v{G0}")
        bf16r("v8", "v8")
        a(f"v_mov_b32 v14, 0\nds_write_b32 v14, v8 offset:{L_M}")
        a.label("L_g2")
        stamp("p2")
        if o["adapt"] and o["adw2"]: unless_early(lambda: wl4(2), "L_w2e")
        if o["w2late"] and o["w2pos"] == 0: latew(2, o["w2p3"])
        barrier()
        a(f"v_mov_b32 v8, 0\nds_read_b128 {r4(G0)}, {vA4} offset:{L_R2}\nds_read_b32 v14, v8 offset:{L_M}\ns_waitcnt lgkmcnt(1)")
        dppsum(R4_, 2)
    stamp("h2got")
    if o["one"]:
        t = f"v{G0+4}"
        bf16r(t, t); a(f"v_add_f32 {t}, {t}, v{HS}"); bf16r(f"v{HS}", t)
        a(f"v_sub_f32 {t}, v{HS}, v14")
        bcast4(G0, G0+4)
    else:
        pack4(AO, G0); unpack4(G0, AO)
        for q in range(4): a(f"v_add_f32 v{G0+q}, v{G0+q}, v{HK+q}")
        pack4(AO, G0); unpack4(HK, AO)
        a("s_waitcnt lgkmcnt(0)")
        for q in range(4): a(f"v_sub_f32 v{G0+q}, v{HK+q}, v14")
    a("s_cmp_eq_u32 s3, 7\ns_cbranch_scc1 L_stat")
    mfma8(AO, TW)
    sel4(True)
    a("s_mov_b32 exec_hi, 0")
    a(f"buffer_store_dwordx4 {r4(Y)}, {vPub4}, {sWS}, s73 offen" + (" sc1" if o["hack"] & 12 != 4 else ""))
    a("s_branch L_cd")
    a.label("L_stat")
    a(f"v_add_f32 v{Y}, v{G0}, v{G0+1}\nv_add_f32 v8, v{G0+2}, v{G0+3}\nv_mul_f32 v{Y+1}, v{G0}, v{G0}\nv_add_f32 v{Y}, v{Y}, v8")
    for q in range(1, 4): a(f"v_fmac_f32 v{Y+1}, v{G0+q}, v{G0+q}")
    red4(f"v{Y}", "v8"); red4(f"v{Y+1}", "v14")
    a(f"v_and_or_b32 v{Y}, v{Y}, {vMask}, {sTag8}\nv_and_or_b32 v{Y+1}, v{Y+1}, {vMask}, {sTag8}")
    pub2(WS_ST)
    a(f"s_cmp_lg_u32 s2, 0\ns_cbranch_scc1 L_cd")
    a(f"s_mov_b64 exec, 1\nbuffer_store_dword v{Y+2}, v8, {sWS}, 0 offen offset:{WS_EPOCH} sc1")
    if o["stamps"] == 3: a(f"v_xor_b32 v14, 0x5a5a1234, v{Y+2}\nbuffer_store_dword v14, v8, {sWS}, 0 offen offset:{WS_EPOCH+4} sc1")
    a.label("L_cd")
    a("s_mov_b64 exec, -1")
    if o["w2s"]:
        if o["w2p3"] < 4:
            a("s_cmp_ge_u32 s3, 4\ns_cbranch_scc1 L_w2t")
            for n in range(8 + o["w2p3"], 12): wload(n)
            a.label("L_w2t")
    elif o["w2late"]: latew(2)
    stamp("h4pub")
    a(f"s_cmp_ge_u32 {sA}, 56\ns_cbranch_scc1 L_nod")
    a(f"s_add_u32 {sT0}, s74, {WS_H4}")
    tr2 = lambda: wtrans(wsl(2), TW, M4)
    if o["st7"]:
        a("s_cmp_eq_u32 s3, 7\ns_cbranch_scc1 L_g4s\ns_lshr_b32 s78, s3, 1\ns_cmp_eq_u32 s78, 2\ns_cbranch_scc1 L_g4t")
        poll([ldx4(G0, vLin, sT0), ldx4(G0+4, vLin, sT0, 1024)], (R8, sTag8, "0xff"), o["d4"], mid=tr2)
        big_reduce(L_R4)
        a("s_branch L_g4")
        a.label("L_g4t")
        a(f"s_lshl_b32 s78, s3, 10\ns_sub_u32 s78, {sT0}, s78\ns_add_u32 s78, s78, {10*1024}")
        R12 = list(range(G0, G0+12))
        poll([ldx4(G0, vLin, sT0), ldx4(G0+4, vLin, sT0, 1024), ldx4(G0+8, vLin, "s78")], (R12, sTag8, "0xff"), o["d4"], mid=tr2)
        strip(R12[8:])
        add4(G0+4, G0+8)
        big_reduce(L_R4)
        a("s_branch L_g4")
        a.label("L_g4s")
        a(f"s_add_u32 {sT1}, s77, {WS_ST}\nv_mov_b32 v{G0}, 0\nds_write_b32 {vRP}, v{G0} offset:{L_R4}")
        poll([ldx4(Y, vLin, sT1)], ([Y, Y+1], sTag8, "0xff", Y+2), o["d4"], mid=tr2)
    else:
        a(f"s_cmp_eq_u32 s3, {7 if not o['hack'] & 2 else 9}\ns_cbranch_scc1 L_g4s")
        poll([ldx4(G0, vLin, sT0), ldx4(G0+4, vLin, sT0, 1024)], (R8, sTag8, "0xff"), o["d4"], mid=tr2)
        big_reduce(L_R4)
        a("s_branch L_g4")
        a.label("L_g4s")
        a(f"s_add_u32 {sT1}, s77, {WS_ST}")
        poll([ldx4(G0, vLin, sT0), ldx4(G0+4, vLin, sT0, 1024), ldx4(Y, vLin, sT1)], (R8 + [Y, Y+1], sTag8, "0xff", Y+2), o["d4"], mid=tr2)
        big_reduce(L_R4)
    strip([Y, Y+1])
    a(f"v_permlane32_swap_b32 v{Y}, v{Y+1}\nv_add_f32 v{G0}, v{Y}, v{Y+1}")
    a(f"v_mov_b32 v8, v{G0}\nv_permlane16_swap_b32 v8, v{G0}\nv_add_f32 v{G0}, v{G0}, v8")
    for k in (8, 4, 2, 1): a(f"v_add_f32_dpp v{G0}, v{G0}, v{G0} row_ror:{k} row_mask:0xf bank_mask:0xf")
    a(f"v_mul_f32 v{G0}, {f32(1/1024)}, v{G0}\nv_mov_b32 v8, v{G0}\nv_permlane32_swap_b32 v8, v{G0}")
    vr = f"v{G0}"
    a(f"v_fma_f32 {vr}, -v8, v8, {vr}\nv_max_f32 {vr}, 0, {vr}"); bf16r(vr, vr)
    a(f"v_add_f32 {vr}, {f32(1e-5)}, {vr}"); bf16r(vr, vr)
    a(f"v_sqrt_f32 {vr}, {vr}"); bf16r(vr, vr)
    a(f"v_rcp_f32 {vr}, {vr}\nv_mov_b32 v8, 0\nds_write_b32 v8, {vr} offset:{L_RI}")
    a.label("L_g4")
    stamp("p4")
    barrier()
    if o["one"] == 2:
        a(f"v_mov_b32 v8, 0\nds_read_b64 {r2(G0+4)}, {vAO} offset:{L_R4}\nds_read_b32 v14, v8 offset:{L_RI}\ns_waitcnt lgkmcnt(1)\nv_add_f32 v{G0+4}, v{G0+4}, v{G0+5}")
    else:
        a(f"v_mov_b32 v8, 0\nds_read_b128 {r4(G0)}, {vAO} offset:{L_R4}\nds_read_b32 v14, v8 offset:{L_RI}\ns_waitcnt lgkmcnt(1)")
    if o["one"]:
        if o["one"] == 2: quadsum(G0+4)
        else: dppsel(R4_, 3, G0+4)
        a("s_waitcnt lgkmcnt(0)")
        stamp("h4got")
        t, e = f"v{G0+4}", f"v{G0+5}"
        a(f"v_mul_f32 {t}, {t}, v14"); bf16r(t, t)
        a(f"v_mul_f32 {e}, {sL2E}, {t}\nv_exp_f32 {e}, -{e}\nv_add_f32 {e}, 1.0, {e}\nv_rcp_f32 {e}, {e}\nv_mul_f32 {t}, {t}, {e}")
        bcast4(G0, G0+4)
    else:
        dppsum(R4_, 3)
        a("s_waitcnt lgkmcnt(0)")
        stamp("h4got")
        for q in range(4): a(f"v_mul_f32 v{G0+q}, v{G0+q}, v14")
        pack4(AO, G0); unpack4(G0, AO)
        for q in range(4): a(f"v_mul_f32 v{G0+4+q}, {sL2E}, v{G0+q}")
        for q in range(4): a(f"v_exp_f32 v{G0+4+q}, -v{G0+4+q}")
        for q in range(4): a(f"v_add_f32 v{G0+4+q}, 1.0, v{G0+4+q}")
        for q in range(4): a(f"v_rcp_f32 v{G0+4+q}, v{G0+4+q}")
        for q in range(4): a(f"v_mul_f32 v{G0+q}, v{G0+q}, v{G0+4+q}")
    mfma8(AO, TW)
    sel4(False)
    a(f"ds_write_b128 {vRB}, {r4(Y)} offset:{L_D}")
    barrier()
    a(f"s_add_u32 s78, s75, {WS_H5}")
    cu_reduce_pub(L_D, "s78", "L_nod")
    stamp("h5pub")
    a(f"s_cmp_lg_u32 {sB}, 0\ns_cbranch_scc1 L_fin")
    a("s_cmp_ge_u32 s3, 4\ns_cbranch_scc1 L_g5")
    for q in range(4): a(f"v_mov_b32 v{G0+q}, 0")
    a(f"s_add_u32 {sT0}, s76, {WS_H5}\ns_cmp_eq_u32 s3, 3\ns_cselect_b32 exec_hi, 0, -1")
    poll([ldx4(G0, vGS, sT0)], (R4_, sTag8, "0xff"), o["d5"])
    strip(R4_)
    q16(G0, L_R5)
    a.label("L_g5")
    stamp("p5")
    barrier()
    a("s_cmp_lg_u32 s3, 0\ns_cbranch_scc1 L_fin")
    if o["one"]:
        if o["one"] == 2: a(f"ds_read_b32 v{G0+4}, {vL4} offset:{L_R5}")
        else: a(f"ds_read_b128 {r4(G0)}, {vA4} offset:{L_R5}")
        a(f"v_lshrrev_b32 v8, 2, {vLane}\nv_lshlrev_b32 v8, 1, v8\ns_lshl_b32 {sT0}, {sA}, 5\ns_waitcnt lgkmcnt(0)")
        if o["one"] == 2: quadsum(G0+4)
        else: dppsel(R4_, 2, G0+4)
        t = f"v{G0+4}"
        bf16r(t, t); a(f"v_add_f32 {t}, {t}, v{HS}\nv_cvt_pk_bf16_f32 {t}, {t}, {t}")
        a("s_mov_b32 exec_lo, 0x11111111\ns_mov_b32 exec_hi, 0x11111111")
        a(f"buffer_store_short {t}, v8, {sOUT}, {sT0} offen")
    else:
        a(f"ds_read_b128 {r4(G0)}, {vA4} offset:{L_R5}\nv_lshrrev_b32 v8, 4, {vLane}\nv_lshlrev_b32 v8, 3, v8\ns_lshl_b32 {sT0}, {sA}, 5\ns_waitcnt lgkmcnt(0)")
        dppsum(R4_, 2)
        pack4(AO, G0); unpack4(G0, AO)
        for q in range(4): a(f"v_add_f32 v{G0+q}, v{G0+q}, v{HK+q}")
        pack4(AO, G0)
        a("s_mov_b32 exec_lo, 0x10001\ns_mov_b32 exec_hi, 0x10001")
        a(f"buffer_store_dwordx2 {r2(AO)}, v8, {sOUT}, {sT0} offen" + ["", " sc1", " sc0 sc1", " nt"][o["outpol"]])
    a("s_mov_b64 exec, -1")
    a.label("L_fin")
    if o["stamps"]:
        stamp("end")
        a(f"s_lshl_b32 {sT0}, s2, 3\ns_add_u32 {sT0}, {sT0}, s3\ns_lshl_b32 {sT0}, {sT0}, 7\ns_add_u32 {sT0}, {sT0}, {WS_DBG}")
        a(f"v_lshlrev_b32 v8, 2, {vLane}\ns_mov_b32 exec_hi, 0")
        a(f"buffer_store_dword {vStamp}, v8, {sWS}, {sT0} offen")
        if o["stamps"] == 3:
            a("s_cmp_eq_u32 s97, 0x5a5a1234\ns_cbranch_scc1 L_end")
            a(f"s_or_b32 {sT0}, s2, s3\ns_cmp_lg_u32 {sT0}, 0\ns_cbranch_scc1 L_end")
            a(f"v_readlane_b32 {sT0}, {vStamp}, 0\nv_readlane_b32 {sT1}, {vStamp}, {nst[0]-1}\ns_nop 3\ns_sub_u32 {sT1}, {sT1}, {sT0}\ns_cmp_lt_u32 {sT1}, {o['thr']}\ns_cbranch_scc1 L_end")
            a(f"v_subrev_u32 v9, {sT0}, {vStamp}\nv_cvt_f32_u32 v9, v9\nv_mul_f32 v9, {f32(0.04)}, v9\nv_rndne_f32 v9, v9\nv_cvt_pk_bf16_f32 v9, v9, v9")
            lanes = o.get("lanes", [3, 4, 5, 7, 9, 12, 14, 16])
            a("s_waitcnt vmcnt(0)")
            for n, ln in enumerate(lanes):
                a(f"v_mov_b32 v8, {2*n}\ns_mov_b32 exec_lo, {1 << ln}\nv_mov_b32 v8, {2*n}\nbuffer_store_short v9, v8, {sOUT}, 0 offen\ns_nop 1")
        if o["stamps"] == 4:
            a(f"s_or_b32 {sT0}, s2, s3\ns_cmp_lg_u32 {sT0}, 0\ns_cbranch_scc1 L_end")
            a(f"v_readlane_b32 {sT0}, {vStamp}, 0\nv_readlane_b32 {sT1}, {vStamp}, {o['sidx']}\nv_readlane_b32 s96, {vStamp}, {nst[0]-1}\ns_nop 3")
            a(f"s_sub_u32 {sT1}, {sT1}, {sT0}\ns_mul_i32 {sT1}, {sT1}, {o['smul']}\ns_min_u32 {sT1}, {sT1}, 20000")
            a.label("L_str")
            a(f"s_memrealtime s[98:99]\ns_waitcnt lgkmcnt(0)\ns_sub_u32 {sT0}, s98, s96\ns_cmp_lt_u32 {sT0}, {sT1}\ns_cbranch_scc1 L_str")
        if o["stamps"] == 2:
            a(f"s_or_b32 {sT0}, s2, s3\ns_cmp_lg_u32 {sT0}, 0\ns_cbranch_scc1 L_end")
            a(f"v_readlane_b32 {sT0}, {vStamp}, 0\nv_subrev_u32 v9, {sT0}, {vStamp}\nv_subrev_u32 v8, 4, v8\ns_mov_b32 exec_lo, 0x1fffe")
            a(f"buffer_store_dword v9, v8, {sDBG}, 0 offen")
    a.label("L_end")
    a("s_endpgm")
    a.raw(f'''.section .rodata,"a"
.p2align 6
.amdhsa_kernel {KN}
  .amdhsa_next_free_vgpr 256
  .amdhsa_next_free_sgpr 102
  .amdhsa_accum_offset 256
  .amdhsa_group_segment_fixed_size 0
  .amdhsa_kernarg_size 88
  .amdhsa_user_sgpr_count 2
  .amdhsa_user_sgpr_kernarg_segment_ptr 1
  .amdhsa_system_sgpr_workgroup_id_x 1
.end_amdhsa_kernel''')
    return a.text()

if __name__ == "__main__":
    kw = {}
    out = sys.argv[1]
    for x in sys.argv[2:]:
        k, v = x.split("="); kw[k] = int(v)
    open(out, "w").write(gen(**kw))
```
